```python
import torch

def _softmax(x, axis=-1):
    return torch.softmax(x, dim=axis)
def _gelu(x):
    return torch.nn.functional.gelu(x, approximate="tanh")
def _silu(x):
    return torch.nn.functional.silu(x)
def _sigmoid(x):
    return torch.sigmoid(x)
def _layernorm(x, axis=-1, eps=1e-5):
    m = x.mean(dim=axis, keepdim=True)
    v = x.var(dim=axis, keepdim=True, unbiased=False)
    return (x - m) / torch.sqrt(v + eps)
def _scatter_add(tgt, idx, src, axis=0):
    return tgt.clone().index_add_(axis, idx, src)
def _segment_sum(src, seg, n):
    out = torch.zeros((n,) + src.shape[1:], dtype=src.dtype)
    return out.index_add_(0, seg, src)
def _pad(x, pw):
    flat = tuple(v for pair in reversed(pw) for v in pair)
    return torch.nn.functional.pad(x, flat)

kernel_name = 'gated_mix__ssm_conv_s5__glu_gated_swiglu__prompt'

def setup_inputs():

    _w = (lambda a: (lambda t: t.to(torch.bfloat16) if t.is_floating_point() else t)(torch.as_tensor(a)))
    def _A_setup():
        B, S, D = 1, 2048, 640
        P = D
        Lambda_re = -0.5 * (lambda _x: torch.exp(torch.as_tensor(_x)))((lambda *s: torch.randn(*s, dtype=torch.bfloat16) * 0.2)(P))
        Lambda_im = (lambda *s: torch.randn(*s, dtype=torch.bfloat16) * 0.4)(P) * 1.0
        B_re = (lambda *s: torch.randn(*s, dtype=torch.bfloat16) * 0.2)(P, D) * (D ** -0.5)
        B_im = (lambda *s: torch.randn(*s, dtype=torch.bfloat16) * 0.2)(P, D) * (D ** -0.5)
        C_re = (lambda *s: torch.randn(*s, dtype=torch.bfloat16) * 0.2)(D, P) * (P ** -0.5)
        C_im = (lambda *s: torch.randn(*s, dtype=torch.bfloat16) * 0.2)(D, P) * (P ** -0.5)
        log_dt = (lambda *s: torch.randn(*s, dtype=torch.bfloat16) * 0.2)(P) * 0.3 - 2.0
        Dskip = (lambda *s: torch.randn(*s, dtype=torch.bfloat16) * 0.05)(D)
        return {
            "x": _w((lambda *s: torch.randn(*s, dtype=torch.bfloat16) * 0.05)(B, S, D)),
            "Lambda_re": _w(Lambda_re),
            "Lambda_im": _w(Lambda_im),
            "B_re": _w(B_re),
            "B_im": _w(B_im),
            "C_re": _w(C_re),
            "C_im": _w(C_im),
            "log_dt": _w(log_dt),
            "Dskip": _w(Dskip),
        }
    _A_in = _A_setup()

    def _B_setup():
        B, S, D, F = 1, 2048, 640, 1728
        return {
            "x": _w((lambda *s: torch.randn(*s, dtype=torch.bfloat16) * 0.05)(B, S, D)),
            "w1": _w((lambda *s: torch.randn(*s, dtype=torch.bfloat16) * 0.8)(D, F) * (2.0 / D) ** 0.5),
            "w3": _w((lambda *s: torch.randn(*s, dtype=torch.bfloat16) * 0.8)(D, F) * (2.0 / D) ** 0.5),
            "w2": _w((lambda *s: torch.randn(*s, dtype=torch.bfloat16) * 0.8)(F, D) * (2.0 / F) ** 0.5),
        }
    _B_in = _B_setup()

    return {
        "A_x": _A_in["x"],
        "A_Lambda_re": _A_in["Lambda_re"],
        "A_Lambda_im": _A_in["Lambda_im"],
        "A_B_re": _A_in["B_re"],
        "A_B_im": _A_in["B_im"],
        "A_C_re": _A_in["C_re"],
        "A_C_im": _A_in["C_im"],
        "A_log_dt": _A_in["log_dt"],
        "A_Dskip": _A_in["Dskip"],
        "B_x": _B_in["x"],
        "B_w1": _B_in["w1"],
        "B_w3": _B_in["w3"],
        "B_w2": _B_in["w2"],
        "gate_w": _w((lambda *s: torch.randn(*s, dtype=torch.bfloat16) * 0.05)(640) * 16.0),
    }

def reference(A_x, A_Lambda_re, A_Lambda_im, A_B_re, A_B_im, A_C_re, A_C_im, A_log_dt, A_Dskip, B_x, B_w1, B_w3, B_w2, gate_w):
    def _A_ref(x, Lambda_re, Lambda_im, B_re, B_im, C_re, C_im, log_dt, Dskip):
        Bsz, L, H = x.shape
        Lam = Lambda_re + 1j * Lambda_im
        Bmat = B_re + 1j * B_im
        Cmat = C_re + 1j * C_im
        dt = torch.exp(log_dt)
        Lam_bar = torch.exp(dt * Lam)
        B_bar = ((Lam_bar - 1.0) / Lam)[:, None] * Bmat
        Bu = torch.einsum("bld,pd->blp", x + 0j, B_bar)
        h = torch.zeros_like(Bu[:, 0, :])
        hs = []
        for t in range(L):
            h = Lam_bar[None, :] * h + Bu[:, t, :]
            hs.append(h)
        hseq = torch.stack(hs, 1)
        y = 2.0 * torch.einsum("blp,dp->bld", hseq, Cmat).real + x * Dskip[None, None, :]
        return y

    def _B_ref(x, w1, w3, w2):
        gate = torch.einsum("bsd,df->bsf", x, w1)
        up = torch.einsum("bsd,df->bsf", x, w3)
        h = _silu(gate) * up
        out = torch.einsum("bsf,fd->bsd", h, w2)
        return out

    x = A_x
    g = _sigmoid((x * gate_w).sum(-1, keepdims=True))
    a = _A_ref(x, A_Lambda_re, A_Lambda_im, A_B_re, A_B_im, A_C_re, A_C_im, A_log_dt, A_Dskip)
    b = _B_ref(x, B_w1, B_w3, B_w2)
    return g * a + (1 - g) * b
```

```python
import sys

NAME = "gated_mix__ssm_conv_s5__glu_gated_swiglu__prompt"

class Opt:
    stamps = False
    k2_depth = 6
    h_store = ""
    k1_map = "2x4"
    k2_map = "4x2"

HP_OFF  = 0
HP_SIZE = 94 * 128 * 1024
W2_OFF  = 0xC00000
W2_SIZE = 94 * 40 * 1024
G_OFF   = 0x1000000
G_SIZE  = 2048 * 8
AGG_OFF = 0x1010000
AGG_SIZE = 80 * 1024
ST_OFF  = 0x1100000
ST_SIZE = 0x100000

LOG2E = 0x3fb8aa3b
NLOG2E = 0xbfb8aa3b

class Asm:
    def __init__(self):
        self.l = []
    def __call__(self, s):
        self.l.append("    " + s)
    def label(self, s):
        self.l.append(s + ":")
    def c(self, s):
        self.l.append("    ; " + s)
    def raw(self, s):
        self.l.append(s)
    def text(self):
        return "\n".join(self.l) + "\n"

def vr(b, n=1, p="v"):
    return f"{p}{b}" if n == 1 else f"{p}[{b}:{b+n-1}]"
def sr(b, n=1):
    return vr(b, n, "s")

def srd(a, d, base, size, off=0):
    if off:
        a(f"s_add_u32 s{d}, s{base}, {off:#x}")
        a(f"s_addc_u32 s{d+1}, s{base+1}, 0")
    else:
        a(f"s_mov_b32 s{d}, s{base}")
        a(f"s_mov_b32 s{d+1}, s{base+1}")
    a(f"s_mov_b32 s{d+2}, {size:#x}")
    a(f"s_mov_b32 s{d+3}, 0x20000")

P_X, P_LRE, P_LIM, P_BRE, P_BIM, P_CRE, P_CIM, P_LDT = 4, 6, 8, 10, 12, 14, 16, 18
P_DSK, P_BX, P_W1, P_W3, P_W2, P_GW, P_OUT, P_DBG, P_WS = 20, 22, 24, 26, 28, 30, 32, 34, 36

def load_ptrs(a):
    a("s_load_dwordx16 s[4:19], s[0:1], 0")
    a("s_load_dwordx16 s[20:35], s[0:1], 64")
    a("s_load_dwordx2 s[36:37], s[0:1], 128")

_stamp_id = [0]
def stamp(a, o, slot, kern, tmpv, stsrd=96):
    if not o.stamps:
        return
    a("s_memrealtime s[92:93]")
    a("s_waitcnt lgkmcnt(0)")
    a(f"v_mov_b32 v{tmpv}, s92")
    a(f"v_mov_b32 v{tmpv+1}, s91")
    a(f"buffer_store_dword v{tmpv}, v{tmpv+1}, s[{stsrd}:{stsrd+3}], 0 offen offset:{slot*4}")

def stamp_setup(a, o, kern, swave, stsrd=96):
    if not o.stamps:
        return
    srd(a, stsrd, P_WS, ST_SIZE, ST_OFF)
    a(f"s_lshl_b32 s91, s2, 3")
    a(f"s_add_u32 s91, s91, s{swave}")
    a(f"s_add_u32 s91, s91, {kern*2048}")
    a(f"s_lshl_b32 s91, s91, 6")

F_WSLOT = 20736
F_UP = 10368
F_XB = 3 * F_WSLOT
F_XW = 24576
F_XSLOT = 8192
S_BSLOT = 16384
S_XB = 3 * S_BSLOT
S_XW = 49152
S_XSLOT = 16384
S_AGG = S_XB + 2 * S_XW
K1_LDS = 160512

def k1(o):
    a = Asm()
    a.raw(".p2align 8")
    a.raw(".type k1_kernel,@function")
    a.label("k1_kernel")
    a("s_cmp_ge_u32 s2, 256")
    a("s_cbranch_scc1 L1_end")
    load_ptrs(a)
    a("v_lshrrev_b32 v1, 6, v0")
    a("v_and_b32 v0, 63, v0")
    a("v_readfirstlane_b32 s38, v1")
    a("s_and_b32 s42, s2, 7")
    a("s_lshr_b32 s43, s2, 3")
    if o.k1_map == "2x4":
        a("s_and_b32 s39, s42, 1")
        a("s_lshl_b32 s39, s39, 2")
        a("s_and_b32 s44, s43, 3")
        a("s_add_u32 s39, s39, s44")
        a("s_lshr_b32 s42, s42, 1")
        a("s_lshr_b32 s43, s43, 2")
        a("s_lshr_b32 s44, s42, 1")
        a("s_sub_u32 s44, 6, s44")
        a("s_max_u32 s45, s42, 2")
        a("s_sub_u32 s45, s45, 2")
        a("s_mul_i32 s46, s42, 6")
        a("s_sub_u32 s46, s46, s45")
        a("s_add_u32 s46, s46, s43")
        a("s_lshl_b32 s47, s42, 1")
        a("s_add_u32 s47, s47, s45")
        a("s_add_u32 s47, s47, s43")
        a("s_sub_u32 s47, s47, s44")
        a("s_cmp_ge_u32 s43, s44")
        a("s_cselect_b32 s40, s47, s46")
        a("s_cselect_b32 s41, 1, 0")
    elif o.k1_map == "8x1":
        a("s_mov_b32 s39, s42")
        a("s_sub_u32 s47, s43, 22")
        a("s_cmp_ge_u32 s43, 22")
        a("s_cselect_b32 s40, s47, s43")
        a("s_cselect_b32 s41, 1, 0")
    elif o.k1_map == "1x8":
        a("s_and_b32 s39, s43, 7")
        a("s_lshr_b32 s43, s43, 3")
        a("s_lshl_b32 s42, s42, 2")
        a("s_add_u32 s43, s43, s42")
        a("s_sub_u32 s47, s43, 22")
        a("s_cmp_ge_u32 s43, 22")
        a("s_cselect_b32 s40, s47, s43")
        a("s_cselect_b32 s41, 1, 0")
    a("s_waitcnt lgkmcnt(0)")
    stamp_setup(a, o, 0, 38)
    stamp(a, o, 0, 0, 250)
    a("s_cmp_ge_u32 s38, 4")
    a("s_cbranch_scc1 L1_loader")
    a("s_cmp_eq_u32 s41, 1")
    a("s_cbranch_scc1 L1_ssm")
    k1_ffn(a, o)
    a.label("L1_ssm")
    k1_ssm(a, o)
    a.label("L1_loader")
    k1_loader(a, o)
    a.label("L1_end")
    a("s_endpgm")
    return a

def k1_ffn(a, o):
    ACC = 16
    FA = 176
    FB = 216
    VX = 4
    VW = 8
    acc = lambda j, mi: ACC + (j * 2 + mi) * 16
    fa = lambda b, j: FA + b * 20 + j * 4
    fb = lambda b, mi: FB + b * 8 + mi * 4
    a.c("FFN compute wave: D[f][m] = W^T X^T")
    a("v_and_b32 v1, 31, v0")
    a("v_lshrrev_b32 v2, 5, v0")
    a("v_lshrrev_b32 v3, 1, v1")
    a("v_and_b32 v3, 7, v3")
    a("v_xor_b32 v3, v3, v2")
    a("v_lshlrev_b32 v3, 4, v3")
    a("v_lshl_add_u32 v3, v1, 7, v3")
    a(f"s_mul_i32 s44, s38, {F_XW}")
    a(f"s_add_u32 s44, s44, {F_XB}")
    a(f"v_add_u32 v{VX}, s44, v3")
    for sub in range(1, 4):
        a(f"v_xor_b32 v{VX+sub}, {sub*32}, v{VX}")
    a("v_bfe_u32 v1, v0, 4, 1")
    a(f"v_mul_u32_u24 v1, {F_UP}, v1")
    a("v_lshrrev_b32 v2, 5, v0")
    a("v_lshlrev_b32 v2, 3, v2")
    a("v_bfe_u32 v3, v0, 2, 2")
    a("v_add_u32 v2, v2, v3")
    a("v_mul_u32_u24 v2, 160, v2")
    a("v_add_u32 v1, v1, v2")
    a("v_and_b32 v2, 1, v0")
    a("v_lshlrev_b32 v2, 4, v2")
    a("v_add_u32 v1, v1, v2")
    a("v_bfe_u32 v2, v0, 1, 1")
    a("v_lshlrev_b32 v2, 3, v2")
    a(f"v_add_u32 v{VW}, v1, v2")
    for r in range(ACC, ACC + 160):
        a(f"v_mov_b32 v{r}, 0")
    srd(a, 48, P_WS, HP_SIZE, HP_OFF)
    a("v_bfe_u32 v1, v0, 4, 1")
    a("v_lshlrev_b32 v1, 10, v1")
    a("v_lshrrev_b32 v2, 5, v0")
    a("v_lshlrev_b32 v2, 8, v2")
    a("v_and_b32 v3, 15, v0")
    a("v_lshlrev_b32 v3, 4, v3")
    a("v_add3_u32 v9, v1, v2, v3")
    a("s_mov_b32 s52, 0")
    a("s_mov_b32 s53, 0")
    a(f"s_mov_b32 s56, {F_XSLOT}")
    a(f"s_mov_b32 s57, {F_WSLOT}")

    def reads(buf, sub):
        r = []
        for mi in range(2):
            r.append(f"ds_read_b128 {vr(fb(buf, mi), 4)}, v{VX+sub} offset:{mi*4096}")
        for j in range(5):
            for half in range(2):
                r.append(f"ds_read_b64_tr_b16 {vr(fa(buf, j)+2*half, 2)}, v{VW} offset:{sub*2560 + half*640 + j*32}")
        return r
    a("s_barrier")
    stamp(a, o, 1, 0, 250)
    for r in reads(0, 0):
        a(r)
    a.label("L1f_loop")
    for sub in range(4):
        buf = sub & 1
        nxt = reads(buf ^ 1, (sub + 1) & 3)
        a("s_waitcnt lgkmcnt(0)")
        mf = [(j, mi) for j in range(5) for mi in range(2)]
        for n, (j, mi) in enumerate(mf):
            a(f"v_mfma_f32_32x32x16_bf16 {vr(acc(j, mi), 16)}, {vr(fa(buf, j), 4)}, {vr(fb(buf, mi), 4)}, {vr(acc(j, mi), 16)}")
            if n == 0 and sub == 3:
                a("s_add_u32 s52, s52, 1")
                a("s_add_u32 s53, s53, 1")
                a("s_cmp_eq_u32 s53, 3")
                a(f"s_cselect_b32 s54, {-2*F_XSLOT & 0xffffffff:#x}, s56")
                a(f"s_cselect_b32 s55, {-2*F_WSLOT & 0xffffffff:#x}, s57")
                a("s_cselect_b32 s53, 0, s53")
                for q in range(4):
                    a(f"v_add_u32 v{VX+q}, s54, v{VX+q}")
                a(f"v_add_u32 v{VW}, s55, v{VW}")
                a("s_cmp_eq_u32 s52, 10")
                a("s_cbranch_scc1 L1f_nobar")
                a("s_barrier")
                a.label("L1f_nobar")
            if n < 6:
                a(nxt[2 * n]); a(nxt[2 * n + 1])
    a("s_cmp_lt_u32 s52, 10")
    a("s_cbranch_scc1 L1f_loop")
    a("s_waitcnt lgkmcnt(0)")
    stamp(a, o, 2, 0, 250)
    a(f"s_mov_b32 s56, {NLOG2E:#x}")
    a(f"s_mov_b32 s57, {NLOG2E:#x}")
    a("s_mul_i32 s58, s40, 5")
    a("s_lshl_b32 s59, s39, 4")
    a("s_lshl_b32 s60, s38, 2")
    a("s_add_u32 s59, s59, s60")
    a("s_lshl_b32 s59, s59, 10")
    a(f"s_add_u32 s59, s59, {40*131072}")
    a("s_nop 7")
    T = FA
    for j in range(5):
        if j == 3:
            a("s_cmp_eq_u32 s40, 21")
            a("s_cbranch_scc1 L1f_done")
        a(f"s_add_u32 s60, s58, {j}")
        a("s_lshr_b32 s61, s60, 1")
        a("s_lshl_b32 s61, s61, 17")
        a("s_and_b32 s60, s60, 1")
        a("s_lshl_b32 s60, s60, 9")
        a("s_add_u32 s61, s61, s60")
        a(f"s_add_u32 s{62+j}, s61, s59")
        for mi in range(2):
            g = acc(j, mi); u = g + 8
            t = T + ((j * 2 + mi) & 1) * 12
            for p in range(4):
                a(f"v_pk_mul_f32 {vr(t+2*p, 2)}, {vr(g+2*p, 2)}, s[56:57]")
            for p in range(8):
                a(f"v_exp_f32 v{t+p}, v{t+p}")
            for p in range(4):
                a(f"v_pk_mul_f32 {vr(g+2*p, 2)}, {vr(g+2*p, 2)}, {vr(u+2*p, 2)}")
            for p in range(4):
                a(f"v_pk_add_f32 {vr(t+2*p, 2)}, {vr(t+2*p, 2)}, 1.0 op_sel_hi:[1,0]")
            for p in range(8):
                a(f"v_rcp_f32 v{t+p}, v{t+p}")
            a("s_nop 0")
            for p in range(4):
                a(f"v_pk_mul_f32 {vr(g+2*p, 2)}, {vr(g+2*p, 2)}, {vr(t+2*p, 2)}")
            for p in range(4):
                a(f"v_cvt_pk_bf16_f32 v{t+8+p}, v{g+2*p}, v{g+2*p+1}")
            a(f"buffer_store_dwordx4 {vr(t+8, 4)}, v9, s[48:51], s{62+j} offen offset:{mi*2048} {o.h_store}")
    a.label("L1f_done")
    stamp(a, o, 3, 0, 250)
    if o.stamps:
        a("s_waitcnt vmcnt(0)")
        stamp(a, o, 4, 0, 250)
    a("s_endpgm")

def cmul(a, dr, di, ar, ai, br, bi, t):
    a(f"v_mul_f32 v{t}, v{ar}, v{br}")
    a(f"v_mul_f32 v{t+1}, v{ar}, v{bi}")
    a(f"v_fma_f32 v{t}, -v{ai}, v{bi}, v{t}")
    a(f"v_fma_f32 v{di}, v{ai}, v{br}, v{t+1}")
    a(f"v_mov_b32 v{dr}, v{t}")

def cfma(a, dr, di, ar, ai, br, bi, cr, ci):
    a(f"v_fma_f32 v{dr}, v{ar}, v{br}, v{cr}")
    a(f"v_fma_f32 v{di}, v{ar}, v{bi}, v{ci}")
    a(f"v_fma_f32 v{dr}, -v{ai}, v{bi}, v{dr}")
    a(f"v_fma_f32 v{di}, v{ai}, v{br}, v{di}")

def k1_ssm(a, o):
    ACC = 48
    FA = 176
    FB = 208
    VX = 4; VB = 8
    LAM = 12
    L32 = 14; L256 = 16; C2 = 18
    TMP = 20
    acc = lambda j, c: ACC + (j * 2 + c) * 16
    fa = lambda b, j: FA + b * 16 + j * 4
    fb = lambda b, c: FB + b * 8 + c * 4
    a.c("SSM compute wave: D[t][p] = X B^T")
    a("s_lshr_b32 s44, s38, 1")
    a("s_and_b32 s45, s38, 1")
    srd(a, 48, P_LRE, 1280)
    srd(a, 52, P_LIM, 1280)
    srd(a, 56, P_LDT, 1280)
    srd(a, 60, P_DBG, 256)
    a("s_lshl_b32 s46, s40, 6")
    a("s_lshl_b32 s47, s45, 5")
    a("s_add_u32 s46, s46, s47")
    a("v_and_b32 v1, 31, v0")
    a("v_add_u32 v2, s46, v1")
    a("v_lshlrev_b32 v2, 1, v2")
    a(f"buffer_load_ushort v{TMP}, v2, s[48:51], 0 offen")
    a(f"buffer_load_ushort v{TMP+1}, v2, s[52:55], 0 offen")
    a(f"buffer_load_ushort v{TMP+2}, v2, s[56:59], 0 offen")
    NON = TMP + 24
    a("s_memrealtime s[64:65]")
    a("s_waitcnt lgkmcnt(0)")
    a("s_or_b32 s64, s64, 1")
    a(f"v_mov_b32 v{NON}, s64")
    a(f"v_mov_b32 v{NON+1}, 0")
    a(f"v_mov_b32 v{NON+2}, 0")
    a("s_waitcnt vmcnt(0)")
    a("s_cmp_lg_u32 s38, 0")
    a("s_cbranch_scc1 L1s_nononce")
    a("s_mov_b64 exec, 1")
    a(f"buffer_atomic_cmpswap {vr(NON, 2)}, v{NON+2}, s[60:63], 0 offen sc0 sc1")
    a("s_mov_b64 exec, -1")
    a.label("L1s_nononce")
    a("v_bfe_u32 v2, v0, 2, 1")
    a("v_lshlrev_b32 v2, 6, v2")
    a("v_and_b32 v3, 1, v0")
    a("v_lshl_add_u32 v2, v3, 5, v2")
    a(f"v_bfe_u32 v{VX}, v0, 1, 1")
    a(f"v_add_u32 v2, v2, v{VX}")
    a(f"v_bfe_u32 v{VX}, v0, 3, 2")
    a(f"v_lshl_add_u32 v2, v{VX}, 1, v2")
    a(f"v_lshl_or_b32 v3, v3, 2, v{VX}")
    a(f"v_lshrrev_b32 v{VX}, 5, v0")
    a(f"v_xor_b32 v3, v3, v{VX}")
    a("v_lshlrev_b32 v3, 4, v3")
    a("v_lshl_add_u32 v3, v2, 7, v3")
    a(f"s_mul_i32 s47, s44, {S_XW}")
    a(f"s_add_u32 s47, s47, {S_XB}")
    a(f"v_add_u32 v{VX}, s47, v3")
    for sub in range(1, 4):
        a(f"v_xor_b32 v{VX+sub}, {sub*32}, v{VX}")
    a("v_lshrrev_b32 v2, 5, v0")
    a("v_bfe_u32 v3, v0, 1, 3")
    a("v_xor_b32 v3, v3, v2")
    a("v_lshlrev_b32 v3, 4, v3")
    a("v_lshl_add_u32 v3, v1, 7, v3")
    a("s_lshl_b32 s47, s45, 12")
    a(f"v_add_u32 v{VB}, s47, v3")
    for sub in range(1, 4):
        a(f"v_xor_b32 v{VB+sub}, {sub*32}, v{VB}")
    for r in range(ACC, ACC + 128):
        a(f"v_mov_b32 v{r}, 0")
    t = TMP
    a(f"v_lshlrev_b32 v{t}, 16, v{t}")
    a(f"v_lshlrev_b32 v{t+1}, 16, v{t+1}")
    a(f"v_lshlrev_b32 v{t+2}, 16, v{t+2}")
    a(f"v_mul_f32 v{t+2}, {LOG2E:#x}, v{t+2}")
    a(f"v_exp_f32 v{t+2}, v{t+2}")
    a("s_nop 0")
    a(f"v_cvt_pk_bf16_f32 v{t+2}, v{t+2}, v{t+2}")
    a(f"v_lshlrev_b32 v{t+2}, 16, v{t+2}")
    a(f"v_mul_f32 v{t+3}, v{t+2}, v{t}")
    a(f"v_mul_f32 v{t+4}, v{t+2}, v{t+1}")
    a(f"v_mul_f32 v{t+3}, {LOG2E:#x}, v{t+3}")
    a(f"v_exp_f32 v{t+3}, v{t+3}")
    a(f"v_mul_f32 v{t+4}, 0.15915494, v{t+4}")
    a(f"v_rndne_f32 v{t+5}, v{t+4}")
    a(f"v_sub_f32 v{t+4}, v{t+4}, v{t+5}")
    a(f"v_cos_f32 v{t+5}, v{t+4}")
    a(f"v_sin_f32 v{t+6}, v{t+4}")
    a("s_nop 0")
    a(f"v_mul_f32 v{LAM}, v{t+3}, v{t+5}")
    a(f"v_mul_f32 v{LAM+1}, v{t+3}, v{t+6}")
    a(f"v_mul_f32 v{t+3}, v{t}, v{t}")
    a(f"v_fma_f32 v{t+3}, v{t+1}, v{t+1}, v{t+3}")
    a(f"v_rcp_f32 v{t+3}, v{t+3}")
    a(f"v_add_f32 v{t+4}, -1.0, v{LAM}")
    a(f"v_mul_f32 v{t+5}, v{t+4}, v{t}")
    a(f"v_fma_f32 v{t+5}, v{LAM+1}, v{t+1}, v{t+5}")
    a(f"v_mul_f32 v{t+6}, v{LAM+1}, v{t}")
    a(f"v_fma_f32 v{t+6}, -v{t+4}, v{t+1}, v{t+6}")
    a(f"v_add_f32 v{t+3}, v{t+3}, v{t+3}")
    a(f"v_mul_f32 v{C2}, v{t+5}, v{t+3}")
    a(f"v_mul_f32 v{C2+1}, v{t+6}, v{t+3}")
    cmul(a, L32, L32 + 1, LAM, LAM + 1, LAM, LAM + 1, t)
    for _ in range(4):
        cmul(a, L32, L32 + 1, L32, L32 + 1, L32, L32 + 1, t)
    cmul(a, L256, L256 + 1, L32, L32 + 1, L32, L32 + 1, t)
    for _ in range(2):
        cmul(a, L256, L256 + 1, L256, L256 + 1, L256, L256 + 1, t)
    a("s_mov_b32 s52, 0")
    a("s_mov_b32 s53, 0")
    a(f"s_mov_b32 s56, {S_XSLOT}")

    def reads(buf, sub):
        r = []
        r.append(f"ds_read_b128 {vr(fb(buf, 0), 4)}, v{VB+sub}")
        r.append(f"ds_read_b128 {vr(fa(buf, 0), 4)}, v{VX+sub}")
        r.append(f"ds_read_b128 {vr(fb(buf, 1), 4)}, v{VB+sub} offset:8192")
        for j in range(1, 4):
            r.append(f"ds_read_b128 {vr(fa(buf, j), 4)}, v{VX+(sub ^ ((j & 1) << 1))} offset:{j*1024}")
        return r
    a("s_barrier")
    stamp(a, o, 1, 0, 250)
    for r in reads(0, 0):
        a(r)
    a.label("L1s_loop")
    for sub in range(4):
        buf = sub & 1
        nxt = reads(buf ^ 1, (sub + 1) & 3)
        a("s_waitcnt lgkmcnt(0)")
        mf = [(j, c) for j in range(4) for c in range(2)]
        for n, (j, c) in enumerate(mf):
            a(f"v_mfma_f32_32x32x16_bf16 {vr(acc(j, c), 16)}, {vr(fa(buf, j), 4)}, {vr(fb(buf, c), 4)}, {vr(acc(j, c), 16)}")
            if n == 0 and sub == 3:
                a("s_add_u32 s52, s52, 1")
                a("s_add_u32 s53, s53, 1")
                a("s_cmp_eq_u32 s53, 3")
                a(f"s_cselect_b32 s54, {-2*S_XSLOT & 0xffffffff:#x}, s56")
                a("s_cselect_b32 s53, 0, s53")
                for q in range(8):
                    a(f"v_add_u32 v{VX+q}, s54, v{VX+q}")
                a("s_cmp_eq_u32 s52, 10")
                a("s_cbranch_scc1 L1s_nobar")
                a("s_barrier")
                a.label("L1s_nobar")
            if n < 3:
                a(nxt[2 * n]); a(nxt[2 * n + 1])
    a("s_cmp_lt_u32 s52, 10")
    a("s_cbranch_scc1 L1s_loop")
    a("s_waitcnt lgkmcnt(0)")
    stamp(a, o, 2, 0, 250)
    a("s_nop 7")
    a("s_nop 3")
    LR = f"{vr(LAM, 2)}"
    def pk_lr(d, x, y):
        a(f"v_pk_fma_f32 {vr(d, 2)}, {LR}, {vr(x, 2)}, {vr(y, 2)} op_sel_hi:[0,1,1]")
    def pk_li(d, x, y, neg):
        n = " neg_lo:[1,0,0] neg_hi:[1,0,0]" if neg else ""
        a(f"v_pk_fma_f32 {vr(d, 2)}, {LR}, {vr(x, 2)}, {vr(y, 2)} op_sel:[1,0,0] op_sel_hi:[1,1,1]{n}")
    ure = lambda n: acc(n >> 3, 0) + 2 * (n & 7)
    uim = lambda n: acc(n >> 3, 1) + 2 * (n & 7)
    S = [TMP, TMP + 4]
    pr, pi = ure(0), uim(0)
    for n in range(1, 32):
        d = S[n & 1]
        pk_lr(d, pr, ure(n)); pk_lr(d + 2, pi, uim(n))
        pk_li(d, pi, d, True); pk_li(d + 2, pr, d + 2, False)
        pr, pi = d, d + 2
    Sf = S[31 & 1]
    a("v_and_b32 v1, 31, v0")
    a("s_lshl_b32 s47, s45, 5")
    a("v_add_u32 v1, s47, v1")
    a("v_lshlrev_b32 v2, 6, v1")
    a(f"v_add_u32 v2, {S_AGG}, v2")
    a("v_lshrrev_b32 v3, 5, v0")
    a("v_lshl_add_u32 v3, v3, 4, v2")
    a("s_lshl_b32 s47, s44, 5")
    a("v_add_u32 v3, s47, v3")
    a(f"ds_write_b128 v3, {vr(Sf, 4)}")
    a(f"v_mov_b32 v{NON+2}, {S_AGG + 4096}")
    a("s_cmp_lg_u32 s38, 0")
    a("s_cbranch_scc1 L1s_nononce2")
    a("s_waitcnt vmcnt(0)")
    a(f"v_readfirstlane_b32 s65, v{NON}")
    a("s_nop 3")
    a("s_cmp_eq_u32 s65, 0")
    a("s_cselect_b32 s64, s64, s65")
    a(f"v_mov_b32 v{NON}, s64")
    a(f"ds_write_b32 v{NON+2}, v{NON}")
    a.label("L1s_nononce2")
    a("s_waitcnt lgkmcnt(0)")
    a("s_barrier")
    a(f"ds_read_b32 v{NON}, v{NON+2}")
    AG = FA
    for q in range(4):
        a(f"ds_read_b128 {vr(AG+4*q, 4)}, v2 offset:{q*16}")
    are = lambda s: AG + 4 * (s >> 1) + (s & 1)
    aim = lambda s: AG + 4 * (s >> 1) + 2 + (s & 1)
    PF = FA + 16
    srd(a, 48, P_WS, AGG_SIZE, AGG_OFF)
    a("s_waitcnt lgkmcnt(0)")
    a(f"v_readfirstlane_b32 s64, v{NON}")
    a(f"v_mov_b32 v{PF}, 0"); a(f"v_mov_b32 v{PF+1}, 0")
    a(f"v_mov_b32 v{PF+2}, v{are(0)}"); a(f"v_mov_b32 v{PF+3}, v{aim(0)}")
    for s in range(1, 8):
        cfma(a, PF + 2 * (s + 1), PF + 2 * (s + 1) + 1, L32, L32 + 1, PF + 2 * s, PF + 2 * s + 1, are(s), aim(s))
    a("v_lshlrev_b32 v3, 4, v1")
    a("s_lshl_b32 s46, s40, 13")
    a("s_lshl_b32 s47, s39, 10")
    a("s_add_u32 s47, s47, s46")
    a("s_cmp_lg_u32 s44, 0")
    a("s_cbranch_scc1 L1s_nopub")
    a(f"v_mov_b32 v{TMP}, v{PF+16}")
    a(f"v_mov_b32 v{TMP+1}, s64")
    a(f"v_mov_b32 v{TMP+2}, v{PF+17}")
    a(f"v_mov_b32 v{TMP+3}, s64")
    a("s_mov_b32 exec_hi, 0")
    a(f"buffer_store_dwordx4 {vr(TMP, 4)}, v3, s[48:51], s47 offen sc1")
    a("s_mov_b64 exec, -1")
    a.label("L1s_nopub")
    stamp(a, o, 3, 0, 250)
    PW = PF + 18
    a(f"v_mov_b32 v{PW}, 1.0"); a(f"v_mov_b32 v{PW+1}, 0")
    for s in range(1, 8):
        a(f"v_mul_f32 v{PW+2*s}, v{PW+2*s-2}, v{L32}")
        a(f"v_mul_f32 v{PW+2*s+1}, v{PW+2*s-2}, v{L32+1}")
        a(f"v_fma_f32 v{PW+2*s}, -v{PW+2*s-1}, v{L32+1}, v{PW+2*s}")
        a(f"v_fma_f32 v{PW+2*s+1}, v{PW+2*s-1}, v{L32}, v{PW+2*s+1}")
    a("s_cmp_eq_u32 s44, 0")
    a("s_cselect_b64 s[66:67], 0, -1")
    a("s_mov_b32 s68, 0")
    a("s_mov_b32 s69, -1")
    SEL = TMP + 8
    for (src, dst) in ((PF, SEL), (PW, SEL + 4)):
        for par in range(2):
            for c in range(2):
                r = lambda s: src + 2 * s + c
                d = dst + 2 * c + par
                a(f"v_cndmask_b32 v{TMP+4}, v{r(par)}, v{r(2+par)}, s[68:69]")
                a(f"v_cndmask_b32 v{TMP+5}, v{r(4+par)}, v{r(6+par)}, s[68:69]")
                a(f"v_cndmask_b32 v{d}, v{TMP+4}, v{TMP+5}, s[66:67]")
    CC = vr(C2, 2)
    def scale(re, im):
        a(f"v_pk_mul_f32 {vr(TMP+4, 2)}, {CC}, {vr(re, 2)} op_sel:[1,0] op_sel_hi:[1,1]")
        a(f"v_pk_mul_f32 {vr(re, 2)}, {CC}, {vr(re, 2)} op_sel_hi:[0,1]")
        a(f"v_pk_fma_f32 {vr(re, 2)}, {CC}, {vr(im, 2)}, {vr(re, 2)} op_sel:[1,0,0] op_sel_hi:[1,1,1] neg_lo:[1,0,0] neg_hi:[1,0,0]")
        a(f"v_pk_fma_f32 {vr(im, 2)}, {CC}, {vr(im, 2)}, {vr(TMP+4, 2)} op_sel_hi:[0,1,1]")
    scale(SEL, SEL + 2); scale(SEL + 4, SEL + 6)
    for n in range(32):
        scale(ure(n), uim(n))
    stamp(a, o, 4, 0, 250)
    CR = TMP + 16
    a("s_cmp_eq_u32 s39, 0")
    a("s_cbranch_scc1 L1s_nocarry")
    GL = FA
    a("s_mov_b32 s70, 0")
    a.label("L1s_poll")
    for i in range(7):
        if i < 4:
            a(f"buffer_load_dwordx4 {vr(GL+4*i, 4)}, v3, s[48:51], s46 offen offset:{i*1024} sc1")
        else:
            if i == 4:
                a("s_add_u32 s47, s46, 4096")
            a(f"buffer_load_dwordx4 {vr(GL+4*i, 4)}, v3, s[48:51], s47 offen offset:{(i-4)*1024} sc1")
    a("s_waitcnt vmcnt(0)")
    a(f"v_mov_b32 v{CR+2}, 0"); a(f"v_mov_b32 v{CR+3}, 0")
    for i in range(7):
        a(f"v_cmp_ne_u32 vcc, s64, v{GL+4*i+1}")
        a(f"v_cmp_ne_u32 s[66:67], s64, v{GL+4*i+3}")
        a(f"v_mov_b32 v{CR}, v{CR+2}"); a(f"v_mov_b32 v{CR+1}, v{CR+3}")
        a("s_or_b64 vcc, vcc, s[66:67]")
        a("s_cbranch_scc1 L1s_retry")
        cfma(a, CR + 2, CR + 3, L256, L256 + 1, CR, CR + 1, GL + 4 * i, GL + 4 * i + 2)
        if i < 6:
            a(f"s_cmp_eq_u32 s39, {i+1}")
            a("s_cbranch_scc1 L1s_gotcarry")
    a("s_branch L1s_gotcarry")
    a.label("L1s_retry")
    a("s_sleep 2")
    a("s_add_u32 s70, s70, 1")
    a("s_cmp_lt_u32 s70, 0x40000")
    a("s_cbranch_scc1 L1s_poll")
    a.label("L1s_gotcarry")
    CY = vr(CR + 2, 2)
    a(f"v_pk_fma_f32 {vr(SEL, 2)}, {CY}, {vr(SEL+4, 2)}, {vr(SEL, 2)} op_sel_hi:[0,1,1]")
    a(f"v_pk_fma_f32 {vr(SEL+2, 2)}, {CY}, {vr(SEL+6, 2)}, {vr(SEL+2, 2)} op_sel_hi:[0,1,1]")
    a(f"v_pk_fma_f32 {vr(SEL, 2)}, {CY}, {vr(SEL+6, 2)}, {vr(SEL, 2)} op_sel:[1,0,0] op_sel_hi:[1,1,1] neg_lo:[1,0,0] neg_hi:[1,0,0]")
    a(f"v_pk_fma_f32 {vr(SEL+2, 2)}, {CY}, {vr(SEL+4, 2)}, {vr(SEL+2, 2)} op_sel:[1,0,0] op_sel_hi:[1,1,1]")
    a.label("L1s_nocarry")
    stamp(a, o, 5, 0, 250)
    TS = 272
    a(f"s_mul_i32 s47, s38, {64*TS}")
    a("v_and_b32 v1, 31, v0")
    a(f"v_mul_u32_u24 v1, {TS}, v1")
    a("v_lshrrev_b32 v2, 5, v0")
    a("v_lshl_add_u32 v1, v2, 7, v1")
    a("v_add_u32 v1, s47, v1")
    a("v_lshrrev_b32 v2, 4, v0")
    a("v_lshlrev_b32 v2, 3, v2")
    a("v_bfe_u32 v3, v0, 2, 2")
    a("v_add_u32 v2, v2, v3")
    a(f"v_mul_u32_u24 v2, {TS}, v2")
    a("v_and_b32 v3, 3, v0")
    a("v_lshl_add_u32 v2, v3, 3, v2")
    a("v_add_u32 v2, s47, v2")
    a("v_lshlrev_b32 v3, 4, v0")
    srd(a, 48, P_WS, HP_SIZE, HP_OFF)
    a("s_lshl_b32 s46, s40, 1")
    a("s_add_u32 s46, s46, s45")
    a("s_lshl_b32 s46, s46, 18")
    a("s_lshl_b32 s47, s39, 4")
    a("s_lshl_b32 s54, s44, 3")
    a("s_add_u32 s47, s47, s54")
    a("s_lshl_b32 s47, s47, 10")
    a("s_add_u32 s46, s46, s47")
    a("s_add_u32 s47, s46, 4096")
    a("s_add_u32 s54, s46, 131072")
    a("s_add_u32 s55, s47, 131072")
    pr, pi = SEL, SEL + 2
    PKD = FA
    for n in range(32):
        r, i = ure(n), uim(n)
        pk_lr(r, pr, r); pk_lr(i, pi, i)
        pk_li(r, pi, r, True); pk_li(i, pr, i, False)
        pr, pi = r, i
        if (n & 7) == 7:
            j = n >> 3
            st = PKD + (j & 1) * 16
            for c in range(2):
                sg = "-" if c else ""
                for par in range(2):
                    for e in range(4):
                        b = acc(j, c) + par
                        a(f"v_cvt_pk_bf16_f32 v{st+c*8+par*4+e}, {sg}v{b+4*e}, {sg}v{b+4*e+2}")
                    a(f"ds_write_b128 v1, {vr(st+c*8+par*4, 4)} offset:{c*32*TS + par*64 + j*16}")
    a("s_waitcnt lgkmcnt(0)")
    OUT = ACC
    for c in range(2):
        for mi in range(8):
            d = OUT + (c * 8 + mi) * 4
            a(f"ds_read_b64_tr_b16 {vr(d, 2)}, v2 offset:{c*32*TS + mi*32}")
            a(f"ds_read_b64_tr_b16 {vr(d+2, 2)}, v2 offset:{c*32*TS + 4*TS + mi*32}")
        for mi in range(8):
            d = OUT + (c * 8 + mi) * 4
            a(f"s_waitcnt lgkmcnt({min(15, 14-2*mi)})")
            so = (46, 47, 54, 55)[c * 2 + (mi >> 2)]
            a(f"buffer_store_dwordx4 {vr(d, 4)}, v3, s[48:51], s{so} offen offset:{(mi & 3)*1024} {o.h_store}")
    stamp(a, o, 6, 0, 250)
    if o.stamps:
        a("s_waitcnt vmcnt(0)")
        stamp(a, o, 7, 0, 250)
    a("s_endpgm")

def k1_loader(a, o):
    VXO = 4
    VWO = 12
    a("s_sub_u32 s38, s38, 4")
    srd(a, 48, P_X, 2048 * 1280)
    a("s_lshr_b32 s44, s38, 1")
    a("s_and_b32 s45, s38, 1")
    a("v_lshrrev_b32 v1, 3, v0")
    a("v_and_b32 v2, 7, v0")
    a("s_lshl_b32 s46, s39, 8")
    a("s_lshl_b32 s47, s38, 6")
    a("s_add_u32 s46, s46, s47")
    a("s_mul_i32 s46, s46, 1280")
    a("v_mul_u32_u24 v3, 1280, v1")
    a("v_add_u32 v3, s46, v3")
    a("v_lshrrev_b32 v17, 1, v1")
    a("v_xor_b32 v17, v17, v2")
    a("v_lshlrev_b32 v17, 4, v17")
    a("v_xor_b32 v18, 64, v17")
    a("v_add_u32 v17, v17, v3")
    a("v_add_u32 v18, v18, v3")
    a("s_cmp_eq_u32 s41, 1")
    a("s_cbranch_scc1 L1l_ssm")
    for ssm in (0, 1):
        if ssm:
            a.label("L1l_ssm")
        for i in range(8):
            bit = (i & 1) ^ ((i >> 2) & 1 if ssm else 0)
            a(f"v_add_u32 v{VXO+i}, {i*8*1280 - (i & 3)*1024}, v{17+bit}")
        a("s_cmp_eq_u32 s44, 0")
        if not ssm:
            nb = 5
            a(f"s_cselect_b32 s52, s{P_W1}, s{P_W3}")
            a(f"s_cselect_b32 s53, s{P_W1+1}, s{P_W3+1}")
            a(f"s_mov_b32 s54, {640*3456}")
            a("s_mov_b32 s55, 0x20000")
            a("s_mul_i32 s46, s45, 320")
            a("v_add_u32 v1, s46, v0")
            a("s_mul_i32 s47, s40, 160")
            for i in range(5):
                a(f"v_add_u32 v2, {64*i}, v1")
                a("v_mul_u32_u24 v3, 6554, v2")
                a("v_lshrrev_b32 v3, 16, v3")
                a("v_mul_u32_u24 v19, 10, v3")
                a("v_sub_u32 v2, v2, v19")
                a("v_mul_u32_u24 v3, 3456, v3")
                a("v_lshl_add_u32 v3, v2, 4, v3")
                a("v_add_u32 v3, s47, v3")
                a(f"v_subrev_u32 v{VWO+i}, {(i & 3)*1024}, v3")
            a(f"s_mul_i32 s56, s38, {F_XW}")
            a(f"s_add_u32 s56, s56, {F_XB}")
            a(f"s_mul_i32 s57, s44, {F_UP}")
            a("s_mul_i32 s46, s45, 5120")
            a("s_add_u32 s57, s57, s46")
            xslot, wslot, wstep = F_XSLOT, F_WSLOT, 64 * 3456
        else:
            nb = 4
            a(f"s_cselect_b32 s52, s{P_BRE}, s{P_BIM}")
            a(f"s_cselect_b32 s53, s{P_BRE+1}, s{P_BIM+1}")
            a(f"s_mov_b32 s54, {640*1280}")
            a("s_mov_b32 s55, 0x20000")
            a("s_lshl_b32 s46, s40, 6")
            a("s_lshl_b32 s47, s45, 5")
            a("s_add_u32 s46, s46, s47")
            a("s_lshl_b32 s47, s39, 8")
            a("s_sub_u32 s46, s46, s47")
            a("s_lshl_b32 s47, s38, 6")
            a("s_sub_u32 s46, s46, s47")
            a("s_mul_i32 s46, s46, 1280")
            for i in range(4):
                a(f"v_add_u32 v{VWO+i}, {i*8*1280 - i*1024}, v{17+(i & 1)}")
                a(f"v_add_u32 v{VWO+i}, s46, v{VWO+i}")
            a(f"s_mul_i32 s56, s44, {S_XW}")
            a("s_lshl_b32 s46, s45, 13")
            a("s_add_u32 s56, s56, s46")
            a(f"s_add_u32 s56, s56, {S_XB}")
            a("s_lshl_b32 s57, s38, 12")
            xslot, wslot, wstep = S_XSLOT, S_BSLOT, 128
        n = 8 + nb
        def issue(stage):
            slot = stage % 3
            a(f"s_mov_b32 s58, {stage*128}")
            a(f"s_mov_b32 s59, {stage*wstep}")
            a(f"s_add_u32 m0, s57, {slot*wslot}")
            a("s_nop 0")
            for i in range(4):
                a(f"buffer_load_dwordx4 v{VWO+i}, s[52:55], s59 offen offset:{i*1024} lds")
            if nb == 5:
                a(f"s_add_u32 m0, s57, {slot*wslot + 4096}")
                a("s_nop 0")
                a(f"buffer_load_dwordx4 v{VWO+4}, s[52:55], s59 offen lds")
            for hi in range(2):
                a(f"s_add_u32 m0, s56, {slot*xslot + hi*4096}")
                a("s_nop 0")
                for i in range(4):
                    a(f"buffer_load_dwordx4 v{VXO+hi*4+i}, s[48:51], s58 offen offset:{i*1024} lds")
        for st in range(3):
            issue(st)
        for s in range(8):
            a(f"s_waitcnt vmcnt({2*n if s == 0 else n})")
            a("s_barrier")
            if s >= 1:
                issue(s + 2)
        a(f"s_waitcnt vmcnt({n})")
        a("s_barrier")
        if not ssm:
            a("s_branch L1l_side")
    a.label("L1l_side")
    a("s_lshl_b32 s60, s2, 2")
    a("s_add_u32 s60, s60, s38")
    srd(a, 52, P_GW, 1280)
    a("v_lshrrev_b32 v1, 5, v0")
    a("v_and_b32 v2, 31, v0")
    a("v_lshlrev_b32 v2, 4, v2")
    a("s_mul_i32 s61, s60, 2560")
    a("v_mul_u32_u24 v1, 1280, v1")
    a("v_add_u32 v1, v1, v2")
    GX, GW_ = 20, 32
    for i in range(3):
        a(f"buffer_load_dwordx4 {vr(GX+4*i, 4)}, v1, s[48:51], s61 offen offset:{i*512}")
    for i in range(3):
        a(f"buffer_load_dwordx4 {vr(GW_+4*i, 4)}, v2, s[52:55], 0 offen offset:{i*512}")
    srd(a, 64, P_WS, W2_SIZE, W2_OFF)
    a("s_mul_i32 s62, s60, 6554")
    a("s_lshr_b32 s62, s62, 16")
    a("s_mul_i32 s63, s62, 10")
    a("s_sub_u32 s63, s60, s63")
    a("s_mul_i32 s68, s62, 40")
    a("s_lshl_b32 s69, s63, 2")
    a("s_add_u32 s68, s68, s69")
    a("s_lshl_b32 s68, s68, 10")
    R = 48
    a("s_cmp_ge_u32 s62, 40")
    a("s_cbranch_scc1 L1l_w2")
    a("s_and_b32 s69, s62, 1")
    a("s_cmp_eq_u32 s69, 0")
    a(f"s_cselect_b32 s72, s{P_CRE}, s{P_CIM}")
    a(f"s_cselect_b32 s73, s{P_CRE+1}, s{P_CIM+1}")
    a(f"s_mov_b32 s74, {640*1280}")
    a("s_mov_b32 s75, 0x20000")
    a("v_and_b32 v3, 15, v0")
    a("v_mul_u32_u24 v3, 1280, v3")
    a("v_lshrrev_b32 v4, 4, v0")
    a("v_lshl_add_u32 v3, v4, 4, v3")
    a("s_lshr_b32 s69, s62, 1")
    a("s_lshl_b32 s69, s69, 6")
    a(f"s_mul_i32 s70, s63, {64*1280}")
    a("s_add_u32 s69, s69, s70")
    for t in range(4):
        a(f"buffer_load_dwordx4 {vr(R+4*t, 4)}, v3, s[72:75], s69 offen")
        if t < 3:
            a(f"s_add_u32 s69, s69, {16*1280}")
    a("s_waitcnt vmcnt(10)")
    a("s_barrier")
    a("v_lshlrev_b32 v3, 4, v0")
    a("s_waitcnt vmcnt(0)")
    for t in range(4):
        a(f"buffer_store_dwordx4 {vr(R+4*t, 4)}, v3, s[64:67], s68 offen offset:{t*1024} {o.h_store}")
    a("s_branch L1l_g")
    a.label("L1l_w2")
    srd(a, 72, P_W2, 1728 * 1280)
    a("v_lshrrev_b32 v4, 4, v0")
    a(f"v_mul_u32_u24 v3, {8*1280}, v4")
    a("v_and_b32 v5, 15, v0")
    a("v_lshl_add_u32 v3, v5, 3, v3")
    a("s_sub_u32 s69, s62, 40")
    a(f"s_mul_i32 s69, s69, {32*1280}")
    a("s_lshl_b32 s70, s63, 7")
    a("s_add_u32 s69, s69, s70")
    a(f"s_add_u32 s70, s69, {4*1280}")
    for e in range(8):
        a(f"buffer_load_dwordx2 {vr(R+2*e, 2)}, v3, s[72:75], s{69 + (e >> 2)} offen offset:{(e & 3)*1280}")
    a("s_waitcnt vmcnt(14)")
    a("s_barrier")
    a("v_lshrrev_b32 v3, 2, v5")
    a("v_lshlrev_b32 v3, 10, v3")
    a("v_lshl_add_u32 v3, v4, 8, v3")
    a("v_and_b32 v5, 3, v5")
    a("v_lshl_add_u32 v3, v5, 6, v3")
    a("s_mov_b32 s70, 0x05040100")
    a("s_mov_b32 s71, 0x07060302")
    a("s_waitcnt vmcnt(0)")
    O = 64
    for t in range(4):
        for e in range(4):
            a(f"v_perm_b32 v{O+4*t+e}, v{R+4*e+2+(t >> 1)}, v{R+4*e+(t >> 1)}, s{70+(t & 1)}")
        a(f"buffer_store_dwordx4 {vr(O+4*t, 4)}, v3, s[64:67], s68 offen offset:{t*16} {o.h_store}")
    a.label("L1l_g")
    a("v_mov_b32 v6, 0")
    for i in range(12):
        x, w = GX + i, GW_ + i
        a(f"v_lshlrev_b32 v7, 16, v{x}")
        a(f"v_and_b32 v8, 0xffff0000, v{x}")
        a(f"v_lshlrev_b32 v9, 16, v{w}")
        a(f"v_and_b32 v10, 0xffff0000, v{w}")
        a("v_mul_f32 v7, v7, v9")
        a("v_mul_f32 v8, v8, v10")
        a("v_cvt_pk_bf16_f32 v7, v7, v8")
        a("v_lshlrev_b32 v8, 16, v7")
        a("v_and_b32 v7, 0xffff0000, v7")
        if i >= 8:
            if i == 8:
                a("v_and_b32 v11, 16, v0")
                a("v_cmp_eq_u32 vcc, 0, v11")
                a("s_nop 1")
            a("v_cndmask_b32 v8, 0, v8, vcc")
            a("v_cndmask_b32 v7, 0, v7, vcc")
        a("v_add_f32 v6, v6, v8")
        a("v_add_f32 v6, v6, v7")
    for off in (0x041F, 0x081F, 0x101F, 0x201F, 0x401F):
        a(f"ds_swizzle_b32 v7, v6 offset:{off:#x}")
        a("s_waitcnt lgkmcnt(0)")
        a("v_add_f32 v6, v6, v7")
    a("v_cvt_pk_bf16_f32 v6, v6, v6")
    a("v_lshlrev_b32 v6, 16, v6")
    a(f"v_mul_f32 v6, {NLOG2E:#x}, v6")
    a("v_exp_f32 v6, v6")
    a("s_nop 0")
    a("v_add_f32 v6, 1.0, v6")
    a("v_rcp_f32 v6, v6")
    a("s_nop 0")
    a("v_cvt_pk_bf16_f32 v6, v6, v6")
    a("v_lshlrev_b32 v6, 16, v6")
    a("v_sub_f32 v7, 1.0, v6")
    a("v_cvt_pk_bf16_f32 v7, v7, v7")
    a("v_lshlrev_b32 v7, 16, v7")
    srd(a, 72, P_WS, G_SIZE, G_OFF)
    a("v_lshrrev_b32 v1, 5, v0")
    a("v_lshlrev_b32 v1, 3, v1")
    a("s_lshl_b32 s61, s60, 4")
    a("s_mov_b32 exec_lo, 1")
    a("s_mov_b32 exec_hi, 1")
    a(f"buffer_store_dwordx2 v[6:7], v1, s[72:75], s61 offen {o.h_store}")
    a("s_mov_b64 exec, -1")
    stamp(a, o, 1, 0, 250)

K2_LDS = 61440
def k2(o):
    D = o.k2_depth
    a = Asm()
    a.raw(".p2align 8")
    a.raw(".type k2_kernel,@function")
    a.label("k2_kernel")
    a("s_cmp_ge_u32 s2, 256")
    a("s_cbranch_scc1 L2_end")
    load_ptrs(a)
    a("v_lshrrev_b32 v1, 6, v0")
    a("v_and_b32 v0, 63, v0")
    a("v_readfirstlane_b32 s38, v1")
    a("s_and_b32 s42, s2, 7")
    a("s_lshr_b32 s43, s2, 3")
    if o.k2_map == "4x2":
        a("s_lshr_b32 s39, s42, 1")
        a("s_lshl_b32 s39, s39, 3")
        a("s_and_b32 s44, s43, 7")
        a("s_add_u32 s39, s39, s44")
        a("s_and_b32 s40, s42, 1")
        a("s_lshl_b32 s40, s40, 2")
        a("s_lshr_b32 s44, s43, 3")
        a("s_add_u32 s40, s40, s44")
    elif o.k2_map == "8x1":
        a("s_lshl_b32 s39, s42, 2")
        a("s_and_b32 s44, s43, 3")
        a("s_add_u32 s39, s39, s44")
        a("s_lshr_b32 s40, s43, 2")
    elif o.k2_map == "2x4":
        a("s_and_b32 s39, s42, 1")
        a("s_lshl_b32 s39, s39, 4")
        a("s_and_b32 s44, s43, 15")
        a("s_add_u32 s39, s39, s44")
        a("s_lshr_b32 s40, s42, 1")
        a("s_lshl_b32 s40, s40, 1")
        a("s_lshr_b32 s44, s43, 4")
        a("s_add_u32 s40, s40, s44")
    VH = 4
    VW = 8
    a("v_lshlrev_b32 v8, 4, v0")
    a("v_add_u32 v9, 4096, v8")
    for mi in range(4):
        a(f"s_add_u32 s44, s38, {mi}")
        a("s_and_b32 s44, s44, 3")
        a(f"s_lshl_b32 s{72+mi}, s44, 10")
        a(f"v_add_u32 v{VH+mi}, s{72+mi}, v8")
    a("s_waitcnt lgkmcnt(0)")
    stamp_setup(a, o, 1, 38)
    stamp(a, o, 0, 1, 250)
    srd(a, 48, P_WS, HP_SIZE, HP_OFF)
    srd(a, 52, P_WS, W2_SIZE, W2_OFF)
    a(f"s_mul_i32 s56, s38, {10*131072}")
    a("s_lshl_b32 s44, s39, 12")
    a("s_add_u32 s56, s56, s44")
    a(f"s_mul_i32 s57, s38, {10*40960}")
    a("s_mul_i32 s45, s40, 5120")
    a("s_add_u32 s57, s57, s45")
    a(f"s_mul_i32 s58, s38, {14*131072}")
    a("s_add_u32 s58, s58, s44")
    a(f"s_add_u32 s58, s58, {40*131072}")
    a(f"s_mul_i32 s59, s38, {14*40960}")
    a("s_add_u32 s59, s59, s45")
    a(f"s_add_u32 s59, s59, {40*40960}")
    NS = 24
    ACC = 64
    acc = lambda st, dt, mi: ACC + st * 80 + (dt * 4 + mi) * 4
    fh = lambda slot, mi: slot * 36 + mi * 4
    fw = lambda slot, dt: slot * 36 + 16 + dt * 4
    def loads(n):
        slot = n % D
        sh, sw = (56, 57) if n < 10 else (58, 59)
        r = []
        for i in range(5):
            r.append(f"buffer_load_dwordx4 {vr(fw(slot, i), 4, 'a')}, v{VW + (i >> 2)}, s[52:55], s{sw} offen offset:{(i & 3)*1024}")
            if i < 4:
                r.append(f"buffer_load_dwordx4 {vr(fh(slot, i), 4, 'a')}, v{VH+i}, s[48:51], s{sh} offen")
        r.append(f"s_add_u32 s{sh}, s{sh}, 131072")
        r.append(f"s_add_u32 s{sw}, s{sw}, 40960")
        return r
    for n in range(D - 1):
        for r in loads(n):
            a(r)
    srd(a, 60, P_WS, G_SIZE, G_OFF)
    srd(a, 64, P_X, 2048 * 1280)
    srd(a, 68, P_DSK, 1280)
    G = 12
    XS = 20
    DS = 30
    a("v_and_b32 v1, 15, v0")
    a("v_lshlrev_b32 v2, 3, v1")
    a("s_lshl_b32 s44, s39, 9")
    for mi in range(4):
        a(f"s_lshr_b32 s45, s{72+mi}, 3")
        a("s_add_u32 s45, s45, s44")
        a(f"buffer_load_dwordx2 {vr(G+2*mi, 2)}, v2, s[60:63], s45 offen")
    a("v_lshrrev_b32 v2, 4, v0")
    a("v_lshlrev_b32 v3, 3, v2")
    a("v_mul_u32_u24 v10, 1280, v1")
    a("v_add_u32 v10, v10, v3")
    a("s_lshl_b32 s44, s39, 6")
    a("s_lshl_b32 s45, s38, 4")
    a("s_add_u32 s44, s44, s45")
    a("s_mul_i32 s46, s44, 1280")
    a("s_mul_i32 s45, s40, 160")
    a("s_add_u32 s46, s46, s45")
    for dt in range(5):
        a(f"buffer_load_dwordx2 {vr(XS+2*dt, 2)}, v10, s[64:67], s46 offen offset:{dt*32}")
    for dt in range(5):
        a(f"buffer_load_dwordx2 {vr(DS+2*dt, 2)}, v3, s[68:71], s45 offen offset:{dt*32}")
    NE = 14
    srd(a, 60 + 16, P_OUT, 2048 * 2560)
    a("v_mul_u32_u24 v11, 2560, v1")
    a("v_lshl_add_u32 v11, v2, 4, v11")
    a("s_lshl_b32 s47, s46, 1")
    issued = D - 1
    for n in range(NS):
        slot = n % D
        st = 0 if n < 10 else 1
        younger = (issued - 1 - n) * 9 + (NE if n <= D - 2 else 0)
        a(f"s_waitcnt vmcnt({min(63, younger)})")
        if n == 0:
            stamp(a, o, 1, 1, 250)
        nxt = loads(issued) if issued < NS else []
        if issued < NS:
            issued += 1
        k = 0
        first = n == 0 or n == 10
        for dt in range(5):
            for mi in range(4):
                c = "0" if first else vr(acc(st, dt, mi), 4)
                a(f"v_mfma_f32_16x16x32_bf16 {vr(acc(st, dt, mi), 4)}, {vr(fw(slot, dt), 4, 'a')}, {vr(fh(slot, mi), 4, 'a')}, {c}")
                if (dt * 4 + mi) % 2 == 0 and k < len(nxt):
                    a(nxt[k]); k += 1
                if n == 12:
                    for p in range(2):
                        r = acc(0, dt, mi) + 2 * p
                        a(f"v_pk_mul_f32 {vr(r, 2)}, {vr(G+2*mi, 2)}, {vr(r, 2)} op_sel_hi:[0,1]")
        while k < len(nxt):
            a(nxt[k]); k += 1
    stamp(a, o, 2, 1, 250)
    for dt in range(5):
        x, d = XS + 2 * dt, DS + 2 * dt
        for p in range(2):
            a(f"v_lshlrev_b32 v40, 16, v{x+p}")
            a(f"v_and_b32 v41, 0xffff0000, v{x+p}")
            a(f"v_lshlrev_b32 v42, 16, v{d+p}")
            a(f"v_and_b32 v43, 0xffff0000, v{d+p}")
            a("v_pk_mul_f32 v[40:41], v[40:41], v[42:43]")
            a("v_cvt_pk_bf16_f32 v41, v40, v41")
            a("v_lshlrev_b32 v40, 16, v41")
            a("v_and_b32 v41, 0xffff0000, v41")
            r = acc(0, dt, 0) + 2 * p
            a(f"v_pk_fma_f32 {vr(r, 2)}, {vr(G, 2)}, v[40:41], {vr(r, 2)} op_sel_hi:[0,1,1]")
    for mi in (1, 2, 3):
        a(f"s_mul_i32 s44, s{72+mi}, 15")
        a(f"s_add_u32 s44, s44, {(mi-1)*5120}")
        a(f"v_add_u32 v{VH+mi}, s44, v8")
    a("s_mul_i32 s44, s72, 15")
    a(f"v_add_u32 v{VH}, s44, v8")
    for mi in (1, 2, 3, 0):
        for dt in range(5):
            for p in range(2):
                r0 = acc(0, dt, mi) + 2 * p; r1 = acc(1, dt, mi) + 2 * p
                a(f"v_pk_fma_f32 {vr(r0, 2)}, {vr(G+2*mi, 2)}, {vr(r1, 2)}, {vr(r0, 2)} op_sel:[1,0,0] op_sel_hi:[1,1,1]")
            if mi:
                a(f"ds_write_b128 v{VH+mi}, {vr(acc(0, dt, mi), 4)} offset:{dt*1024}")
    a("s_waitcnt lgkmcnt(0)")
    a("s_barrier")
    RD = ACC + 80
    for dt in range(5):
        for s in range(3):
            a(f"ds_read_b128 {vr(RD+(dt*3+s)*4, 4)}, v{VH} offset:{s*5120+dt*1024}")
    for dt in range(5):
        a(f"s_waitcnt lgkmcnt({12-3*dt})")
        for s in range(3):
            for p in range(2):
                r = acc(0, dt, 0) + 2 * p
                a(f"v_pk_add_f32 {vr(r, 2)}, {vr(r, 2)}, {vr(RD+(dt*3+s)*4+2*p, 2)}")
        a(f"buffer_store_dwordx4 {vr(acc(0, dt, 0), 4)}, v11, s[76:79], s47 offen offset:{dt*64}")
    stamp(a, o, 3, 1, 250)
    if o.stamps:
        a("s_waitcnt vmcnt(0)")
        stamp(a, o, 4, 1, 250)
    a.label("L2_end")
    a("s_endpgm")
    return a

def kd(name, vgpr, accum):
    return f""".amdhsa_kernel {name}
  .amdhsa_next_free_vgpr {vgpr}
  .amdhsa_next_free_sgpr 102
  .amdhsa_accum_offset {accum}
  .amdhsa_group_segment_fixed_size 0
  .amdhsa_kernarg_size 136
  .amdhsa_user_sgpr_count 2
  .amdhsa_user_sgpr_kernarg_segment_ptr 1
  .amdhsa_system_sgpr_workgroup_id_x 1
.end_amdhsa_kernel
"""

def generate(o):
    ref = open(f"cdna_kernels/{NAME}.s.ref").read().splitlines()
    head = [l for l in ref if l.startswith(";") and "@launch" not in l and "Override launch" not in l and "grid=ceil" not in l]
    out = "\n".join(head) + "\n"
    out += f"; @launch kernel=k1_kernel grid=(256,1,1) block=(512,1,1) lds={K1_LDS}\n"
    out += f"; @launch kernel=k2_kernel grid=(256,1,1) block=(256,1,1) lds={K2_LDS}\n"
    out += '.amdgcn_target "amdgcn-amd-amdhsa--gfx950"\n.text\n.globl k1_kernel\n.globl k2_kernel\n'
    out += k1(o).text() + k2(o).text()
    out += '.section .rodata,"a"\n.p2align 6\n' + kd("k1_kernel", 256, 256) + ".p2align 6\n" + kd("k2_kernel", 512, 256)
    return out

if __name__ == "__main__":
    o = Opt()
    path = f"cdna_kernels/{NAME}.s"
    for arg in sys.argv[1:]:
        k, v = arg.split("=", 1)
        if k == "out":
            path = v
        else:
            cur = getattr(o, k)
            setattr(o, k, type(cur)(int(v)) if isinstance(cur, (bool, int)) else v)
    open(path, "w").write(generate(o))
    print("wrote", path)
```

```python
import sys

NAME = "gated_mix__ssm_conv_s5__glu_gated_swiglu__prompt"

class Opt:
    stamps = 0
    map1 = "2x4"
    map2 = "4x2"
    out_store = ""
    poll_sleep = 4
    warm = True
    hprio = 2
    hst = "sc1"
    hld = "sc1"
    throttle = 0
    early_w = False
    cuts_l = (0, 15, 33, 43)
    cuts_h = (5, 25, 43, 53)

HP_OFF  = 0
HP_SIZE = 94 * 128 * 1024
W2_OFF  = 0xC00000
W2_SIZE = 94 * 40 * 1024
HK = 4096
HT = 94 * HK
WK = 5120
WT = 94 * WK
G_OFF   = 0x1000000
G_SIZE  = 2048 * 8
AGG_OFF = 0x1010000
AGG_SIZE = 80 * 1024
FH_OFF  = 0x1030000
FH_SIZE = 32 * 256
FW_OFF  = 0x1034000
FW_SIZE = 1024
ST_OFF  = 0x1100000
ST_SIZE = 0x100000

LOG2E = 0x3fb8aa3b
NLOG2E = 0xbfb8aa3b
SPIN_MAX = 0x40000

class Asm:
    def __init__(self):
        self.l = []
    def __call__(self, s):
        self.l.append("    " + s)
    def label(self, s):
        self.l.append(s + ":")
    def c(self, s):
        self.l.append("    ; " + s)
    def raw(self, s):
        self.l.append(s)
    def text(self):
        return "\n".join(self.l) + "\n"
    _uid = 0
    def uid(self):
        self._uid += 1
        return self._uid

class VM:
    def __init__(self, a):
        self.a = a; self.q = []
    def op(self, ins, tag=None):
        self.a(ins); self.q.append(tag)
    def wait(self, *tags):
        last = max(i for i, t in enumerate(self.q) if t in tags)
        n = len(self.q) - 1 - last
        assert n <= 63, n
        self.a(f"s_waitcnt vmcnt({n})")
    def drain(self):
        self.a("s_waitcnt vmcnt(0)"); self.q = []

def vr(b, n=1, p="v"):
    return f"{p}{b}" if n == 1 else f"{p}[{b}:{b+n-1}]"

def srd(a, d, base, size, off=0):
    if off:
        a(f"s_add_u32 s{d}, s{base}, {off:#x}")
        a(f"s_addc_u32 s{d+1}, s{base+1}, 0")
    else:
        a(f"s_mov_b32 s{d}, s{base}")
        a(f"s_mov_b32 s{d+1}, s{base+1}")
    a(f"s_mov_b32 s{d+2}, {size:#x}")
    a(f"s_mov_b32 s{d+3}, 0x20000")

P_X, P_LRE, P_LIM, P_BRE, P_BIM, P_CRE, P_CIM, P_LDT = 4, 6, 8, 10, 12, 14, 16, 18
P_DSK, P_BX, P_W1, P_W3, P_W2, P_GW, P_OUT, P_DBG, P_WS = 20, 22, 24, 26, 28, 30, 32, 34, 36

def stamp(a, o, slot):
    if not o.stamps or (8 <= slot < 32 and o.stamps < 2):
        return
    a("s_memrealtime s[92:93]")
    a("s_waitcnt lgkmcnt(0)")
    a(f"v_writelane_b32 v254, s92, {slot}")
def stamp_dyn(a, o, slot, sreg, mul):
    if not o.stamps:
        return
    a("s_memrealtime s[92:93]")
    a("s_waitcnt lgkmcnt(0)")
    a(f"s_mul_i32 s93, s{sreg}, {mul}")
    a(f"s_add_u32 s93, s93, {slot}")
    a("s_mov_b32 m0, s93")
    a("v_writelane_b32 v254, s92, m0")
def stamp_clk(a, o, slot):
    if not o.stamps:
        return
    a("s_memtime s[92:93]")
    a("s_waitcnt lgkmcnt(0)")
    a(f"v_writelane_b32 v254, s92, {slot}")
def stamp_setup(a, o):
    if not o.stamps:
        return
    a("v_mov_b32 v254, 0")
    a("s_lshl_b32 s91, s2, 3")
    a("s_add_u32 s91, s91, s38")
    a("s_lshl_b32 s91, s91, 8")
    a("v_lshlrev_b32 v255, 2, v0")
    stamp_clk(a, o, 62)
def stamp_flush(a, o):
    if not o.stamps:
        return
    a("s_waitcnt vmcnt(0)")
    stamp(a, o, 61)
    stamp_clk(a, o, 63)
    srd(a, 96, P_WS, ST_SIZE, ST_OFF)
    a("buffer_store_dword v254, v255, s[96:99], s91 offen")

LDS_BYTES = 163840
F_UP = 10368
F_XO = 20736
F_SLOT = F_XO + 32768
S_XO = 16384
S_SLOT = S_XO + 32768
S_DUMMY = 3 * S_SLOT
NONCE_LDS = 163832
P2W = 0
S_TR = 122880
S_AGG = 159744
slot_of = lambda stage: (stage + 2) % 3

def kernel(o):
    a = Asm()
    a.raw(".p2align 8")
    a.raw(f".type {NAME}_kernel,@function")
    a.label(f"{NAME}_kernel")
    a("s_cmp_ge_u32 s2, 256")
    a("s_cbranch_scc1 L_end")
    a("s_load_dwordx16 s[4:19], s[0:1], 0")
    a("s_load_dwordx16 s[20:35], s[0:1], 64")
    a("s_load_dwordx2 s[36:37], s[0:1], 128")
    a("v_lshrrev_b32 v1, 6, v0")
    a("v_and_b32 v0, 63, v0")
    a("v_readfirstlane_b32 s38, v1")
    a("s_and_b32 s42, s2, 7")
    a("s_lshr_b32 s43, s2, 3")
    if o.map1 == "2x4":
        a("s_and_b32 s39, s42, 1")
        a("s_lshl_b32 s39, s39, 2")
        a("s_and_b32 s44, s43, 3")
        a("s_add_u32 s39, s39, s44")
        a("s_lshr_b32 s48, s42, 1")
        a("s_lshr_b32 s49, s43, 2")
        a("s_lshr_b32 s44, s48, 1")
        a("s_sub_u32 s44, 6, s44")
        a("s_max_u32 s45, s48, 2")
        a("s_sub_u32 s45, s45, 2")
        a("s_mul_i32 s46, s48, 6")
        a("s_sub_u32 s46, s46, s45")
        a("s_add_u32 s46, s46, s49")
        a("s_lshl_b32 s47, s48, 1")
        a("s_add_u32 s47, s47, s45")
        a("s_add_u32 s47, s47, s49")
        a("s_sub_u32 s47, s47, s44")
        a("s_cmp_ge_u32 s49, s44")
        a("s_cselect_b32 s40, s47, s46")
        a("s_cselect_b32 s41, 1, 0")
    elif o.map1 == "8x1":
        a("s_mov_b32 s39, s42")
        a("s_sub_u32 s47, s43, 22")
        a("s_cmp_ge_u32 s43, 22")
        a("s_cselect_b32 s40, s47, s43")
        a("s_cselect_b32 s41, 1, 0")
    if o.map2 == "4x2":
        a("s_lshr_b32 s44, s42, 1")
        a("s_lshl_b32 s44, s44, 3")
        a("s_and_b32 s45, s43, 7")
        a("s_and_b32 s46, s42, 1")
        a("s_lshl_b32 s46, s46, 2")
        a("s_lshr_b32 s47, s43, 3")
        a("s_add_u32 s42, s44, s45")
        a("s_add_u32 s43, s46, s47")
    elif o.map2 == "8x1":
        a("s_lshl_b32 s42, s42, 2")
        a("s_and_b32 s44, s43, 3")
        a("s_add_u32 s42, s42, s44")
        a("s_lshr_b32 s43, s43, 2")
    a("s_and_b32 s90, s38, 3")
    a("s_waitcnt lgkmcnt(0)")
    stamp_setup(a, o)
    stamp(a, o, 0)
    a("s_cmp_ge_u32 s38, 4")
    a("s_cbranch_scc1 L_loader")
    warm_setup(a, o)
    warm_skip(a, o, 1)
    warm_stage_any(a, o, 2)
    a("s_cmp_eq_u32 s41, 1")
    a("s_cbranch_scc1 L_ssm")
    p1_ffn(a, o)
    a.label("L_p2c")
    p2(a, o, False)
    a.label("L_ssm")
    p1_ssm(a, o)
    a.label("L_loader")
    p1_loader(a, o)
    p2(a, o, True)
    a.label("L_end")
    a("s_endpgm")
    return a

def warm_setup(a, o):
    if not o.warm:
        return
    a("s_cmp_ge_u32 s90, 2")
    a(f"s_cbranch_scc1 Lw_xb{a.uid()}")
    u = a._uid
    a("s_and_b32 s44, s2, 1")
    a("s_cmp_eq_u32 s44, 0")
    a(f"s_cselect_b32 s94, s{P_W1}, s{P_W3}")
    a(f"s_cselect_b32 s95, s{P_W1+1}, s{P_W3+1}")
    a("s_lshr_b32 s44, s2, 1")
    a("s_mul_i32 s44, s44, 1728")
    a(f"s_mul_i32 s45, s90, {13*64}")
    a("s_add_u32 s44, s44, s45")
    a(f"s_mov_b32 s88, {64*3456}")
    a(f"s_branch Lw_set{u}")
    a.label(f"Lw_xb{u}")
    a("s_cmp_lt_u32 s2, 128")
    a(f"s_cselect_b32 s94, s{P_BRE}, s{P_BIM}")
    a(f"s_cselect_b32 s95, s{P_BRE+1}, s{P_BIM+1}")
    a("s_and_b32 s44, s2, 127")
    a(f"s_mul_i32 s44, s44, {5*1280}")
    a(f"s_mul_i32 s45, s2, {8*1280}")
    a("s_cmp_eq_u32 s90, 2")
    a(f"s_cselect_b32 s94, s{P_X}, s94")
    a(f"s_cselect_b32 s95, s{P_X+1}, s95")
    a("s_cselect_b32 s44, s45, s44")
    a("s_movk_i32 s88, 128")
    a.label(f"Lw_set{u}")
    a("s_add_u32 s94, s94, s44")
    a("s_addc_u32 s95, s95, 0")

def warm_skip(a, o, n):
    if not o.warm:
        return
    a(f"s_mul_i32 s44, s88, {n}")
    a("s_add_u32 s94, s94, s44")
    a("s_addc_u32 s95, s95, 0")

def warm_ops(o, kind):
    if not o.warm:
        return []
    if kind == "w":
        offs = [i * 64 for i in range(14)]
    else:
        offs = [r * 1280 + h * 64 for r in range(8 if kind == "x" else 5) for h in range(2)]
    return [f"s_load_dword s89, s[94:95], {x}" for x in offs] + ["s_add_u32 s94, s94, s88", "s_addc_u32 s95, s95, 0"]

def warm_stage_any(a, o, nst):
    if not o.warm:
        return
    u = a.uid()
    a("s_cmp_ge_u32 s90, 2")
    a(f"s_cbranch_scc1 Lv_xb{u}")
    for _ in range(nst):
        for i in warm_ops(o, "w"): a(i)
    a(f"s_branch Lv_e{u}")
    a.label(f"Lv_xb{u}")
    warm_stage_xb(a, o, nst)
    a.label(f"Lv_e{u}")

def warm_stage_xb(a, o, nst):
    if not o.warm:
        return
    for _ in range(nst):
        u = a.uid()
        ops = warm_ops(o, "x")
        for i in ops[:10]: a(i)
        a("s_cmp_eq_u32 s90, 3")
        a(f"s_cbranch_scc1 Lv_b{u}")
        for i in ops[10:16]: a(i)
        a.label(f"Lv_b{u}")
        for i in ops[16:]: a(i)

def loop_stamp_flush(a, o):
    if o.stamps:
        a("s_add_u32 m0, s52, 8")
        a("v_writelane_b32 v254, s94, m0")
        a("s_add_u32 m0, s52, 20")
        a("v_writelane_b32 v254, s92, m0")

def ring_advance(a, o, stride_sreg, stride, vregs):
    a("s_add_u32 s52, s52, 1")
    a("s_add_u32 s53, s53, 1")
    a("s_cmp_eq_u32 s53, 3")
    a(f"s_cselect_b32 s54, {-2*stride & 0xffffffff:#x}, s{stride_sreg}")
    a("s_cselect_b32 s53, 0, s53")
    for v in vregs:
        a(f"v_add_u32 v{v}, s54, v{v}")
    if o.stamps:
        a("s_memrealtime s[94:95]")
    a("s_barrier")
    if o.stamps:
        a("s_memrealtime s[92:93]")

C_WR = 16; C_ACC = 96; C_H = 176; C_WL = 224
C_RSTEPS = (0, 1, 8, 9)
def c_wsetup(a):
    srd(a, 52, P_WS, W2_SIZE, W2_OFF)
    a("s_mul_i32 s74, s90, 10")
    a("s_add_u32 s74, s74, 54")
    a(f"s_mul_i32 s76, s74, {WK}")
    a(f"s_mul_i32 s77, s43, {WT}")
    a("s_add_u32 s76, s76, s77")
    a("s_add_u32 s77, s76, 4096")
    a("v_lshlrev_b32 v12, 4, v0")
def c_wload(a, k):
    for i in range(5):
        a(f"buffer_load_dwordx4 {vr(C_WR + k*20 + i*4, 4)}, v12, s[52:55], s{76 + (i >> 2)} offen offset:{(i & 3)*1024} sc1")
    if k < 3:
        d = (C_RSTEPS[k+1] - C_RSTEPS[k]) * WK
        a(f"s_add_u32 s76, s76, {d}")
        a(f"s_add_u32 s77, s77, {d}")

def p1_ffn(a, o):
    ACC = 16; FA = 176; FB = 216; VX = 4; VW = 8; VN = 10
    acc = lambda j, mi: ACC + (j * 2 + mi) * 16
    fa = lambda b, j: FA + b * 20 + j * 4
    fb = lambda b, mi: FB + b * 8 + mi * 4
    s0 = slot_of(0) * F_SLOT
    a.c("FFN compute wave: D[f][m] = W^T X^T")
    a("v_and_b32 v1, 31, v0")
    a("v_lshrrev_b32 v2, 5, v0")
    a("v_bfe_u32 v3, v0, 1, 3")
    a("v_xor_b32 v3, v3, v2")
    a("v_lshlrev_b32 v3, 4, v3")
    a("v_lshl_add_u32 v3, v1, 7, v3")
    a("s_lshl_b32 s44, s38, 13")
    a(f"s_add_u32 s44, s44, {s0 + F_XO}")
    a(f"v_add_u32 v{VX}, s44, v3")
    for sub in range(1, 4):
        a(f"v_xor_b32 v{VX+sub}, {sub*32}, v{VX}")
    a("v_bfe_u32 v1, v0, 4, 1")
    a(f"v_mul_u32_u24 v1, {F_UP}, v1")
    a("v_lshlrev_b32 v2, 3, v2")
    a("v_bfe_u32 v3, v0, 2, 2")
    a("v_add_u32 v2, v2, v3")
    a("v_mul_u32_u24 v2, 160, v2")
    a("v_add_u32 v1, v1, v2")
    a("v_and_b32 v2, 1, v0")
    a("v_lshlrev_b32 v2, 4, v2")
    a("v_add_u32 v1, v1, v2")
    a("v_bfe_u32 v2, v0, 1, 1")
    a("v_lshlrev_b32 v2, 3, v2")
    a("v_add_u32 v1, v1, v2")
    a(f"v_add_u32 v{VW}, {s0}, v1")
    a(f"v_mov_b32 v{VN+1}, {NONCE_LDS}")
    for r in range(ACC, ACC + 160):
        a(f"v_mov_b32 v{r}, 0")
    srd(a, 48, P_WS, HP_SIZE, HP_OFF)
    a("v_bfe_u32 v1, v0, 4, 1")
    a("v_lshlrev_b32 v1, 10, v1")
    a("v_lshrrev_b32 v2, 5, v0")
    a("v_lshlrev_b32 v2, 8, v2")
    a("v_and_b32 v3, 15, v0")
    a("v_lshlrev_b32 v3, 4, v3")
    a("v_add3_u32 v9, v1, v2, v3")
    a("s_mov_b32 s52, 0")
    a(f"s_mov_b32 s53, {slot_of(0)}")
    a(f"s_mov_b32 s55, {F_SLOT}")

    def reads(buf, sub):
        r = []
        for mi in range(2):
            r.append(f"ds_read_b128 {vr(fb(buf, mi), 4)}, v{VX+sub} offset:{mi*4096}")
        for j in range(5):
            for half in range(2):
                r.append(f"ds_read_b64_tr_b16 {vr(fa(buf, j)+2*half, 2)}, v{VW} offset:{sub*2560 + half*640 + j*32}")
        return r
    a("s_barrier")
    stamp_clk(a, o, 58); stamp(a, o, 1)
    if o.stamps:
        a("s_mov_b32 s94, s92")
    for r in reads(0, 0):
        a(r)
    a.label("Lf_loop")
    for sub in range(4):
        buf = sub & 1
        nxt = reads(buf ^ 1, (sub + 1) & 3)
        a("s_waitcnt lgkmcnt(0)")
        if sub == 0:
            loop_stamp_flush(a, o)
        mf = [(j, mi) for j in range(5) for mi in range(2)]
        for n, (j, mi) in enumerate(mf):
            a(f"v_mfma_f32_32x32x16_bf16 {vr(acc(j, mi), 16)}, {vr(fa(buf, j), 4)}, {vr(fb(buf, mi), 4)}, {vr(acc(j, mi), 16)}")
            if n == 0 and sub == 3:
                ring_advance(a, o, 55, F_SLOT, [VX, VX+1, VX+2, VX+3, VW])
            if n < 6:
                a(nxt[2 * n]); a(nxt[2 * n + 1])
            if n == 6 and sub == 0:
                a(f"ds_read_b32 v{VN}, v{VN+1}")
    a("s_cmp_lt_u32 s52, 10")
    a("s_cbranch_scc1 Lf_loop")
    a("s_waitcnt lgkmcnt(0)")
    loop_stamp_flush(a, o)
    stamp(a, o, 2); stamp_clk(a, o, 59)
    a(f"v_readfirstlane_b32 s64, v{VN}")
    a(f"s_mov_b32 s56, {NLOG2E:#x}")
    a(f"s_mov_b32 s57, {NLOG2E:#x}")
    a("s_mul_i32 s58, s40, 5")
    a("s_lshl_b32 s59, s39, 2")
    a("s_add_u32 s59, s59, s38")
    a(f"s_mul_i32 s59, s59, {HT}")
    a(f"s_add_u32 s59, s59, {40*HK}")
    c_wsetup(a)
    T = FA
    for j in range(5):
        for k in {1: (0,), 2: (1, 2), 3: (3,)}.get(j, ()) if o.early_w else ():
            c_wload(a, k)
        if j == 3:
            a("s_cmp_eq_u32 s40, 21")
            a("s_cbranch_scc1 Lf_done")
        a(f"s_add_u32 s60, s58, {j}")
        a("s_lshr_b32 s61, s60, 1")
        a("s_lshl_b32 s61, s61, 12")
        a("s_and_b32 s60, s60, 1")
        a("s_lshl_b32 s60, s60, 9")
        a("s_add_u32 s61, s61, s60")
        a("s_add_u32 s62, s61, s59")
        for mi in range(2):
            g = acc(j, mi); u = g + 8
            t = T + ((j * 2 + mi) & 1) * 12
            for p in range(4):
                a(f"v_pk_mul_f32 {vr(t+2*p, 2)}, {vr(g+2*p, 2)}, s[56:57]")
            for p in range(8):
                a(f"v_exp_f32 v{t+p}, v{t+p}")
            for p in range(4):
                a(f"v_pk_mul_f32 {vr(g+2*p, 2)}, {vr(g+2*p, 2)}, {vr(u+2*p, 2)}")
            for p in range(4):
                a(f"v_pk_add_f32 {vr(t+2*p, 2)}, {vr(t+2*p, 2)}, 1.0 op_sel_hi:[1,0]")
            for p in range(8):
                a(f"v_rcp_f32 v{t+p}, v{t+p}")
            a("s_nop 0")
            for p in range(4):
                a(f"v_pk_mul_f32 {vr(g+2*p, 2)}, {vr(g+2*p, 2)}, {vr(t+2*p, 2)}")
            for p in range(4):
                a(f"v_cvt_pk_bf16_f32 v{t+8+p}, v{g+2*p}, v{g+2*p+1}")
            a(f"buffer_store_dwordx4 {vr(t+8, 4)}, v9, s[48:51], s62 offen offset:{mi*2048} {o.hst}")
    a.label("Lf_done")
    stamp(a, o, 3)
    a("s_lshl_b32 s65, s39, 2")
    a("s_add_u32 s65, s65, s38")
    a("s_lshl_b32 s65, s65, 8")
    a("s_lshl_b32 s66, s40, 2")
    a("s_add_u32 s65, s65, s66")
    a("s_mov_b64 s[66:67], 1")
    a("v_mov_b32 v2, 0")

def cmul(a, dr, di, ar, ai, br, bi, t):
    a(f"v_mul_f32 v{t}, v{ar}, v{br}")
    a(f"v_mul_f32 v{t+1}, v{ar}, v{bi}")
    a(f"v_fma_f32 v{t}, -v{ai}, v{bi}, v{t}")
    a(f"v_fma_f32 v{di}, v{ai}, v{br}, v{t+1}")
    a(f"v_mov_b32 v{dr}, v{t}")

def cfma(a, dr, di, ar, ai, br, bi, cr, ci):
    a(f"v_fma_f32 v{dr}, v{ar}, v{br}, v{cr}")
    a(f"v_fma_f32 v{di}, v{ar}, v{bi}, v{ci}")
    a(f"v_fma_f32 v{dr}, -v{ai}, v{bi}, v{dr}")
    a(f"v_fma_f32 v{di}, v{ai}, v{br}, v{di}")

def p1_ssm(a, o):
    ACC = 16; FA = 176; FB = 208; VX = 4; VB = 8
    LAM = 144; L32 = 146; L256 = 148; C2 = 150; TMP = 152; VN = 14
    PW = 224
    acc = lambda j, c: ACC + (j * 2 + c) * 16
    fa = lambda b, j: FA + b * 16 + j * 4
    fb = lambda b, c: FB + b * 8 + c * 4
    s0 = slot_of(0) * S_SLOT
    a.c("SSM compute wave: D[t][p] = X B^T")
    a("s_lshr_b32 s44, s38, 1")
    a("s_and_b32 s45, s38, 1")
    srd(a, 48, P_LRE, 1280)
    srd(a, 52, P_LIM, 1280)
    srd(a, 56, P_LDT, 1280)
    a("s_lshl_b32 s46, s40, 6")
    a("s_lshl_b32 s47, s45, 5")
    a("s_add_u32 s46, s46, s47")
    a("v_and_b32 v1, 31, v0")
    a("v_add_u32 v2, s46, v1")
    a("v_lshlrev_b32 v2, 1, v2")
    a(f"buffer_load_ushort v{TMP}, v2, s[48:51], 0 offen")
    a(f"buffer_load_ushort v{TMP+1}, v2, s[52:55], 0 offen")
    a(f"buffer_load_ushort v{TMP+2}, v2, s[56:59], 0 offen")
    a("v_bfe_u32 v2, v0, 2, 1")
    a("v_lshlrev_b32 v2, 6, v2")
    a("v_and_b32 v3, 1, v0")
    a("v_lshl_add_u32 v2, v3, 5, v2")
    a(f"v_bfe_u32 v{VX}, v0, 1, 1")
    a(f"v_add_u32 v2, v2, v{VX}")
    a(f"v_bfe_u32 v{VX}, v0, 3, 2")
    a(f"v_lshl_add_u32 v2, v{VX}, 1, v2")
    a(f"v_lshl_or_b32 v3, v3, 2, v{VX}")
    a(f"v_lshrrev_b32 v{VX}, 5, v0")
    a(f"v_xor_b32 v3, v3, v{VX}")
    a("v_lshlrev_b32 v3, 4, v3")
    a("v_lshl_add_u32 v3, v2, 7, v3")
    a("s_lshl_b32 s47, s44, 14")
    a(f"s_add_u32 s47, s47, {s0 + S_XO}")
    a(f"v_add_u32 v{VX}, s47, v3")
    for sub in range(1, 4):
        a(f"v_xor_b32 v{VX+sub}, {sub*32}, v{VX}")
    a("v_lshrrev_b32 v2, 5, v0")
    a("v_bfe_u32 v3, v0, 1, 3")
    a("v_xor_b32 v3, v3, v2")
    a("v_lshlrev_b32 v3, 4, v3")
    a("v_lshl_add_u32 v3, v1, 7, v3")
    a("s_lshl_b32 s47, s45, 12")
    a(f"s_add_u32 s47, s47, {s0}")
    a(f"v_add_u32 v{VB}, s47, v3")
    for sub in range(1, 4):
        a(f"v_xor_b32 v{VB+sub}, {sub*32}, v{VB}")
    a(f"v_mov_b32 v{VN+1}, {NONCE_LDS}")
    for r in range(ACC, ACC + 128):
        a(f"v_mov_b32 v{r}, 0")
    a("s_waitcnt vmcnt(0)")
    t = TMP
    a(f"v_lshlrev_b32 v{t}, 16, v{t}")
    a(f"v_lshlrev_b32 v{t+1}, 16, v{t+1}")
    a(f"v_lshlrev_b32 v{t+2}, 16, v{t+2}")
    a(f"v_mul_f32 v{t+2}, {LOG2E:#x}, v{t+2}")
    a(f"v_exp_f32 v{t+2}, v{t+2}")
    a("s_nop 0")
    a(f"v_cvt_pk_bf16_f32 v{t+2}, v{t+2}, v{t+2}")
    a(f"v_lshlrev_b32 v{t+2}, 16, v{t+2}")
    a(f"v_mul_f32 v{t+3}, v{t+2}, v{t}")
    a(f"v_mul_f32 v{t+4}, v{t+2}, v{t+1}")
    a(f"v_mul_f32 v{t+3}, {LOG2E:#x}, v{t+3}")
    a(f"v_exp_f32 v{t+3}, v{t+3}")
    a(f"v_mul_f32 v{t+4}, 0.15915494, v{t+4}")
    a(f"v_rndne_f32 v{t+5}, v{t+4}")
    a(f"v_sub_f32 v{t+4}, v{t+4}, v{t+5}")
    a(f"v_cos_f32 v{t+5}, v{t+4}")
    a(f"v_sin_f32 v{t+6}, v{t+4}")
    a("s_nop 0")
    a(f"v_mul_f32 v{LAM}, v{t+3}, v{t+5}")
    a(f"v_mul_f32 v{LAM+1}, v{t+3}, v{t+6}")
    a(f"v_mul_f32 v{t+3}, v{t}, v{t}")
    a(f"v_fma_f32 v{t+3}, v{t+1}, v{t+1}, v{t+3}")
    a(f"v_rcp_f32 v{t+3}, v{t+3}")
    a(f"v_add_f32 v{t+4}, -1.0, v{LAM}")
    a(f"v_mul_f32 v{t+5}, v{t+4}, v{t}")
    a(f"v_fma_f32 v{t+5}, v{LAM+1}, v{t+1}, v{t+5}")
    a(f"v_mul_f32 v{t+6}, v{LAM+1}, v{t}")
    a(f"v_fma_f32 v{t+6}, -v{t+4}, v{t+1}, v{t+6}")
    a(f"v_add_f32 v{t+3}, v{t+3}, v{t+3}")
    a(f"v_mul_f32 v{C2}, v{t+5}, v{t+3}")
    a(f"v_mul_f32 v{C2+1}, v{t+6}, v{t+3}")
    cmul(a, L32, L32 + 1, LAM, LAM + 1, LAM, LAM + 1, t)
    for _ in range(4):
        cmul(a, L32, L32 + 1, L32, L32 + 1, L32, L32 + 1, t)
    cmul(a, L256, L256 + 1, L32, L32 + 1, L32, L32 + 1, t)
    for _ in range(2):
        cmul(a, L256, L256 + 1, L256, L256 + 1, L256, L256 + 1, t)
    SEL = TMP + 8
    a(f"v_mov_b32 v{PW}, v{C2}"); a(f"v_mov_b32 v{PW+1}, v{C2+1}")
    for s in range(1, 8):
        a(f"v_mul_f32 v{PW+2*s}, v{PW+2*s-2}, v{L32}")
        a(f"v_mul_f32 v{PW+2*s+1}, v{PW+2*s-2}, v{L32+1}")
        a(f"v_fma_f32 v{PW+2*s}, -v{PW+2*s-1}, v{L32+1}, v{PW+2*s}")
        a(f"v_fma_f32 v{PW+2*s+1}, v{PW+2*s-1}, v{L32}, v{PW+2*s+1}")
    a("s_cmp_eq_u32 s44, 0")
    a("s_cselect_b64 s[68:69], 0, -1")
    a("s_mov_b32 s70, 0")
    a("s_mov_b32 s71, -1")
    def select(src, dst):
        for par in range(2):
            for c in range(2):
                r = lambda s: src + 2 * s + c
                a(f"v_cndmask_b32 v{TMP+16}, v{r(par)}, v{r(2+par)}, s[70:71]")
                a(f"v_cndmask_b32 v{TMP+17}, v{r(4+par)}, v{r(6+par)}, s[70:71]")
                a(f"v_cndmask_b32 v{dst+2*c+par}, v{TMP+16}, v{TMP+17}, s[68:69]")
    select(PW, SEL + 4)
    a("s_mov_b32 s52, 0")
    a(f"s_mov_b32 s53, {slot_of(0)}")
    a(f"s_mov_b32 s55, {S_SLOT}")

    def reads(buf, sub):
        r = []
        r.append(f"ds_read_b128 {vr(fb(buf, 0), 4)}, v{VB+sub}")
        r.append(f"ds_read_b128 {vr(fa(buf, 0), 4)}, v{VX+sub}")
        r.append(f"ds_read_b128 {vr(fb(buf, 1), 4)}, v{VB+sub} offset:8192")
        for j in range(1, 4):
            r.append(f"ds_read_b128 {vr(fa(buf, j), 4)}, v{VX+(sub ^ ((j & 1) << 1))} offset:{j*1024}")
        return r
    a("s_barrier")
    stamp_clk(a, o, 58); stamp(a, o, 1)
    if o.stamps:
        a("s_mov_b32 s94, s92")
    for r in reads(0, 0):
        a(r)
    a.label("Ls_loop")
    for sub in range(4):
        buf = sub & 1
        nxt = reads(buf ^ 1, (sub + 1) & 3)
        a("s_waitcnt lgkmcnt(0)")
        if sub == 0:
            loop_stamp_flush(a, o)
        mf = [(j, c) for j in range(4) for c in range(2)]
        for n, (j, c) in enumerate(mf):
            a(f"v_mfma_f32_32x32x16_bf16 {vr(acc(j, c), 16)}, {vr(fa(buf, j), 4)}, {vr(fb(buf, c), 4)}, {vr(acc(j, c), 16)}")
            if n == 0 and sub == 3:
                ring_advance(a, o, 55, S_SLOT, range(VX, VX + 8))
            if n < 3:
                a(nxt[2 * n]); a(nxt[2 * n + 1])
            if n == 3 and sub == 0:
                a(f"ds_read_b32 v{VN}, v{VN+1}")
    a("s_cmp_lt_u32 s52, 10")
    a("s_cbranch_scc1 Ls_loop")
    a("s_waitcnt lgkmcnt(0)")
    loop_stamp_flush(a, o)
    stamp(a, o, 2); stamp_clk(a, o, 59)
    a(f"v_readfirstlane_b32 s64, v{VN}")
    a("v_and_b32 v1, 31, v0")
    a("s_lshl_b32 s47, s45, 5")
    a("v_add_u32 v1, s47, v1")
    a("v_lshlrev_b32 v2, 6, v1")
    a(f"v_add_u32 v2, {S_AGG}, v2")
    a("v_lshrrev_b32 v3, 5, v0")
    a("v_lshl_add_u32 v3, v3, 4, v2")
    a("s_lshl_b32 s47, s44, 5")
    a("v_add_u32 v3, s47, v3")
    srd(a, 48, P_WS, AGG_SIZE, AGG_OFF)
    LR = vr(LAM, 2)
    def pk_lr(d, x, y):
        a(f"v_pk_fma_f32 {vr(d, 2)}, {LR}, {vr(x, 2)}, {vr(y, 2)} op_sel_hi:[0,1,1]")
    def pk_li(d, x, y, neg):
        n = " neg_lo:[1,0,0] neg_hi:[1,0,0]" if neg else ""
        a(f"v_pk_fma_f32 {vr(d, 2)}, {LR}, {vr(x, 2)}, {vr(y, 2)} op_sel:[1,0,0] op_sel_hi:[1,1,1]{n}")
    ure = lambda n: acc(n >> 3, 0) + 2 * (n & 7)
    uim = lambda n: acc(n >> 3, 1) + 2 * (n & 7)
    S = [TMP, TMP + 4]
    pr, pi = ure(0), uim(0)
    for n in range(1, 32):
        d = S[n & 1]
        pk_lr(d, pr, ure(n)); pk_lr(d + 2, pi, uim(n))
        pk_li(d, pi, d, True); pk_li(d + 2, pr, d + 2, False)
        pr, pi = d, d + 2
    Sf = S[31 & 1]
    a(f"ds_write_b128 v3, {vr(Sf, 4)}")
    a("s_waitcnt lgkmcnt(0)")
    a("s_barrier")
    AG = FA
    for q in range(4):
        a(f"ds_read_b128 {vr(AG+4*q, 4)}, v2 offset:{q*16}")
    are = lambda s: AG + 4 * (s >> 1) + (s & 1)
    aim = lambda s: AG + 4 * (s >> 1) + 2 + (s & 1)
    PF = FA + 16
    a("v_lshlrev_b32 v3, 4, v1")
    a("s_lshl_b32 s46, s40, 13")
    a("s_lshl_b32 s47, s39, 10")
    a("s_add_u32 s47, s47, s46")
    a(f"v_mov_b32 v{PF}, 0"); a(f"v_mov_b32 v{PF+1}, 0")
    a(f"v_mov_b32 v{TMP+1}, s64"); a(f"v_mov_b32 v{TMP+3}, s64")
    a("s_waitcnt lgkmcnt(0)")
    a(f"v_mov_b32 v{PF+2}, v{are(0)}"); a(f"v_mov_b32 v{PF+3}, v{aim(0)}")
    for s in range(1, 7):
        cfma(a, PF + 2 * (s + 1), PF + 2 * (s + 1) + 1, L32, L32 + 1, PF + 2 * s, PF + 2 * s + 1, are(s), aim(s))
    cfma(a, TMP, TMP + 2, L32, L32 + 1, PF + 14, PF + 15, are(7), aim(7))
    a("s_cmp_lg_u32 s44, 0")
    a("s_cbranch_scc1 Ls_nopub")
    a("s_mov_b32 exec_hi, 0")
    a(f"buffer_store_dwordx4 {vr(TMP, 4)}, v3, s[48:51], s47 offen sc1")
    a("s_mov_b64 exec, -1")
    a.label("Ls_nopub")
    stamp(a, o, 3)
    select(PF, SEL)
    CC = vr(C2, 2)
    def scale(re, im):
        a(f"v_pk_mul_f32 {vr(TMP+4, 2)}, {CC}, {vr(re, 2)} op_sel:[1,0] op_sel_hi:[1,1]")
        a(f"v_pk_mul_f32 {vr(re, 2)}, {CC}, {vr(re, 2)} op_sel_hi:[0,1]")
        a(f"v_pk_fma_f32 {vr(re, 2)}, {CC}, {vr(im, 2)}, {vr(re, 2)} op_sel:[1,0,0] op_sel_hi:[1,1,1] neg_lo:[1,0,0] neg_hi:[1,0,0]")
        a(f"v_pk_fma_f32 {vr(im, 2)}, {CC}, {vr(im, 2)}, {vr(TMP+4, 2)} op_sel_hi:[0,1,1]")
    scale(SEL, SEL + 2)
    for n in range(32):
        scale(ure(n), uim(n))
    stamp(a, o, 4)
    CR = TMP + 16
    a("s_cmp_eq_u32 s39, 0")
    a("s_cbranch_scc1 Ls_nocarry")
    GL = FA
    a("s_mov_b32 s72, 0")
    a("s_add_u32 s47, s46, 4096")
    a.label("Ls_poll")
    for i in range(7):
        a(f"buffer_load_dwordx4 {vr(GL+4*i, 4)}, v3, s[48:51], s{46 + (i >> 2)} offen offset:{(i & 3)*1024} sc1")
    a("s_waitcnt vmcnt(0)")
    a(f"v_mov_b32 v{CR+2}, 0"); a(f"v_mov_b32 v{CR+3}, 0")
    for i in range(7):
        a(f"v_cmp_ne_u32 vcc, s64, v{GL+4*i+1}")
        a(f"v_cmp_ne_u32 s[66:67], s64, v{GL+4*i+3}")
        a(f"v_mov_b32 v{CR}, v{CR+2}"); a(f"v_mov_b32 v{CR+1}, v{CR+3}")
        a("s_or_b64 vcc, vcc, s[66:67]")
        a("s_cbranch_scc1 Ls_retry")
        cfma(a, CR + 2, CR + 3, L256, L256 + 1, CR, CR + 1, GL + 4 * i, GL + 4 * i + 2)
        if i < 6:
            a(f"s_cmp_eq_u32 s39, {i+1}")
            a("s_cbranch_scc1 Ls_gotcarry")
    a("s_branch Ls_gotcarry")
    a.label("Ls_retry")
    a("s_sleep 2")
    a("s_add_u32 s72, s72, 1")
    a(f"s_cmp_lt_u32 s72, {SPIN_MAX:#x}")
    a("s_cbranch_scc1 Ls_poll")
    a.label("Ls_gotcarry")
    CY = vr(CR + 2, 2)
    a(f"v_pk_fma_f32 {vr(SEL, 2)}, {CY}, {vr(SEL+4, 2)}, {vr(SEL, 2)} op_sel_hi:[0,1,1]")
    a(f"v_pk_fma_f32 {vr(SEL+2, 2)}, {CY}, {vr(SEL+6, 2)}, {vr(SEL+2, 2)} op_sel_hi:[0,1,1]")
    a(f"v_pk_fma_f32 {vr(SEL, 2)}, {CY}, {vr(SEL+6, 2)}, {vr(SEL, 2)} op_sel:[1,0,0] op_sel_hi:[1,1,1] neg_lo:[1,0,0] neg_hi:[1,0,0]")
    a(f"v_pk_fma_f32 {vr(SEL+2, 2)}, {CY}, {vr(SEL+4, 2)}, {vr(SEL+2, 2)} op_sel:[1,0,0] op_sel_hi:[1,1,1]")
    a.label("Ls_nocarry")
    stamp(a, o, 5)
    TS = 144
    a(f"s_mul_i32 s47, s38, {64*TS}")
    a(f"s_add_u32 s47, s47, {S_TR}")
    a("v_and_b32 v1, 31, v0")
    a(f"v_mul_u32_u24 v1, {TS}, v1")
    a("v_lshrrev_b32 v2, 5, v0")
    a("v_lshl_add_u32 v1, v2, 6, v1")
    a("v_add_u32 v1, s47, v1")
    a("v_lshrrev_b32 v2, 4, v0")
    a("v_lshlrev_b32 v2, 3, v2")
    a("v_bfe_u32 v3, v0, 2, 2")
    a("v_add_u32 v2, v2, v3")
    a(f"v_mul_u32_u24 v2, {TS}, v2")
    a("v_and_b32 v3, 3, v0")
    a("v_lshl_add_u32 v2, v3, 3, v2")
    a("v_add_u32 v2, s47, v2")
    a("v_lshlrev_b32 v3, 4, v0")
    srd(a, 48, P_WS, HP_SIZE, HP_OFF)
    a("s_lshl_b32 s46, s40, 1")
    a("s_add_u32 s73, s46, s45")
    a("s_lshl_b32 s46, s73, 13")
    a("s_lshl_b32 s47, s39, 2")
    a("s_lshl_b32 s56, s44, 1")
    a("s_add_u32 s47, s47, s56")
    a(f"s_mul_i32 s47, s47, {HT}")
    a("s_add_u32 s46, s46, s47")
    a(f"s_add_u32 s47, s46, {HT}")
    a(f"s_add_u32 s56, s46, {HK}")
    a(f"s_add_u32 s57, s47, {HK}")
    c_wsetup(a)
    pr, pi = SEL, SEL + 2
    PKD = FA; OUT = FA + 32
    def flush_round(rd):
        a("s_waitcnt lgkmcnt(0)")
        for c in range(2):
            for sg in range(4):
                d = OUT + (c * 4 + sg) * 4
                a(f"ds_read_b64_tr_b16 {vr(d, 2)}, v2 offset:{c*32*TS + sg*32}")
                a(f"ds_read_b64_tr_b16 {vr(d+2, 2)}, v2 offset:{c*32*TS + 4*TS + sg*32}")
    def store_round(rd):
        a("s_waitcnt lgkmcnt(0)")
        for c in range(2):
            for sg in range(4):
                d = OUT + (c * 4 + sg) * 4
                mi = 2 * sg + rd
                so = (46, 47, 56, 57)[c * 2 + (mi >> 2)]
                a(f"buffer_store_dwordx4 {vr(d, 4)}, v3, s[48:51], s{so} offen offset:{(mi & 3)*1024} {o.hst}")
    for n in range(32):
        r, i = ure(n), uim(n)
        pk_lr(r, pr, r); pk_lr(i, pi, i)
        pk_li(r, pi, r, True); pk_li(i, pr, i, False)
        pr, pi = r, i
        if n == 17:
            flush_round(0)
        if n == 21:
            store_round(0)
        if n in (10, 25, 28) and o.early_w:
            c_wload(a, (10, 25, 28).index(n))
        if (n & 7) == 7:
            j = n >> 3
            st = PKD + (j & 1) * 16
            for c in range(2):
                sg = "-" if c else ""
                for par in range(2):
                    for e in range(4):
                        b = acc(j, c) + par
                        a(f"v_cvt_pk_bf16_f32 v{st+c*8+par*4+e}, {sg}v{b+4*e}, {sg}v{b+4*e+2}")
                    a(f"ds_write_b128 v1, {vr(st+c*8+par*4, 4)} offset:{c*32*TS + par*32 + (j & 1)*16}")
    flush_round(1)
    if o.early_w:
        c_wload(a, 3)
    store_round(1)
    stamp(a, o, 6)
    a("s_lshl_b32 s65, s39, 2")
    a("s_lshl_b32 s66, s44, 1")
    a("s_add_u32 s65, s65, s66")
    a("s_lshl_b32 s65, s65, 8")
    a("s_lshl_b32 s66, s73, 2")
    a("s_add_u32 s65, s65, s66")
    a("s_add_u32 s65, s65, 88")
    a("s_mov_b64 s[66:67], 3")
    a("v_lshlrev_b32 v2, 8, v0")
    a("s_branch L_p2c")

L_ACC = 6; L_H = 86; L_W = 134
def p2_prefetch(a, o, vm, cuts, wait9, hook=None):
    if wait9:
        a(f"v_mov_b32 v2, {NONCE_LDS}")
        a("ds_read_b32 v2, v2")
    srd(a, 48, P_WS, HP_SIZE, HP_OFF)
    srd(a, 52, P_WS, W2_SIZE, W2_OFF)
    a("s_mul_i32 s74, s90, 14")
    a("s_min_u32 s74, s74, 40")
    a(f"s_mul_i32 s66, s42, {HT}")
    a(f"s_add_u32 s66, s66, {40*HK}")
    a(f"s_mul_i32 s67, s43, {WT}")
    a(f"s_add_u32 s67, s67, {40*WK}")
    a("s_cmp_lt_u32 s90, 3")
    a("s_cselect_b32 s50, s66, s50")
    a("s_cselect_b32 s54, s67, s54")
    srd(a, 56, P_WS, W2_SIZE, W2_OFF)
    if wait9:
        a("s_waitcnt lgkmcnt(0)")
        a("v_readfirstlane_b32 s64, v2")
    a("v_lshlrev_b32 v1, 4, v0")
    a(f"s_mul_i32 s76, s74, {WK}")
    a(f"s_mul_i32 s66, s43, {WT}")
    a("s_add_u32 s76, s76, s66")
    a("s_add_u32 s77, s76, 4096")
    a("s_mul_i32 s68, s90, 10")
    a("s_add_u32 s68, s68, 56")
    a(f"s_mul_i32 s68, s68, {WK}")
    a("s_add_u32 s68, s68, s66")
    a("s_add_u32 s70, s68, 4096")
    a("s_mul_i32 s69, s90, 5120")
    ops = []
    for n in range(6):
        for i in range(5):
            post = [f"s_add_u32 s76, s76, {WK}", f"s_add_u32 s77, s77, {WK}"] if i == 4 else []
            ops.append(([], f"buffer_load_dwordx4 {vr(L_W + n*20 + i*4, 4)}, v1, s[52:55], s{76 + (i >> 2)} offen offset:{(i & 3)*1024} sc1", post, 0))
    for n in range(6):
        for i in range(5):
            pre = [f"s_add_u32 m0, s69, {P2W + n*20480 + (i >> 2)*4096}", "s_nop 0"] if i in (0, 4) else []
            post = [f"s_add_u32 s68, s68, {WK}", f"s_add_u32 s70, s70, {WK}"] if i == 4 else []
            ops.append((pre, f"buffer_load_dwordx4 v1, s[56:59], s{68 + 2*(i >> 2)} offen offset:{(i & 3)*1024} sc1 lds", post, 9 if n < 4 else 10))
    def run(lo, hi, passed):
        for pre, ins, post, need in ops[lo:hi]:
            assert need <= passed
            for p in pre: a(p)
            if passed == 10 and o.throttle:
                a(f"s_waitcnt vmcnt({o.throttle - 1})")
            vm.op(ins, "pf")
            for p in post: a(p)
    run(0, cuts[0], 7)
    stamp(a, o, 16)
    a("s_barrier")
    stamp(a, o, 28)
    if hook: hook(8)
    run(cuts[0], cuts[1], 8)
    if wait9:
        vm.wait(("st", 9))
    stamp(a, o, 17)
    a("s_barrier")
    stamp(a, o, 29)
    if hook: hook(9)
    run(cuts[1], cuts[2], 9)
    stamp(a, o, 18)
    a("s_barrier")
    stamp(a, o, 30)
    run(cuts[2], cuts[3], 10)
    a("s_cmp_eq_u32 s41, 0")
    a(f"s_cbranch_scc1 Ll_nox{int(wait9)}")
    a("s_barrier")
    a.label(f"Ll_nox{int(wait9)}")
    run(cuts[3], 60, 10)
    if hook: hook(10)
    vm.drain()
    stamp(a, o, 6)

def p1_loader(a, o):
    a("s_cmp_ge_u32 s90, 2")
    a("s_cbranch_scc1 L_helper")
    VXO = 4; VWO = 20; VE = 30
    vm = VM(a)
    srd(a, 48, P_X, 2048 * 1280)
    a("v_lshrrev_b32 v1, 3, v0")
    a("v_and_b32 v2, 7, v0")
    a("s_lshl_b32 s46, s39, 8")
    a("s_lshl_b32 s47, s90, 7")
    a("s_add_u32 s46, s46, s47")
    a("s_mul_i32 s46, s46, 1280")
    a("v_mul_u32_u24 v3, 1280, v1")
    a(f"v_lshrrev_b32 v{VE}, 1, v1")
    a(f"v_xor_b32 v{VE}, v{VE}, v2")
    a(f"v_lshlrev_b32 v{VE}, 4, v{VE}")
    a(f"v_xor_b32 v{VE+1}, 64, v{VE}")
    a(f"v_add_u32 v{VE}, v{VE}, v3")
    a(f"v_add_u32 v{VE+1}, v{VE+1}, v3")
    a("s_cmp_eq_u32 s41, 1")
    a("s_cbranch_scc1 Ll_ssm")
    for ssm in (0, 1):
        if ssm:
            a.label("Ll_ssm")
        for i in range(16):
            bit = (i & 1) ^ ((i >> 2) & 1 if ssm else 0)
            a(f"s_add_u32 s47, s46, {i*8*1280 - (i & 3)*1024}")
            a(f"v_add_u32 v{VXO+i}, s47, v{VE+bit}")
        a("s_cmp_eq_u32 s90, 0")
        if not ssm:
            a(f"s_cselect_b32 s52, s{P_W1}, s{P_W3}")
            a(f"s_cselect_b32 s53, s{P_W1+1}, s{P_W3+1}")
            a(f"s_mov_b32 s54, {640*3456}")
            a("s_mul_i32 s47, s40, 160")
            for i in range(5):
                a(f"v_add_u32 v2, {64*i}, v0")
                a("v_mul_u32_u24 v3, 6554, v2")
                a("v_lshrrev_b32 v3, 16, v3")
                a("v_mul_u32_u24 v1, 10, v3")
                a("v_sub_u32 v2, v2, v1")
                a("v_mul_u32_u24 v3, 3456, v3")
                a("v_lshl_add_u32 v3, v2, 4, v3")
                a("v_add_u32 v3, s47, v3")
                a(f"v_subrev_u32 v{VWO+i}, {(i & 3)*1024}, v3")
                a(f"v_add_u32 v{VWO+5+i}, {32*3456 - ((i+5) & 3)*1024}, v3")
            a(f"s_mul_i32 s75, s90, {F_UP}")
            a("s_add_u32 s78, s75, 8192")
            a("s_lshl_b32 s81, s90, 14")
            a(f"s_add_u32 s81, s81, {F_XO}")
            for k in (1, 2):
                a(f"s_add_u32 s{75+k}, s75, {k*F_SLOT}")
                a(f"s_add_u32 s{78+k}, s78, {k*F_SLOT}")
                a(f"s_add_u32 s{81+k}, s81, {k*F_SLOT}")
            a(f"s_mov_b32 s84, {64*3456}")
            a("s_branch Ll_go")
        else:
            a(f"s_cselect_b32 s52, s{P_BRE}, s{P_BIM}")
            a(f"s_cselect_b32 s53, s{P_BRE+1}, s{P_BIM+1}")
            a(f"s_mov_b32 s54, {640*1280}")
            a(f"s_mul_i32 s46, s40, {64*1280}")
            for i in range(8):
                a(f"s_add_u32 s47, s46, {i*8*1280 - (i & 3)*1024}")
                a(f"v_add_u32 v{VWO+i}, s47, v{VE+(i & 1)}")
            a(f"v_mov_b32 v{VWO+8}, 0x40000000")
            a(f"v_mov_b32 v{VWO+9}, 0x40000000")
            a("s_lshl_b32 s75, s90, 13")
            a("s_lshl_b32 s81, s90, 14")
            a(f"s_add_u32 s81, s81, {S_XO}")
            for k in (1, 2):
                a(f"s_add_u32 s{75+k}, s75, {k*S_SLOT}")
                a(f"s_add_u32 s{81+k}, s81, {k*S_SLOT}")
            a("s_lshl_b32 s78, s90, 11")
            a(f"s_add_u32 s78, s78, {S_DUMMY}")
            a("s_mov_b32 s79, s78")
            a("s_mov_b32 s80, s78")
            a("s_movk_i32 s84, 128")
    a.label("Ll_go")
    a("s_mov_b32 s55, 0x20000")
    a("s_mov_b32 s85, 0")
    def issue_list(stage):
        sl = slot_of(stage)
        r = []
        for i in range(16):
            pre = []
            if i == 0:
                pre.append(f"s_movk_i32 s86, {stage*128}")
            if i % 4 == 0:
                pre += [f"s_add_u32 m0, s{81+sl}, {(i >> 2)*4096}", "s_nop 0"]
            r.append((pre, f"buffer_load_dwordx4 v{VXO+i}, s[48:51], s86 offen offset:{(i & 3)*1024} lds"))
        for i in range(10):
            pre = []
            if i % 4 == 0:
                pre = [f"s_add_u32 m0, s{75+sl}, {(i >> 2)*4096}" if i < 8 else f"s_mov_b32 m0, s{78+sl}", "s_nop 0"]
            r.append((pre, f"buffer_load_dwordx4 v{VWO+i}, s[52:55], s85 offen offset:{(i & 3)*1024} lds"))
        return r
    def issue(stage, lo=0, hi=26, extra=()):
        extra = list(extra)
        for pre, ins in issue_list(stage)[lo:hi]:
            for p in pre:
                a(p)
            vm.op(ins, ("st", stage))
            if extra:
                a(extra.pop(0))
                if extra and extra[0].startswith("s_addc"):
                    a(extra.pop(0))
        assert not extra
        if hi == 26:
            a("s_add_u32 s85, s85, s84")
    def bar(s):
        vm.wait(("st", s))
        stamp(a, o, 8 + s)
        a("s_barrier")
        stamp(a, o, 20 + s)
    wo = lambda: warm_ops(o, "w")
    issue(0)
    warm_setup(a, o); warm_skip(a, o, 3)
    issue(1, 0, 16, wo()); bar(0)
    issue(1, 16); issue(2, 0, 16, wo()); bar(1)
    issue(2, 16); issue(3, 0, 16, wo()); bar(2)
    issue(3, 16); issue(4, 0, 20, wo()); bar(3)
    issue(4, 20); issue(5, extra=wo())
    for s in range(4, 8):
        bar(s); issue(s + 2, extra=wo() if s < 6 else ())
    vm.wait(("st", 8))
    p2_prefetch(a, o, vm, o.cuts_l, True)
    a("s_branch L_p2l")

    a.label("L_helper")
    a(f"s_setprio {o.hprio}")
    vm = VM(a)
    GWF, XF, GA = 40, 120, 128
    RJ, OJ, O2 = (134, 182), (150, 198), 166
    srd(a, 60, P_DBG, 256)
    a("v_mov_b32 v19, 0")
    a("s_lshl_b32 s65, s2, 2")
    a("s_lshl_b32 s66, s90, 1")
    a("s_add_u32 s65, s65, s66")
    a("s_sub_u32 s65, s65, 4")
    a("s_cmp_lg_u32 s65, 0")
    a("s_cbranch_scc1 Lh_nononce")
    a("s_memrealtime s[66:67]")
    a("s_waitcnt lgkmcnt(0)")
    a("s_or_b32 s66, s66, 1")
    a("v_mov_b32 v20, s66")
    a("s_mov_b64 exec, 1")
    a("buffer_store_dword v20, v19, s[60:63], 0 offen sc1")
    a("s_mov_b64 exec, -1")
    a.label("Lh_nononce")
    warm_setup(a, o); warm_skip(a, o, 3)
    warm_stage_xb(a, o, 1)
    srd(a, 52, P_GW, 1280)
    a("v_lshlrev_b32 v21, 4, v0")
    a("v_lshrrev_b32 v6, 4, v0")
    a("v_and_b32 v7, 15, v0")
    a("v_lshlrev_b32 v5, 4, v6")
    a("s_lshl_b32 s66, s41, 4")
    a("s_add_u32 s66, s66, s40")
    a("s_cmp_eq_u32 s90, 3")
    a("s_cselect_b32 s73, s66, 16")
    a("s_cmp_ge_u32 s73, 16")
    a("s_cbranch_scc1 Lh_nogw")
    for k in range(20):
        a(f"buffer_load_dwordx4 {vr(GWF+4*k, 4)}, v5, s[52:55], 0 offen offset:{k*64}")
    a.label("Lh_nogw")
    a("v_mul_u32_u24 v8, 1280, v7")
    a("v_lshl_add_u32 v8, v6, 4, v8")
    a(f"v_mul_u32_u24 v9, {8*1280}, v6")
    a("v_and_b32 v10, 3, v0")
    a("v_lshl_add_u32 v9, v10, 5, v9")
    a("v_bfe_u32 v10, v0, 2, 2")
    a("v_lshl_add_u32 v9, v10, 3, v9")
    a("v_bfe_u32 v10, v0, 1, 3")
    a("v_xor_b32 v10, v10, v6")
    a("v_lshlrev_b32 v10, 4, v10")
    a("v_lshl_add_u32 v10, v7, 7, v10")
    a("s_and_b32 s66, s40, 15")
    a("s_lshl_b32 s66, s66, 11")
    a(f"s_add_u32 s66, s66, {F_XO}")
    a("v_add_u32 v10, s66, v10")
    for k in range(3):
        a(f"v_add_u32 v{12+2*k}, {k*F_SLOT}, v10")
        a(f"v_xor_b32 v{13+2*k}, 64, v{12+2*k}")
    for k in range(4):
        a(f"v_mov_b32 v{GA+k}, 0")
    a("s_mul_i32 s66, s65, 6554")
    a("s_lshr_b32 s66, s66, 16")
    a("s_mul_i32 s67, s66, 10")
    a("s_sub_u32 s67, s65, s67")
    a(f"s_mul_i32 s87, s66, {WK}")
    a("s_cmp_ge_u32 s66, 94")
    a("s_cselect_b32 s87, 0x40000000, s87")
    for t in range(8):
        a("s_lshl_b32 s68, s67, 2")
        a(f"s_add_u32 s68, s68, {t}")
        a("s_mul_i32 s69, s68, 52")
        a("s_lshr_b32 s69, s69, 8")
        a(f"s_mul_i32 s70, s69, {WT - 5120}")
        a("s_lshl_b32 s68, s68, 10")
        a("s_add_u32 s68, s68, s70")
        a(f"s_add_u32 s{76+t}, s68, s87")
    warm_stage_xb(a, o, 1)
    def gstep(s):
        sl = slot_of(s)
        a(f"ds_read_b128 {vr(XF, 4)}, v{12+2*sl}")
        a(f"ds_read_b128 {vr(XF+4, 4)}, v{13+2*sl}")
        a("s_waitcnt lgkmcnt(0)")
        a(f"v_mfma_f32_16x16x32_bf16 {vr(GA, 4)}, {vr(GWF+8*s, 4)}, {vr(XF, 4)}, {vr(GA, 4)}")
        a(f"v_mfma_f32_16x16x32_bf16 {vr(GA, 4)}, {vr(GWF+8*s+4, 4)}, {vr(XF+4, 4)}, {vr(GA, 4)}")
    def hbar(s):
        stamp(a, o, 8 + s)
        a("s_barrier")
        gstep(s)
        if s < 5:
            warm_stage_xb(a, o, 1)
    a("s_waitcnt vmcnt(0)")
    hbar(0)
    a("s_cmp_ge_u32 s66, 40")
    a("s_cbranch_scc1 Lh_w2")
    a("s_and_b32 s68, s66, 1")
    a("s_cmp_eq_u32 s68, 0")
    a(f"s_cselect_b32 s56, s{P_CRE}, s{P_CIM}")
    a(f"s_cselect_b32 s57, s{P_CRE+1}, s{P_CIM+1}")
    a(f"s_mov_b32 s58, {640*1280}")
    a("s_mov_b32 s59, 0x20000")
    a("s_lshr_b32 s68, s66, 1")
    a("s_lshl_b32 s68, s68, 6")
    a(f"s_mul_i32 s69, s67, {64*1280}")
    a("s_add_u32 s68, s68, s69")
    for t in range(8):
        a(f"buffer_load_dwordx4 {vr(OJ[t >> 2]+4*(t & 3), 4)}, v8, s[56:59], s68 offen")
        if t < 7:
            a(f"s_add_u32 s68, s68, {16*1280}")
    a("s_branch Lh_ld")
    a.label("Lh_w2")
    srd(a, 56, P_W2, 1728 * 1280)
    a("s_sub_u32 s68, s66, 40")
    a(f"s_mul_i32 s68, s68, {32*1280}")
    a("s_lshl_b32 s69, s67, 7")
    a("s_add_u32 s68, s68, s69")
    a(f"s_add_u32 s69, s68, {4*1280}")
    for e in range(8):
        for jb in range(2):
            a(f"buffer_load_dwordx2 {vr(RJ[jb]+2*e, 2)}, v9, s[56:59], s{68 + (e >> 2)} offen offset:{(e & 3)*1280 + jb*128}")
    a.label("Lh_ld")
    hbar(1)
    srd(a, 56, P_WS, W2_SIZE, W2_OFF)
    a("s_mov_b32 s70, 0x05040100")
    a("s_mov_b32 s71, 0x07060302")
    a("s_waitcnt vmcnt(0)")
    for jb in range(2):
        R, O = RJ[jb], OJ[jb]
        a("s_cmp_lt_u32 s66, 40")
        a(f"s_cbranch_scc1 Lh_st{jb}")
        for t in range(4):
            for e in range(4):
                a(f"v_perm_b32 v{O+4*t+e}, v{R+4*e+2+(t >> 1)}, v{R+4*e+(t >> 1)}, s{70+(t & 1)}")
        for (src, dst, x, qp, m) in ((O, O2, 1, "[1,0,3,2]", 0xaaaaaaaa), (O2, O, 2, "[2,3,0,1]", 0xcccccccc)):
            for hi in (1, 0):
                mm = m if hi else (~m & 0xffffffff)
                a(f"s_mov_b32 vcc_lo, {mm:#x}")
                a(f"s_mov_b32 vcc_hi, {mm:#x}")
                a("s_nop 1")
                for t in range(4):
                    if bool(t & x) != bool(hi):
                        continue
                    for e in range(4):
                        a(f"v_cndmask_b32_dpp v{dst+4*t+e}, v{src+4*(t ^ x)+e}, v{src+4*t+e}, vcc quad_perm:{qp} row_mask:0xf bank_mask:0xf")
        a.label(f"Lh_st{jb}")
        for t in range(4):
            a(f"buffer_store_dwordx4 {vr(O+4*t, 4)}, v21, s[56:59], s{76 + 4*jb + t} offen sc1")
    stamp(a, o, 3)
    hbar(2)
    a("s_mov_b32 s72, 0")
    a.label("Lh_npoll")
    a("buffer_load_dword v23, v19, s[60:63], 0 offen sc1")
    a("s_waitcnt vmcnt(0)")
    a("v_readfirstlane_b32 s64, v23")
    a("s_add_u32 s72, s72, 1")
    a("s_cmp_lg_u32 s64, 0")
    a("s_cbranch_scc1 Lh_ngot")
    a(f"s_cmp_lt_u32 s72, {SPIN_MAX:#x}")
    a("s_cbranch_scc1 Lh_npoll")
    a.label("Lh_ngot")
    a(f"v_mov_b32 v22, {NONCE_LDS}")
    a("ds_write_b32 v22, v23")
    a("s_waitcnt lgkmcnt(0)")
    hbar(3)
    srd(a, 56, P_WS, FW_SIZE, FW_OFF)
    a("s_cmp_lg_u32 s90, 2")
    a("s_cbranch_scc1 Lh_noflag")
    a("s_lshl_b32 s66, s2, 2")
    a("s_mov_b64 exec, 1")
    a("buffer_store_dword v23, v19, s[56:59], s66 offen sc1")
    a("s_mov_b64 exec, -1")
    a.label("Lh_noflag")
    hbar(4)
    hbar(5)
    hbar(6)
    a("buffer_load_dwordx4 v[28:31], v21, s[56:59], 0 offen sc1")
    hbar(7)
    a("s_mov_b32 s72, 0")
    a.label("Lh_fpoll")
    a("s_waitcnt vmcnt(0)")
    a("v_cmp_ne_u32 vcc, s64, v28")
    a("v_cmp_ne_u32 s[66:67], s64, v29")
    a("v_cmp_ne_u32 s[68:69], s64, v30")
    a("v_cmp_ne_u32 s[70:71], s64, v31")
    a("s_or_b64 vcc, vcc, s[66:67]")
    a("s_or_b64 s[68:69], s[68:69], s[70:71]")
    a("s_or_b64 vcc, vcc, s[68:69]")
    a("s_cbranch_scc0 Lh_fgot")
    a("s_sleep 8")
    a("buffer_load_dwordx4 v[28:31], v21, s[56:59], 0 offen sc1")
    a("s_add_u32 s72, s72, 1")
    a(f"s_cmp_lt_u32 s72, {SPIN_MAX:#x}")
    a("s_cbranch_scc1 Lh_fpoll")
    a.label("Lh_fgot")
    stamp(a, o, 5)
    def hook(s):
        if s < 10:
            gstep(s)
            return
        a("s_cmp_ge_u32 s73, 16")
        a("s_cbranch_scc1 Lh_nog")
        a(f"v_cvt_pk_bf16_f32 v{GA}, v{GA}, v{GA}")
        a(f"v_lshlrev_b32 v{GA}, 16, v{GA}")
        a(f"v_mul_f32 v{GA}, {NLOG2E:#x}, v{GA}")
        a(f"v_exp_f32 v{GA}, v{GA}")
        a("s_nop 0")
        a(f"v_add_f32 v{GA}, 1.0, v{GA}")
        a(f"v_rcp_f32 v{GA}, v{GA}")
        a("s_nop 0")
        a(f"v_cvt_pk_bf16_f32 v{GA}, v{GA}, v{GA}")
        a(f"v_lshlrev_b32 v{GA}, 16, v{GA}")
        a(f"v_mov_b32 v{GA+1}, s64")
        srd(a, 60, P_WS, G_SIZE, G_OFF)
        a("v_lshlrev_b32 v2, 3, v0")
        a("s_lshl_b32 s66, s39, 4")
        a("s_add_u32 s66, s66, s40")
        a("s_lshl_b32 s66, s66, 7")
        a("s_mov_b64 exec, 0xffff")
        a(f"buffer_store_dwordx2 {vr(GA, 2)}, v2, s[60:63], s66 offen sc1")
        a("s_mov_b64 exec, -1")
        a.label("Lh_nog")
    p2_prefetch(a, o, vm, o.cuts_h, False, hook)
    a("s_setprio 0")
    a.label("L_p2l")

def p2(a, o, loader):
    X = "L" if loader else "C"
    vm = VM(a)
    NS = 14 if loader else 10
    wreg = {}; hreg = {}
    if loader:
        ACC = L_ACC
        for n in range(6):
            for dt in range(5):
                wreg[n, dt] = L_W + n * 20 + dt * 4
        free = [L_H + 4 * i for i in range(12)]
        VO = 1
        lds_steps = ()
    else:
        ACC = C_ACC
        for k, n in enumerate(C_RSTEPS):
            for dt in range(5):
                wreg[n, dt] = C_WR + k * 20 + dt * 4
        lds_steps = tuple(range(2, 8))
        for n in lds_steps:
            for dt in range(5):
                wreg[n, dt] = C_WL + (((n - 2) * 5 + dt) % 6) * 4
        free = [C_H + 4 * i for i in range(12)]
        VO = 12
    acc = lambda dt, mi: ACC + (dt * 4 + mi) * 4
    srd(a, 56, P_WS, FH_SIZE, FH_OFF)
    if not loader:
        a("v_mov_b32 v3, s64")
        a("s_waitcnt vmcnt(0)")
        a("s_mov_b64 exec, s[66:67]")
        a(f"buffer_store_dword v3, v2, s[56:59], s65 offen {o.hst}")
        a("s_mov_b64 exec, -1")
        stamp(a, o, 7)
        if not o.early_w:
            for k in range(4):
                c_wload(a, k)
        a("s_mul_i32 s68, s90, 5120")
        a(f"v_add_u32 v4, s68, v{VO}")
        a("v_add_u32 v5, 0x10000, v4")
    a("s_lshl_b32 s80, s74, 12")
    a(f"s_mul_i32 s69, s42, {HT}")
    a("s_add_u32 s80, s80, s69")
    if loader:
        a("s_mul_i32 s68, s90, 7")
        a("s_add_u32 s68, s68, 22")
        a("s_cmp_eq_u32 s90, 2")
        a("s_cselect_b32 s69, 6, 7")
        a("s_cmp_eq_u32 s90, 3")
        a("s_cselect_b32 s68, 0, s68")
        a("s_cselect_b32 s69, 6, s69")
    else:
        a("s_lshl_b32 s68, s90, 2")
        a("s_add_u32 s68, s68, 5")
        a("s_mov_b32 s69, 5")
    a("s_bfm_b64 s[78:79], s69, s68")
    a("v_lshlrev_b32 v2, 2, v0")
    a("s_lshl_b32 s65, s42, 8")
    a("s_barrier")
    stamp(a, o, 40)
    a("s_mov_b32 s72, 0")
    a.label(f"L2{X}_poll")
    a("buffer_load_dword v3, v2, s[56:59], s65 offen sc1")
    a("s_waitcnt vmcnt(0)")
    a("v_cmp_ne_u32 vcc, s64, v3")
    a("s_and_b64 vcc, vcc, s[78:79]")
    a(f"s_cbranch_scc0 L2{X}_go")
    a(f"s_sleep {o.poll_sleep}")
    a("s_add_u32 s72, s72, 1")
    a(f"s_cmp_lt_u32 s72, {SPIN_MAX:#x}")
    a(f"s_cbranch_scc1 L2{X}_poll")
    a.label(f"L2{X}_go")
    stamp(a, o, 41)
    needs = []
    for n in range(NS):
        if loader and n >= 6:
            needs += [("w", n, i) for i in range(5)]
        needs += [("h", n, i) for i in range(4)]
    own = (3, 4) if loader else (0, 1, 2)
    E = {}
    def try_issue():
        if not needs or not free:
            return False
        kind, n, i = needs.pop(0)
        r = free.pop(0)
        if kind == "h":
            hreg[n, i] = r
            vm.op(f"buffer_load_dwordx4 {vr(r, 4)}, v{VO}, s[48:51], s80 offen offset:{i*1024} {o.hld}", ("h", n))
            if i == 3:
                a(f"s_add_u32 s80, s80, {HK}")
        else:
            wreg[n, i] = r
            vm.op(f"buffer_load_dwordx4 {vr(r, 4)}, v{VO}, s[52:55], s{76 + (i >> 2)} offen offset:{(i & 3)*1024} {o.hld}", ("w", n))
            if i >= 3:
                a(f"s_add_u32 s{76 + (i >> 2)}, s{76 + (i >> 2)}, {WK}")
        return True
    while try_issue():
        pass
    def lds_w(k):
        n, dt = 2 + k // 5, k % 5
        off = P2W + (n - 2) * 20480 + dt * 1024
        return f"ds_read_b128 {vr(wreg[n, dt], 4)}, v{4 if off < 65536 else 5} offset:{off & 0xffff}"
    def eloads():
        E["g"] = free.pop(0); E["x"] = [free.pop(0) for _ in own]
        srd(a, 60, P_WS, G_SIZE, G_OFF)
        a("v_and_b32 v2, 15, v0")
        a("v_lshlrev_b32 v3, 3, v2")
        a("s_lshl_b32 s68, s42, 6")
        a("s_lshl_b32 s69, s90, 4")
        a("s_add_u32 s68, s68, s69")
        a("s_lshl_b32 s81, s68, 3")
        a(f"v_mov_b32 v{E['g']+2}, v3")
        vm.op(f"buffer_load_dwordx2 {vr(E['g'], 2)}, v3, s[60:63], s81 offen sc1", "e")
        srd(a, 84, P_X, 2048 * 1280)
        a("v_lshrrev_b32 v3, 4, v0")
        a("v_lshlrev_b32 v3, 3, v3")
        a("v_mul_u32_u24 v2, 1280, v2")
        a("v_add_u32 v2, v2, v3")
        a("s_mul_i32 s71, s68, 1280")
        a("s_mul_i32 s69, s43, 160")
        a("s_add_u32 s71, s71, s69")
        for k, dt in enumerate(own):
            vm.op(f"buffer_load_dwordx2 {vr(E['x'][k], 2)}, v2, s[84:87], s71 offen offset:{dt*32}", "e")
        srd(a, 84, P_DSK, 1280)
        for k, dt in enumerate(own):
            vm.op(f"buffer_load_dwordx2 {vr(E['x'][k]+2, 2)}, v3, s[84:87], s69 offen offset:{dt*32}", "e")
        a("v_lshlrev_b32 v2, 1, v2")
        a("s_lshl_b32 s71, s71, 1")
        srd(a, 84, P_OUT, 2048 * 2560)
        a("s_mul_i32 s68, s38, 20480")
        a(f"v_add_u32 v3, s68, v{VO}")
    def put(dt):
        for mi in range(4):
            a(f"ds_write_b128 v3, {vr(acc(dt, mi), 4)} offset:{(mi*5 + dt)*1024}")
    mstep = 11 if loader else 7
    for n in range(NS):
        need = [("h", n)]
        if loader and n >= 6:
            need.append(("w", n))
        vm.wait(*need)
        if o.stamps and n in (0, 1, 5):
            stamp(a, o, 42 + (0, 1, 5).index(n))
        if not loader and n == 1:
            for k in range(5):
                a(lds_w(k))
        last = n == NS - 1
        for dt in range(5):
            if n in lds_steps:
                f = (n - 2) * 5 + dt
                a(f"s_waitcnt lgkmcnt({min(29, f + 4) - f})")
            for mi in range(4):
                c = "0" if n == 0 else vr(acc(dt, mi), 4)
                a(f"v_mfma_f32_16x16x32_bf16 {vr(acc(dt, mi), 4)}, {vr(wreg[n, dt], 4)}, {vr(hreg[n, mi], 4)}, {c}")
                if mi == 0 and n in lds_steps and (n - 2) * 5 + dt + 5 < 30:
                    a(lds_w((n - 2) * 5 + dt + 5))
                if dt == 4:
                    free.append(hreg[n, mi])
                if mi % 2 == 1:
                    try_issue()
            if n not in lds_steps:
                free.append(wreg[n, dt])
            if last and dt >= 2:
                put(dt - 2)
        while n + 1 < NS and (n + 1, 3) not in hreg:
            assert try_issue()
        if n == mstep:
            a("s_barrier")
        if not needs and not E and len(free) >= 4:
            assert n < NS - 1
            eloads()
    stamp(a, o, 45)
    put(3)
    a("s_nop 3")
    put(4)
    a("s_mul_i32 s68, s90, 5120")
    a(f"v_add_u32 v3, s68, v{VO}")
    a("v_add_u32 v4, 61440, v3")
    a("v_add_u32 v5, 122880, v3")
    vm.wait("e")
    T = free.pop(0)
    for k, dt in enumerate(own):
        b = E["x"][k]
        a(f"v_lshlrev_b32 v{T}, 16, v{b+2}")
        a(f"v_and_b32 v{T+1}, 0xffff0000, v{b+2}")
        a(f"v_lshlrev_b32 v{T+2}, 16, v{b+3}")
        a(f"v_and_b32 v{T+3}, 0xffff0000, v{b+3}")
        a(f"v_lshlrev_b32 v{b+2}, 16, v{b+1}")
        a(f"v_and_b32 v{b+3}, 0xffff0000, v{b+1}")
        a(f"v_and_b32 v{b+1}, 0xffff0000, v{b}")
        a(f"v_lshlrev_b32 v{b}, 16, v{b}")
        for p in range(2):
            a(f"v_pk_mul_f32 {vr(b+2*p, 2)}, {vr(b+2*p, 2)}, {vr(T+2*p, 2)}")
            a(f"v_cvt_pk_bf16_f32 v{b+2*p+1}, v{b+2*p}, v{b+2*p+1}")
            a(f"v_lshlrev_b32 v{b+2*p}, 16, v{b+2*p+1}")
            a(f"v_and_b32 v{b+2*p+1}, 0xffff0000, v{b+2*p+1}")
    G = E["g"]
    a("s_mov_b32 s72, 0")
    a.label(f"L2{X}_gpoll")
    a(f"v_cmp_ne_u32 vcc, s64, v{G+1}")
    a("s_cmp_eq_u64 vcc, 0")
    a(f"s_cbranch_scc1 L2{X}_ggot")
    a(f"buffer_load_dwordx2 {vr(G, 2)}, v{G+2}, s[60:63], s81 offen sc1")
    a("s_waitcnt vmcnt(0)")
    a("s_add_u32 s72, s72, 1")
    a(f"s_cmp_lt_u32 s72, {SPIN_MAX:#x}")
    a(f"s_cbranch_scc1 L2{X}_gpoll")
    a.label(f"L2{X}_ggot")
    a(f"v_sub_f32 v{G+1}, 1.0, v{G}")
    a(f"v_cvt_pk_bf16_f32 v{G+1}, v{G+1}, v{G+1}")
    a(f"v_lshlrev_b32 v{G+1}, 16, v{G+1}")
    a("s_waitcnt lgkmcnt(0)")
    stamp(a, o, 46)
    a("s_barrier")
    stamp(a, o, 47)
    RD = ACC
    def rd(k):
        for s in range(8):
            a(f"ds_read_b128 {vr(RD + (k & 1)*32 + s*4, 4)}, v{3 + s // 3} offset:{(s % 3)*20480 + own[k]*1024}")
    def fin(k, left):
        a(f"s_waitcnt lgkmcnt({left})")
        b = RD + (k & 1) * 32; sk = E["x"][k]
        for p in range(2):
            r = lambda s: vr(b + 4 * s + 2 * p, 2)
            for (x, y) in ((0, 1), (2, 3), (4, 5), (0, 7), (4, 6), (0, 2)):
                a(f"v_pk_add_f32 {r(x)}, {r(x)}, {r(y)}")
            a(f"v_pk_add_f32 {r(4)}, {r(4)}, {vr(sk+2*p, 2)}")
            lo, hi = b + 2 * p, b + 2 * p + 1
            for _ in range(2):
                a(f"v_cvt_pk_bf16_f32 v{hi}, v{lo}, v{hi}")
                a(f"v_lshlrev_b32 v{lo}, 16, v{hi}")
                a(f"v_and_b32 v{hi}, 0xffff0000, v{hi}")
                if _ == 0:
                    a(f"v_pk_mul_f32 {r(0)}, {vr(G, 2)}, {r(0)} op_sel:[1,0] op_sel_hi:[1,1]")
            a(f"v_pk_fma_f32 {vr(sk+2*p, 2)}, {vr(G, 2)}, {r(4)}, {r(0)} op_sel_hi:[0,1,1]")
        a(f"buffer_store_dwordx4 {vr(sk, 4)}, v2, s[84:87], s71 offen offset:{own[k]*64} {o.out_store}")
    rd(0)
    a("s_waitcnt lgkmcnt(7)")
    rd(1)
    fin(0, 8)
    if len(own) == 3:
        a("s_waitcnt lgkmcnt(7)")
        rd(2)
        fin(1, 8)
        fin(2, 0)
    else:
        fin(1, 0)
    stamp(a, o, 48)
    stamp_flush(a, o)
    a("s_endpgm")

def generate(o):
    ref = open(f"cdna_kernels/{NAME}.s.ref").read().splitlines()
    head = [l for l in ref if l.startswith(";") and "@launch" not in l]
    out = "\n".join(head) + "\n"
    out += f"; @launch grid=(256,1,1) block=(512,1,1) lds={LDS_BYTES}\n"
    out += f'.amdgcn_target "amdgcn-amd-amdhsa--gfx950"\n.text\n.globl {NAME}_kernel\n'
    out += kernel(o).text()
    out += f""".section .rodata,"a"
.p2align 6
.amdhsa_kernel {NAME}_kernel
  .amdhsa_next_free_vgpr 256
  .amdhsa_next_free_sgpr 102
  .amdhsa_accum_offset 256
  .amdhsa_group_segment_fixed_size 0
  .amdhsa_kernarg_size 136
  .amdhsa_user_sgpr_count 2
  .amdhsa_user_sgpr_kernarg_segment_ptr 1
  .amdhsa_system_sgpr_workgroup_id_x 1
.end_amdhsa_kernel
"""
    return out

if __name__ == "__main__":
    o = Opt()
    path = f"cdna_kernels/{NAME}.s"
    for arg in sys.argv[1:]:
        k, v = arg.split("=", 1)
        if k == "out":
            path = v
        else:
            cur = getattr(o, k)
            setattr(o, k, type(cur)(int(v)) if isinstance(cur, (bool, int)) else tuple(int(x) for x in v.split(",")) if isinstance(cur, tuple) else v)
    open(path, "w").write(generate(o))
    print("wrote", path)
```

```python
import sys

NAME = "gated_mix__ssm_conv_s5__glu_gated_swiglu__prompt"

class Opt:
    stamps = 0
    map1 = "2x4"
    map2 = "4x2"
    out_store = ""
    poll_sleep = 4
    warm = True
    hprio = 2
    codepf = 1
    dspan = 0
    hst = "sc1"
    hld = "sc1"
    throttle = 0
    early_w = False
    cuts_l = (0, 15, 33, 43)
    cuts_h = (5, 25, 43, 53)

HP_OFF  = 0
HP_SIZE = 94 * 128 * 1024
W2_OFF  = 0xC00000
W2_SIZE = 94 * 40 * 1024
HK = 4096
HT = 94 * HK
WK = 5120
WT = 94 * WK
G_OFF   = 0x1000000
G_SIZE  = 2048 * 8
AGG_OFF = 0x1010000
AGG_SIZE = 80 * 1024
FH_OFF  = 0x1030000
FH_SIZE = 32 * 256
FW_OFF  = 0x1034000
FW_SIZE = 1024
ST_OFF  = 0x1100000
ST_SIZE = 0x100000

LOG2E = 0x3fb8aa3b
NLOG2E = 0xbfb8aa3b
SPIN_MAX = 0x40000

class Asm:
    def __init__(self):
        self.l = []
    def __call__(self, s):
        self.l.append("    " + s)
    def label(self, s):
        self.l.append(s + ":")
    def c(self, s):
        self.l.append("    ; " + s)
    def raw(self, s):
        self.l.append(s)
    def text(self):
        return "\n".join(self.l) + "\n"
    _uid = 0
    def uid(self):
        self._uid += 1
        return self._uid

class VM:
    def __init__(self, a):
        self.a = a; self.q = []
    def op(self, ins, tag=None):
        self.a(ins); self.q.append(tag)
    def wait(self, *tags):
        last = max(i for i, t in enumerate(self.q) if t in tags)
        n = len(self.q) - 1 - last
        assert n <= 63, n
        self.a(f"s_waitcnt vmcnt({n})")
    def drain(self):
        self.a("s_waitcnt vmcnt(0)"); self.q = []

def vr(b, n=1, p="v"):
    return f"{p}{b}" if n == 1 else f"{p}[{b}:{b+n-1}]"

def srd(a, d, base, size, off=0):
    if off:
        a(f"s_add_u32 s{d}, s{base}, {off:#x}")
        a(f"s_addc_u32 s{d+1}, s{base+1}, 0")
    else:
        a(f"s_mov_b32 s{d}, s{base}")
        a(f"s_mov_b32 s{d+1}, s{base+1}")
    a(f"s_mov_b32 s{d+2}, {size:#x}")
    a(f"s_mov_b32 s{d+3}, 0x20000")

P_X, P_LRE, P_LIM, P_BRE, P_BIM, P_CRE, P_CIM, P_LDT = 4, 6, 8, 10, 12, 14, 16, 18
P_DSK, P_BX, P_W1, P_W3, P_W2, P_GW, P_OUT, P_DBG, P_WS = 20, 22, 24, 26, 28, 30, 32, 34, 36

def stamp(a, o, slot):
    if not o.stamps or (8 <= slot < 32 and o.stamps < 2):
        return
    a("s_memrealtime s[92:93]")
    a("s_waitcnt lgkmcnt(0)")
    a(f"v_writelane_b32 v254, s92, {slot}")
def stamp_dyn(a, o, slot, sreg, mul):
    if not o.stamps:
        return
    a("s_memrealtime s[92:93]")
    a("s_waitcnt lgkmcnt(0)")
    a(f"s_mul_i32 s93, s{sreg}, {mul}")
    a(f"s_add_u32 s93, s93, {slot}")
    a("s_mov_b32 m0, s93")
    a("v_writelane_b32 v254, s92, m0")
def stamp_clk(a, o, slot):
    if not o.stamps:
        return
    a("s_memtime s[92:93]")
    a("s_waitcnt lgkmcnt(0)")
    a(f"v_writelane_b32 v254, s92, {slot}")
def dmark(a, o, slot, inv=False, tv=252):
    if not o.dspan:
        return
    srd(a, 96, P_DBG, 256)
    a("s_memrealtime s[92:93]")
    a("s_waitcnt lgkmcnt(0)")
    if inv:
        a("s_not_b32 s92, s92")
    a("v_mov_b32 v254, s92")
    a("v_mov_b32 v255, 0")
    a("s_mov_b64 exec, 1")
    a(f"buffer_atomic_umax v254, v255, s[96:99], 0 offen offset:{slot*4} sc1")
    a("s_mov_b64 exec, -1")

def stamp_setup(a, o):
    if not o.stamps:
        return
    a("v_mov_b32 v254, 0")
    a("s_lshl_b32 s91, s2, 3")
    a("s_add_u32 s91, s91, s38")
    a("s_lshl_b32 s91, s91, 8")
    a("v_lshlrev_b32 v255, 2, v0")
    stamp_clk(a, o, 62)
def stamp_flush(a, o):
    if not o.stamps:
        return
    a("s_waitcnt vmcnt(0)")
    stamp(a, o, 61)
    stamp_clk(a, o, 63)
    srd(a, 96, P_WS, ST_SIZE, ST_OFF)
    a("buffer_store_dword v254, v255, s[96:99], s91 offen")

LDS_BYTES = 163840
F_UP = 10368
F_XO = 20736
F_SLOT = F_XO + 32768
S_XO = 16384
S_SLOT = S_XO + 32768
S_DUMMY = 3 * S_SLOT
NONCE_LDS = 163832
P2W = 0
S_TR = 122880
S_AGG = 159744
slot_of = lambda stage: (stage + 2) % 3

def kernel(o):
    a = Asm()
    a.raw(".p2align 8")
    a.raw(f".type {NAME}_kernel,@function")
    a.label(f"{NAME}_kernel")
    a("s_cmp_ge_u32 s2, 256")
    a("s_cbranch_scc1 L_end")
    a("s_load_dwordx16 s[4:19], s[0:1], 0")
    a("s_load_dwordx16 s[20:35], s[0:1], 64")
    a("s_load_dwordx2 s[36:37], s[0:1], 128")
    a("v_lshrrev_b32 v1, 6, v0")
    a("v_and_b32 v0, 63, v0")
    a("v_readfirstlane_b32 s38, v1")
    a("s_and_b32 s42, s2, 7")
    a("s_lshr_b32 s43, s2, 3")
    if o.map1 == "2x4":
        a("s_and_b32 s39, s42, 1")
        a("s_lshl_b32 s39, s39, 2")
        a("s_and_b32 s44, s43, 3")
        a("s_add_u32 s39, s39, s44")
        a("s_lshr_b32 s48, s42, 1")
        a("s_lshr_b32 s49, s43, 2")
        a("s_lshr_b32 s44, s48, 1")
        a("s_sub_u32 s44, 6, s44")
        a("s_max_u32 s45, s48, 2")
        a("s_sub_u32 s45, s45, 2")
        a("s_mul_i32 s46, s48, 6")
        a("s_sub_u32 s46, s46, s45")
        a("s_add_u32 s46, s46, s49")
        a("s_lshl_b32 s47, s48, 1")
        a("s_add_u32 s47, s47, s45")
        a("s_add_u32 s47, s47, s49")
        a("s_sub_u32 s47, s47, s44")
        a("s_cmp_ge_u32 s49, s44")
        a("s_cselect_b32 s40, s47, s46")
        a("s_cselect_b32 s41, 1, 0")
    elif o.map1 == "8x1":
        a("s_mov_b32 s39, s42")
        a("s_sub_u32 s47, s43, 22")
        a("s_cmp_ge_u32 s43, 22")
        a("s_cselect_b32 s40, s47, s43")
        a("s_cselect_b32 s41, 1, 0")
    if o.map2 == "4x2":
        a("s_lshr_b32 s44, s42, 1")
        a("s_lshl_b32 s44, s44, 3")
        a("s_and_b32 s45, s43, 7")
        a("s_and_b32 s46, s42, 1")
        a("s_lshl_b32 s46, s46, 2")
        a("s_lshr_b32 s47, s43, 3")
        a("s_add_u32 s42, s44, s45")
        a("s_add_u32 s43, s46, s47")
    elif o.map2 == "8x1":
        a("s_lshl_b32 s42, s42, 2")
        a("s_and_b32 s44, s43, 3")
        a("s_add_u32 s42, s42, s44")
        a("s_lshr_b32 s43, s43, 2")
    a("s_and_b32 s90, s38, 3")
    a("s_waitcnt lgkmcnt(0)")
    stamp_setup(a, o)
    stamp(a, o, 0)
    a("s_cmp_ge_u32 s38, 4")
    a("s_cbranch_scc1 L_loader")
    if o.dspan:
        a("s_cmp_lg_u32 s38, 0")
        a("s_cbranch_scc1 Ld0")
        dmark(a, o, 2, True); dmark(a, o, 3)
        a.label("Ld0")
    warm_setup(a, o)
    warm_skip(a, o, 1)
    warm_stage_any(a, o, 2)
    a("s_cmp_eq_u32 s41, 1")
    a("s_cbranch_scc1 L_ssm")
    p1_ffn(a, o)
    a.label("L_p2c")
    p2(a, o, False)
    a.label("L_ssm")
    p1_ssm(a, o)
    a.label("L_loader")
    p1_loader(a, o)
    p2(a, o, True)
    a.label("L_end")
    a("s_endpgm")
    a.label("L_codeend")
    return a

def warm_setup(a, o):
    if not o.warm:
        return
    a("s_cmp_ge_u32 s90, 2")
    a(f"s_cbranch_scc1 Lw_xb{a.uid()}")
    u = a._uid
    a("s_and_b32 s44, s2, 1")
    a("s_cmp_eq_u32 s44, 0")
    a(f"s_cselect_b32 s94, s{P_W1}, s{P_W3}")
    a(f"s_cselect_b32 s95, s{P_W1+1}, s{P_W3+1}")
    a("s_lshr_b32 s44, s2, 1")
    a("s_mul_i32 s44, s44, 1728")
    a(f"s_mul_i32 s45, s90, {13*64}")
    a("s_add_u32 s44, s44, s45")
    a(f"s_mov_b32 s88, {64*3456}")
    a(f"s_branch Lw_set{u}")
    a.label(f"Lw_xb{u}")
    a("s_cmp_lt_u32 s2, 128")
    a(f"s_cselect_b32 s94, s{P_BRE}, s{P_BIM}")
    a(f"s_cselect_b32 s95, s{P_BRE+1}, s{P_BIM+1}")
    a("s_and_b32 s44, s2, 127")
    a(f"s_mul_i32 s44, s44, {5*1280}")
    a(f"s_mul_i32 s45, s2, {8*1280}")
    a("s_cmp_eq_u32 s90, 2")
    a(f"s_cselect_b32 s94, s{P_X}, s94")
    a(f"s_cselect_b32 s95, s{P_X+1}, s95")
    a("s_cselect_b32 s44, s45, s44")
    a("s_movk_i32 s88, 128")
    a.label(f"Lw_set{u}")
    a("s_add_u32 s94, s94, s44")
    a("s_addc_u32 s95, s95, 0")

def warm_skip(a, o, n):
    if not o.warm:
        return
    a(f"s_mul_i32 s44, s88, {n}")
    a("s_add_u32 s94, s94, s44")
    a("s_addc_u32 s95, s95, 0")

def warm_ops(o, kind):
    if not o.warm:
        return []
    if kind == "w":
        offs = [i * 64 for i in range(14)]
    else:
        offs = [r * 1280 + h * 64 for r in range(8 if kind == "x" else 5) for h in range(2)]
    return [f"s_load_dword s89, s[94:95], {x}" for x in offs] + ["s_add_u32 s94, s94, s88", "s_addc_u32 s95, s95, 0"]

def warm_stage_any(a, o, nst):
    if not o.warm:
        return
    u = a.uid()
    a("s_cmp_ge_u32 s90, 2")
    a(f"s_cbranch_scc1 Lv_xb{u}")
    for _ in range(nst):
        for i in warm_ops(o, "w"): a(i)
    a(f"s_branch Lv_e{u}")
    a.label(f"Lv_xb{u}")
    warm_stage_xb(a, o, nst)
    a.label(f"Lv_e{u}")

def warm_stage_xb(a, o, nst):
    if not o.warm:
        return
    for _ in range(nst):
        u = a.uid()
        ops = warm_ops(o, "x")
        for i in ops[:10]: a(i)
        a("s_cmp_eq_u32 s90, 3")
        a(f"s_cbranch_scc1 Lv_b{u}")
        for i in ops[10:16]: a(i)
        a.label(f"Lv_b{u}")
        for i in ops[16:]: a(i)

def loop_stamp_flush(a, o):
    if o.stamps:
        a("s_add_u32 m0, s52, 8")
        a("v_writelane_b32 v254, s94, m0")
        a("s_add_u32 m0, s52, 20")
        a("v_writelane_b32 v254, s92, m0")

def ring_advance(a, o, stride_sreg, stride, vregs):
    a("s_add_u32 s52, s52, 1")
    a("s_add_u32 s53, s53, 1")
    a("s_cmp_eq_u32 s53, 3")
    a(f"s_cselect_b32 s54, {-2*stride & 0xffffffff:#x}, s{stride_sreg}")
    a("s_cselect_b32 s53, 0, s53")
    for v in vregs:
        a(f"v_add_u32 v{v}, s54, v{v}")
    if o.stamps:
        a("s_memrealtime s[94:95]")
    a("s_barrier")
    if o.stamps:
        a("s_memrealtime s[92:93]")

C_WR = 16; C_ACC = 96; C_H = 176; C_WL = 224
C_RSTEPS = (0, 1, 8, 9)
def c_wsetup(a):
    srd(a, 52, P_WS, W2_SIZE, W2_OFF)
    a("s_mul_i32 s74, s90, 10")
    a("s_add_u32 s74, s74, 54")
    a(f"s_mul_i32 s76, s74, {WK}")
    a(f"s_mul_i32 s77, s43, {WT}")
    a("s_add_u32 s76, s76, s77")
    a("s_add_u32 s77, s76, 4096")
    a("v_lshlrev_b32 v12, 4, v0")
def c_wload(a, k):
    for i in range(5):
        a(f"buffer_load_dwordx4 {vr(C_WR + k*20 + i*4, 4)}, v12, s[52:55], s{76 + (i >> 2)} offen offset:{(i & 3)*1024} sc1")
    if k < 3:
        d = (C_RSTEPS[k+1] - C_RSTEPS[k]) * WK
        a(f"s_add_u32 s76, s76, {d}")
        a(f"s_add_u32 s77, s77, {d}")

def p1_ffn(a, o):
    ACC = 16; FA = 176; FB = 216; VX = 4; VW = 8; VN = 10
    acc = lambda j, mi: ACC + (j * 2 + mi) * 16
    fa = lambda b, j: FA + b * 20 + j * 4
    fb = lambda b, mi: FB + b * 8 + mi * 4
    s0 = slot_of(0) * F_SLOT
    a.c("FFN compute wave: D[f][m] = W^T X^T")
    a("v_and_b32 v1, 31, v0")
    a("v_lshrrev_b32 v2, 5, v0")
    a("v_bfe_u32 v3, v0, 1, 3")
    a("v_xor_b32 v3, v3, v2")
    a("v_lshlrev_b32 v3, 4, v3")
    a("v_lshl_add_u32 v3, v1, 7, v3")
    a("s_lshl_b32 s44, s38, 13")
    a(f"s_add_u32 s44, s44, {s0 + F_XO}")
    a(f"v_add_u32 v{VX}, s44, v3")
    for sub in range(1, 4):
        a(f"v_xor_b32 v{VX+sub}, {sub*32}, v{VX}")
    a("v_bfe_u32 v1, v0, 4, 1")
    a(f"v_mul_u32_u24 v1, {F_UP}, v1")
    a("v_lshlrev_b32 v2, 3, v2")
    a("v_bfe_u32 v3, v0, 2, 2")
    a("v_add_u32 v2, v2, v3")
    a("v_mul_u32_u24 v2, 160, v2")
    a("v_add_u32 v1, v1, v2")
    a("v_and_b32 v2, 1, v0")
    a("v_lshlrev_b32 v2, 4, v2")
    a("v_add_u32 v1, v1, v2")
    a("v_bfe_u32 v2, v0, 1, 1")
    a("v_lshlrev_b32 v2, 3, v2")
    a("v_add_u32 v1, v1, v2")
    a(f"v_add_u32 v{VW}, {s0}, v1")
    a(f"v_mov_b32 v{VN+1}, {NONCE_LDS}")
    for r in range(ACC, ACC + 160):
        a(f"v_mov_b32 v{r}, 0")
    srd(a, 48, P_WS, HP_SIZE, HP_OFF)
    a("v_bfe_u32 v1, v0, 4, 1")
    a("v_lshlrev_b32 v1, 10, v1")
    a("v_lshrrev_b32 v2, 5, v0")
    a("v_lshlrev_b32 v2, 8, v2")
    a("v_and_b32 v3, 15, v0")
    a("v_lshlrev_b32 v3, 4, v3")
    a("v_add3_u32 v9, v1, v2, v3")
    a("s_mov_b32 s52, 0")
    a(f"s_mov_b32 s53, {slot_of(0)}")
    a(f"s_mov_b32 s55, {F_SLOT}")

    def reads(buf, sub):
        r = []
        for mi in range(2):
            r.append(f"ds_read_b128 {vr(fb(buf, mi), 4)}, v{VX+sub} offset:{mi*4096}")
        for j in range(5):
            for half in range(2):
                r.append(f"ds_read_b64_tr_b16 {vr(fa(buf, j)+2*half, 2)}, v{VW} offset:{sub*2560 + half*640 + j*32}")
        return r
    a("s_barrier")
    stamp_clk(a, o, 58); stamp(a, o, 1)
    if o.stamps:
        a("s_mov_b32 s94, s92")
    for r in reads(0, 0):
        a(r)
    a.label("Lf_loop")
    for sub in range(4):
        buf = sub & 1
        nxt = reads(buf ^ 1, (sub + 1) & 3)
        a("s_waitcnt lgkmcnt(0)")
        if sub == 0:
            loop_stamp_flush(a, o)
        mf = [(j, mi) for j in range(5) for mi in range(2)]
        for n, (j, mi) in enumerate(mf):
            a(f"v_mfma_f32_32x32x16_bf16 {vr(acc(j, mi), 16)}, {vr(fa(buf, j), 4)}, {vr(fb(buf, mi), 4)}, {vr(acc(j, mi), 16)}")
            if n == 0 and sub == 3:
                ring_advance(a, o, 55, F_SLOT, [VX, VX+1, VX+2, VX+3, VW])
            if n < 6:
                a(nxt[2 * n]); a(nxt[2 * n + 1])
            if n == 6 and sub == 0:
                a(f"ds_read_b32 v{VN}, v{VN+1}")
    a("s_cmp_lt_u32 s52, 10")
    a("s_cbranch_scc1 Lf_loop")
    a("s_waitcnt lgkmcnt(0)")
    loop_stamp_flush(a, o)
    stamp(a, o, 2); stamp_clk(a, o, 59)
    a(f"v_readfirstlane_b32 s64, v{VN}")
    a(f"s_mov_b32 s56, {NLOG2E:#x}")
    a(f"s_mov_b32 s57, {NLOG2E:#x}")
    a("s_mul_i32 s58, s40, 5")
    a("s_lshl_b32 s59, s39, 2")
    a("s_add_u32 s59, s59, s38")
    a(f"s_mul_i32 s59, s59, {HT}")
    a(f"s_add_u32 s59, s59, {40*HK}")
    c_wsetup(a)
    T = FA
    for j in range(5):
        for k in {1: (0,), 2: (1, 2), 3: (3,)}.get(j, ()) if o.early_w else ():
            c_wload(a, k)
        if j == 3:
            a("s_cmp_eq_u32 s40, 21")
            a("s_cbranch_scc1 Lf_done")
        a(f"s_add_u32 s60, s58, {j}")
        a("s_lshr_b32 s61, s60, 1")
        a("s_lshl_b32 s61, s61, 12")
        a("s_and_b32 s60, s60, 1")
        a("s_lshl_b32 s60, s60, 9")
        a("s_add_u32 s61, s61, s60")
        a("s_add_u32 s62, s61, s59")
        for mi in range(2):
            g = acc(j, mi); u = g + 8
            t = T + ((j * 2 + mi) & 1) * 12
            for p in range(4):
                a(f"v_pk_mul_f32 {vr(t+2*p, 2)}, {vr(g+2*p, 2)}, s[56:57]")
            for p in range(8):
                a(f"v_exp_f32 v{t+p}, v{t+p}")
            for p in range(4):
                a(f"v_pk_mul_f32 {vr(g+2*p, 2)}, {vr(g+2*p, 2)}, {vr(u+2*p, 2)}")
            for p in range(4):
                a(f"v_pk_add_f32 {vr(t+2*p, 2)}, {vr(t+2*p, 2)}, 1.0 op_sel_hi:[1,0]")
            for p in range(8):
                a(f"v_rcp_f32 v{t+p}, v{t+p}")
            a("s_nop 0")
            for p in range(4):
                a(f"v_pk_mul_f32 {vr(g+2*p, 2)}, {vr(g+2*p, 2)}, {vr(t+2*p, 2)}")
            for p in range(4):
                a(f"v_cvt_pk_bf16_f32 v{t+8+p}, v{g+2*p}, v{g+2*p+1}")
            a(f"buffer_store_dwordx4 {vr(t+8, 4)}, v9, s[48:51], s62 offen offset:{mi*2048} {o.hst}")
    a.label("Lf_done")
    stamp(a, o, 3)
    a("s_lshl_b32 s65, s39, 2")
    a("s_add_u32 s65, s65, s38")
    a("s_lshl_b32 s65, s65, 8")
    a("s_lshl_b32 s66, s40, 2")
    a("s_add_u32 s65, s65, s66")
    a("s_mov_b64 s[66:67], 1")
    a("v_mov_b32 v2, 0")

def cmul(a, dr, di, ar, ai, br, bi, t):
    a(f"v_mul_f32 v{t}, v{ar}, v{br}")
    a(f"v_mul_f32 v{t+1}, v{ar}, v{bi}")
    a(f"v_fma_f32 v{t}, -v{ai}, v{bi}, v{t}")
    a(f"v_fma_f32 v{di}, v{ai}, v{br}, v{t+1}")
    a(f"v_mov_b32 v{dr}, v{t}")

def cfma(a, dr, di, ar, ai, br, bi, cr, ci):
    a(f"v_fma_f32 v{dr}, v{ar}, v{br}, v{cr}")
    a(f"v_fma_f32 v{di}, v{ar}, v{bi}, v{ci}")
    a(f"v_fma_f32 v{dr}, -v{ai}, v{bi}, v{dr}")
    a(f"v_fma_f32 v{di}, v{ai}, v{br}, v{di}")

def p1_ssm(a, o):
    ACC = 16; FA = 176; FB = 208; VX = 4; VB = 8
    LAM = 144; L32 = 146; L256 = 148; C2 = 150; TMP = 152; VN = 14
    PW = 224
    acc = lambda j, c: ACC + (j * 2 + c) * 16
    fa = lambda b, j: FA + b * 16 + j * 4
    fb = lambda b, c: FB + b * 8 + c * 4
    s0 = slot_of(0) * S_SLOT
    a.c("SSM compute wave: D[t][p] = X B^T")
    a("s_lshr_b32 s44, s38, 1")
    a("s_and_b32 s45, s38, 1")
    srd(a, 48, P_LRE, 1280)
    srd(a, 52, P_LIM, 1280)
    srd(a, 56, P_LDT, 1280)
    a("s_lshl_b32 s46, s40, 6")
    a("s_lshl_b32 s47, s45, 5")
    a("s_add_u32 s46, s46, s47")
    a("v_and_b32 v1, 31, v0")
    a("v_add_u32 v2, s46, v1")
    a("v_lshlrev_b32 v2, 1, v2")
    a(f"buffer_load_ushort v{TMP}, v2, s[48:51], 0 offen")
    a(f"buffer_load_ushort v{TMP+1}, v2, s[52:55], 0 offen")
    a(f"buffer_load_ushort v{TMP+2}, v2, s[56:59], 0 offen")
    a("v_bfe_u32 v2, v0, 2, 1")
    a("v_lshlrev_b32 v2, 6, v2")
    a("v_and_b32 v3, 1, v0")
    a("v_lshl_add_u32 v2, v3, 5, v2")
    a(f"v_bfe_u32 v{VX}, v0, 1, 1")
    a(f"v_add_u32 v2, v2, v{VX}")
    a(f"v_bfe_u32 v{VX}, v0, 3, 2")
    a(f"v_lshl_add_u32 v2, v{VX}, 1, v2")
    a(f"v_lshl_or_b32 v3, v3, 2, v{VX}")
    a(f"v_lshrrev_b32 v{VX}, 5, v0")
    a(f"v_xor_b32 v3, v3, v{VX}")
    a("v_lshlrev_b32 v3, 4, v3")
    a("v_lshl_add_u32 v3, v2, 7, v3")
    a("s_lshl_b32 s47, s44, 14")
    a(f"s_add_u32 s47, s47, {s0 + S_XO}")
    a(f"v_add_u32 v{VX}, s47, v3")
    for sub in range(1, 4):
        a(f"v_xor_b32 v{VX+sub}, {sub*32}, v{VX}")
    a("v_lshrrev_b32 v2, 5, v0")
    a("v_bfe_u32 v3, v0, 1, 3")
    a("v_xor_b32 v3, v3, v2")
    a("v_lshlrev_b32 v3, 4, v3")
    a("v_lshl_add_u32 v3, v1, 7, v3")
    a("s_lshl_b32 s47, s45, 12")
    a(f"s_add_u32 s47, s47, {s0}")
    a(f"v_add_u32 v{VB}, s47, v3")
    for sub in range(1, 4):
        a(f"v_xor_b32 v{VB+sub}, {sub*32}, v{VB}")
    a(f"v_mov_b32 v{VN+1}, {NONCE_LDS}")
    for r in range(ACC, ACC + 128):
        a(f"v_mov_b32 v{r}, 0")
    a("s_waitcnt vmcnt(0)")
    t = TMP
    a(f"v_lshlrev_b32 v{t}, 16, v{t}")
    a(f"v_lshlrev_b32 v{t+1}, 16, v{t+1}")
    a(f"v_lshlrev_b32 v{t+2}, 16, v{t+2}")
    a(f"v_mul_f32 v{t+2}, {LOG2E:#x}, v{t+2}")
    a(f"v_exp_f32 v{t+2}, v{t+2}")
    a("s_nop 0")
    a(f"v_cvt_pk_bf16_f32 v{t+2}, v{t+2}, v{t+2}")
    a(f"v_lshlrev_b32 v{t+2}, 16, v{t+2}")
    a(f"v_mul_f32 v{t+3}, v{t+2}, v{t}")
    a(f"v_mul_f32 v{t+4}, v{t+2}, v{t+1}")
    a(f"v_mul_f32 v{t+3}, {LOG2E:#x}, v{t+3}")
    a(f"v_exp_f32 v{t+3}, v{t+3}")
    a(f"v_mul_f32 v{t+4}, 0.15915494, v{t+4}")
    a(f"v_rndne_f32 v{t+5}, v{t+4}")
    a(f"v_sub_f32 v{t+4}, v{t+4}, v{t+5}")
    a(f"v_cos_f32 v{t+5}, v{t+4}")
    a(f"v_sin_f32 v{t+6}, v{t+4}")
    a("s_nop 0")
    a(f"v_mul_f32 v{LAM}, v{t+3}, v{t+5}")
    a(f"v_mul_f32 v{LAM+1}, v{t+3}, v{t+6}")
    a(f"v_mul_f32 v{t+3}, v{t}, v{t}")
    a(f"v_fma_f32 v{t+3}, v{t+1}, v{t+1}, v{t+3}")
    a(f"v_rcp_f32 v{t+3}, v{t+3}")
    a(f"v_add_f32 v{t+4}, -1.0, v{LAM}")
    a(f"v_mul_f32 v{t+5}, v{t+4}, v{t}")
    a(f"v_fma_f32 v{t+5}, v{LAM+1}, v{t+1}, v{t+5}")
    a(f"v_mul_f32 v{t+6}, v{LAM+1}, v{t}")
    a(f"v_fma_f32 v{t+6}, -v{t+4}, v{t+1}, v{t+6}")
    a(f"v_add_f32 v{t+3}, v{t+3}, v{t+3}")
    a(f"v_mul_f32 v{C2}, v{t+5}, v{t+3}")
    a(f"v_mul_f32 v{C2+1}, v{t+6}, v{t+3}")
    cmul(a, L32, L32 + 1, LAM, LAM + 1, LAM, LAM + 1, t)
    for _ in range(4):
        cmul(a, L32, L32 + 1, L32, L32 + 1, L32, L32 + 1, t)
    cmul(a, L256, L256 + 1, L32, L32 + 1, L32, L32 + 1, t)
    for _ in range(2):
        cmul(a, L256, L256 + 1, L256, L256 + 1, L256, L256 + 1, t)
    SEL = TMP + 8
    a(f"v_mov_b32 v{PW}, v{C2}"); a(f"v_mov_b32 v{PW+1}, v{C2+1}")
    for s in range(1, 8):
        a(f"v_mul_f32 v{PW+2*s}, v{PW+2*s-2}, v{L32}")
        a(f"v_mul_f32 v{PW+2*s+1}, v{PW+2*s-2}, v{L32+1}")
        a(f"v_fma_f32 v{PW+2*s}, -v{PW+2*s-1}, v{L32+1}, v{PW+2*s}")
        a(f"v_fma_f32 v{PW+2*s+1}, v{PW+2*s-1}, v{L32}, v{PW+2*s+1}")
    a("s_cmp_eq_u32 s44, 0")
    a("s_cselect_b64 s[68:69], 0, -1")
    a("s_mov_b32 s70, 0")
    a("s_mov_b32 s71, -1")
    def select(src, dst):
        for par in range(2):
            for c in range(2):
                r = lambda s: src + 2 * s + c
                a(f"v_cndmask_b32 v{TMP+16}, v{r(par)}, v{r(2+par)}, s[70:71]")
                a(f"v_cndmask_b32 v{TMP+17}, v{r(4+par)}, v{r(6+par)}, s[70:71]")
                a(f"v_cndmask_b32 v{dst+2*c+par}, v{TMP+16}, v{TMP+17}, s[68:69]")
    select(PW, SEL + 4)
    a("s_mov_b32 s52, 0")
    a(f"s_mov_b32 s53, {slot_of(0)}")
    a(f"s_mov_b32 s55, {S_SLOT}")

    def reads(buf, sub):
        r = []
        r.append(f"ds_read_b128 {vr(fb(buf, 0), 4)}, v{VB+sub}")
        r.append(f"ds_read_b128 {vr(fa(buf, 0), 4)}, v{VX+sub}")
        r.append(f"ds_read_b128 {vr(fb(buf, 1), 4)}, v{VB+sub} offset:8192")
        for j in range(1, 4):
            r.append(f"ds_read_b128 {vr(fa(buf, j), 4)}, v{VX+(sub ^ ((j & 1) << 1))} offset:{j*1024}")
        return r
    a("s_barrier")
    stamp_clk(a, o, 58); stamp(a, o, 1)
    if o.stamps:
        a("s_mov_b32 s94, s92")
    for r in reads(0, 0):
        a(r)
    a.label("Ls_loop")
    for sub in range(4):
        buf = sub & 1
        nxt = reads(buf ^ 1, (sub + 1) & 3)
        a("s_waitcnt lgkmcnt(0)")
        if sub == 0:
            loop_stamp_flush(a, o)
        mf = [(j, c) for j in range(4) for c in range(2)]
        for n, (j, c) in enumerate(mf):
            a(f"v_mfma_f32_32x32x16_bf16 {vr(acc(j, c), 16)}, {vr(fa(buf, j), 4)}, {vr(fb(buf, c), 4)}, {vr(acc(j, c), 16)}")
            if n == 0 and sub == 3:
                ring_advance(a, o, 55, S_SLOT, range(VX, VX + 8))
            if n < 3:
                a(nxt[2 * n]); a(nxt[2 * n + 1])
            if n == 3 and sub == 0:
                a(f"ds_read_b32 v{VN}, v{VN+1}")
    a("s_cmp_lt_u32 s52, 10")
    a("s_cbranch_scc1 Ls_loop")
    a("s_waitcnt lgkmcnt(0)")
    loop_stamp_flush(a, o)
    stamp(a, o, 2); stamp_clk(a, o, 59)
    a(f"v_readfirstlane_b32 s64, v{VN}")
    a("v_and_b32 v1, 31, v0")
    a("s_lshl_b32 s47, s45, 5")
    a("v_add_u32 v1, s47, v1")
    a("v_lshlrev_b32 v2, 6, v1")
    a(f"v_add_u32 v2, {S_AGG}, v2")
    a("v_lshrrev_b32 v3, 5, v0")
    a("v_lshl_add_u32 v3, v3, 4, v2")
    a("s_lshl_b32 s47, s44, 5")
    a("v_add_u32 v3, s47, v3")
    srd(a, 48, P_WS, AGG_SIZE, AGG_OFF)
    LR = vr(LAM, 2)
    def pk_lr(d, x, y):
        a(f"v_pk_fma_f32 {vr(d, 2)}, {LR}, {vr(x, 2)}, {vr(y, 2)} op_sel_hi:[0,1,1]")
    def pk_li(d, x, y, neg):
        n = " neg_lo:[1,0,0] neg_hi:[1,0,0]" if neg else ""
        a(f"v_pk_fma_f32 {vr(d, 2)}, {LR}, {vr(x, 2)}, {vr(y, 2)} op_sel:[1,0,0] op_sel_hi:[1,1,1]{n}")
    ure = lambda n: acc(n >> 3, 0) + 2 * (n & 7)
    uim = lambda n: acc(n >> 3, 1) + 2 * (n & 7)
    S = [TMP, TMP + 4]
    pr, pi = ure(0), uim(0)
    for n in range(1, 32):
        d = S[n & 1]
        pk_lr(d, pr, ure(n)); pk_lr(d + 2, pi, uim(n))
        pk_li(d, pi, d, True); pk_li(d + 2, pr, d + 2, False)
        pr, pi = d, d + 2
    Sf = S[31 & 1]
    a(f"ds_write_b128 v3, {vr(Sf, 4)}")
    a("s_waitcnt lgkmcnt(0)")
    a("s_barrier")
    AG = FA
    for q in range(4):
        a(f"ds_read_b128 {vr(AG+4*q, 4)}, v2 offset:{q*16}")
    are = lambda s: AG + 4 * (s >> 1) + (s & 1)
    aim = lambda s: AG + 4 * (s >> 1) + 2 + (s & 1)
    PF = FA + 16
    a("v_lshlrev_b32 v3, 4, v1")
    a("s_lshl_b32 s46, s40, 13")
    a("s_lshl_b32 s47, s39, 10")
    a("s_add_u32 s47, s47, s46")
    a(f"v_mov_b32 v{PF}, 0"); a(f"v_mov_b32 v{PF+1}, 0")
    a(f"v_mov_b32 v{TMP+1}, s64"); a(f"v_mov_b32 v{TMP+3}, s64")
    a("s_waitcnt lgkmcnt(0)")
    a(f"v_mov_b32 v{PF+2}, v{are(0)}"); a(f"v_mov_b32 v{PF+3}, v{aim(0)}")
    for s in range(1, 7):
        cfma(a, PF + 2 * (s + 1), PF + 2 * (s + 1) + 1, L32, L32 + 1, PF + 2 * s, PF + 2 * s + 1, are(s), aim(s))
    cfma(a, TMP, TMP + 2, L32, L32 + 1, PF + 14, PF + 15, are(7), aim(7))
    a("s_cmp_lg_u32 s44, 0")
    a("s_cbranch_scc1 Ls_nopub")
    a("s_mov_b32 exec_hi, 0")
    a(f"buffer_store_dwordx4 {vr(TMP, 4)}, v3, s[48:51], s47 offen sc1")
    a("s_mov_b64 exec, -1")
    a.label("Ls_nopub")
    stamp(a, o, 3)
    select(PF, SEL)
    CC = vr(C2, 2)
    def scale(re, im):
        a(f"v_pk_mul_f32 {vr(TMP+4, 2)}, {CC}, {vr(re, 2)} op_sel:[1,0] op_sel_hi:[1,1]")
        a(f"v_pk_mul_f32 {vr(re, 2)}, {CC}, {vr(re, 2)} op_sel_hi:[0,1]")
        a(f"v_pk_fma_f32 {vr(re, 2)}, {CC}, {vr(im, 2)}, {vr(re, 2)} op_sel:[1,0,0] op_sel_hi:[1,1,1] neg_lo:[1,0,0] neg_hi:[1,0,0]")
        a(f"v_pk_fma_f32 {vr(im, 2)}, {CC}, {vr(im, 2)}, {vr(TMP+4, 2)} op_sel_hi:[0,1,1]")
    scale(SEL, SEL + 2)
    for n in range(32):
        scale(ure(n), uim(n))
    stamp(a, o, 4)
    CR = TMP + 16
    a("s_cmp_eq_u32 s39, 0")
    a("s_cbranch_scc1 Ls_nocarry")
    GL = FA
    a("s_mov_b32 s72, 0")
    a("s_add_u32 s47, s46, 4096")
    a.label("Ls_poll")
    for i in range(7):
        a(f"buffer_load_dwordx4 {vr(GL+4*i, 4)}, v3, s[48:51], s{46 + (i >> 2)} offen offset:{(i & 3)*1024} sc1")
    a("s_waitcnt vmcnt(0)")
    a(f"v_mov_b32 v{CR+2}, 0"); a(f"v_mov_b32 v{CR+3}, 0")
    for i in range(7):
        a(f"v_cmp_ne_u32 vcc, s64, v{GL+4*i+1}")
        a(f"v_cmp_ne_u32 s[66:67], s64, v{GL+4*i+3}")
        a(f"v_mov_b32 v{CR}, v{CR+2}"); a(f"v_mov_b32 v{CR+1}, v{CR+3}")
        a("s_or_b64 vcc, vcc, s[66:67]")
        a("s_cbranch_scc1 Ls_retry")
        cfma(a, CR + 2, CR + 3, L256, L256 + 1, CR, CR + 1, GL + 4 * i, GL + 4 * i + 2)
        if i < 6:
            a(f"s_cmp_eq_u32 s39, {i+1}")
            a("s_cbranch_scc1 Ls_gotcarry")
    a("s_branch Ls_gotcarry")
    a.label("Ls_retry")
    a("s_sleep 2")
    a("s_add_u32 s72, s72, 1")
    a(f"s_cmp_lt_u32 s72, {SPIN_MAX:#x}")
    a("s_cbranch_scc1 Ls_poll")
    a.label("Ls_gotcarry")
    CY = vr(CR + 2, 2)
    a(f"v_pk_fma_f32 {vr(SEL, 2)}, {CY}, {vr(SEL+4, 2)}, {vr(SEL, 2)} op_sel_hi:[0,1,1]")
    a(f"v_pk_fma_f32 {vr(SEL+2, 2)}, {CY}, {vr(SEL+6, 2)}, {vr(SEL+2, 2)} op_sel_hi:[0,1,1]")
    a(f"v_pk_fma_f32 {vr(SEL, 2)}, {CY}, {vr(SEL+6, 2)}, {vr(SEL, 2)} op_sel:[1,0,0] op_sel_hi:[1,1,1] neg_lo:[1,0,0] neg_hi:[1,0,0]")
    a(f"v_pk_fma_f32 {vr(SEL+2, 2)}, {CY}, {vr(SEL+4, 2)}, {vr(SEL+2, 2)} op_sel:[1,0,0] op_sel_hi:[1,1,1]")
    a.label("Ls_nocarry")
    stamp(a, o, 5)
    TS = 144
    a(f"s_mul_i32 s47, s38, {64*TS}")
    a(f"s_add_u32 s47, s47, {S_TR}")
    a("v_and_b32 v1, 31, v0")
    a(f"v_mul_u32_u24 v1, {TS}, v1")
    a("v_lshrrev_b32 v2, 5, v0")
    a("v_lshl_add_u32 v1, v2, 6, v1")
    a("v_add_u32 v1, s47, v1")
    a("v_lshrrev_b32 v2, 4, v0")
    a("v_lshlrev_b32 v2, 3, v2")
    a("v_bfe_u32 v3, v0, 2, 2")
    a("v_add_u32 v2, v2, v3")
    a(f"v_mul_u32_u24 v2, {TS}, v2")
    a("v_and_b32 v3, 3, v0")
    a("v_lshl_add_u32 v2, v3, 3, v2")
    a("v_add_u32 v2, s47, v2")
    a("v_lshlrev_b32 v3, 4, v0")
    srd(a, 48, P_WS, HP_SIZE, HP_OFF)
    a("s_lshl_b32 s46, s40, 1")
    a("s_add_u32 s73, s46, s45")
    a("s_lshl_b32 s46, s73, 13")
    a("s_lshl_b32 s47, s39, 2")
    a("s_lshl_b32 s56, s44, 1")
    a("s_add_u32 s47, s47, s56")
    a(f"s_mul_i32 s47, s47, {HT}")
    a("s_add_u32 s46, s46, s47")
    a(f"s_add_u32 s47, s46, {HT}")
    a(f"s_add_u32 s56, s46, {HK}")
    a(f"s_add_u32 s57, s47, {HK}")
    c_wsetup(a)
    pr, pi = SEL, SEL + 2
    PKD = FA; OUT = FA + 32
    def flush_round(rd):
        a("s_waitcnt lgkmcnt(0)")
        for c in range(2):
            for sg in range(4):
                d = OUT + (c * 4 + sg) * 4
                a(f"ds_read_b64_tr_b16 {vr(d, 2)}, v2 offset:{c*32*TS + sg*32}")
                a(f"ds_read_b64_tr_b16 {vr(d+2, 2)}, v2 offset:{c*32*TS + 4*TS + sg*32}")
    def store_round(rd):
        a("s_waitcnt lgkmcnt(0)")
        for c in range(2):
            for sg in range(4):
                d = OUT + (c * 4 + sg) * 4
                mi = 2 * sg + rd
                so = (46, 47, 56, 57)[c * 2 + (mi >> 2)]
                a(f"buffer_store_dwordx4 {vr(d, 4)}, v3, s[48:51], s{so} offen offset:{(mi & 3)*1024} {o.hst}")
    for n in range(32):
        r, i = ure(n), uim(n)
        pk_lr(r, pr, r); pk_lr(i, pi, i)
        pk_li(r, pi, r, True); pk_li(i, pr, i, False)
        pr, pi = r, i
        if n == 17:
            flush_round(0)
        if n == 21:
            store_round(0)
        if n in (10, 25, 28) and o.early_w:
            c_wload(a, (10, 25, 28).index(n))
        if (n & 7) == 7:
            j = n >> 3
            st = PKD + (j & 1) * 16
            for c in range(2):
                sg = "-" if c else ""
                for par in range(2):
                    for e in range(4):
                        b = acc(j, c) + par
                        a(f"v_cvt_pk_bf16_f32 v{st+c*8+par*4+e}, {sg}v{b+4*e}, {sg}v{b+4*e+2}")
                    a(f"ds_write_b128 v1, {vr(st+c*8+par*4, 4)} offset:{c*32*TS + par*32 + (j & 1)*16}")
    flush_round(1)
    if o.early_w:
        c_wload(a, 3)
    store_round(1)
    stamp(a, o, 6)
    a("s_lshl_b32 s65, s39, 2")
    a("s_lshl_b32 s66, s44, 1")
    a("s_add_u32 s65, s65, s66")
    a("s_lshl_b32 s65, s65, 8")
    a("s_lshl_b32 s66, s73, 2")
    a("s_add_u32 s65, s65, s66")
    a("s_add_u32 s65, s65, 88")
    a("s_mov_b64 s[66:67], 3")
    a("v_lshlrev_b32 v2, 8, v0")
    a("s_branch L_p2c")

L_ACC = 6; L_H = 86; L_W = 134
def p2_prefetch(a, o, vm, cuts, wait9, hook=None):
    if wait9:
        a(f"v_mov_b32 v2, {NONCE_LDS}")
        a("ds_read_b32 v2, v2")
    srd(a, 48, P_WS, HP_SIZE, HP_OFF)
    srd(a, 52, P_WS, W2_SIZE, W2_OFF)
    a("s_mul_i32 s74, s90, 14")
    a("s_min_u32 s74, s74, 40")
    a(f"s_mul_i32 s66, s42, {HT}")
    a(f"s_add_u32 s66, s66, {40*HK}")
    a(f"s_mul_i32 s67, s43, {WT}")
    a(f"s_add_u32 s67, s67, {40*WK}")
    a("s_cmp_lt_u32 s90, 3")
    a("s_cselect_b32 s50, s66, s50")
    a("s_cselect_b32 s54, s67, s54")
    srd(a, 56, P_WS, W2_SIZE, W2_OFF)
    if wait9:
        a("s_waitcnt lgkmcnt(0)")
        a("v_readfirstlane_b32 s64, v2")
    a("v_lshlrev_b32 v1, 4, v0")
    a(f"s_mul_i32 s76, s74, {WK}")
    a(f"s_mul_i32 s66, s43, {WT}")
    a("s_add_u32 s76, s76, s66")
    a("s_add_u32 s77, s76, 4096")
    a("s_mul_i32 s68, s90, 10")
    a("s_add_u32 s68, s68, 56")
    a(f"s_mul_i32 s68, s68, {WK}")
    a("s_add_u32 s68, s68, s66")
    a("s_add_u32 s70, s68, 4096")
    a("s_mul_i32 s69, s90, 5120")
    ops = []
    for n in range(6):
        for i in range(5):
            post = [f"s_add_u32 s76, s76, {WK}", f"s_add_u32 s77, s77, {WK}"] if i == 4 else []
            ops.append(([], f"buffer_load_dwordx4 {vr(L_W + n*20 + i*4, 4)}, v1, s[52:55], s{76 + (i >> 2)} offen offset:{(i & 3)*1024} sc1", post, 0))
    for n in range(6):
        for i in range(5):
            pre = [f"s_add_u32 m0, s69, {P2W + n*20480 + (i >> 2)*4096}", "s_nop 0"] if i in (0, 4) else []
            post = [f"s_add_u32 s68, s68, {WK}", f"s_add_u32 s70, s70, {WK}"] if i == 4 else []
            ops.append((pre, f"buffer_load_dwordx4 v1, s[56:59], s{68 + 2*(i >> 2)} offen offset:{(i & 3)*1024} sc1 lds", post, 9 if n < 4 else 10))
    def run(lo, hi, passed):
        for pre, ins, post, need in ops[lo:hi]:
            assert need <= passed
            for p in pre: a(p)
            if passed == 10 and o.throttle:
                a(f"s_waitcnt vmcnt({o.throttle - 1})")
            vm.op(ins, "pf")
            for p in post: a(p)
    run(0, cuts[0], 7)
    stamp(a, o, 16)
    a("s_barrier")
    stamp(a, o, 28)
    if hook: hook(8)
    run(cuts[0], cuts[1], 8)
    if wait9:
        vm.wait(("st", 9))
    stamp(a, o, 17)
    a("s_barrier")
    stamp(a, o, 29)
    if hook: hook(9)
    run(cuts[1], cuts[2], 9)
    stamp(a, o, 18)
    a("s_barrier")
    stamp(a, o, 30)
    run(cuts[2], cuts[3], 10)
    a("s_cmp_eq_u32 s41, 0")
    a(f"s_cbranch_scc1 Ll_nox{int(wait9)}")
    a("s_barrier")
    a.label(f"Ll_nox{int(wait9)}")
    run(cuts[3], 60, 10)
    if hook: hook(10)
    vm.drain()
    stamp(a, o, 6)

def p1_loader(a, o):
    a("s_cmp_ge_u32 s90, 2")
    a("s_cbranch_scc1 L_helper")
    VXO = 4; VWO = 20; VE = 30
    vm = VM(a)
    srd(a, 48, P_X, 2048 * 1280)
    a("v_lshrrev_b32 v1, 3, v0")
    a("v_and_b32 v2, 7, v0")
    a("s_lshl_b32 s46, s39, 8")
    a("s_lshl_b32 s47, s90, 7")
    a("s_add_u32 s46, s46, s47")
    a("s_mul_i32 s46, s46, 1280")
    a("v_mul_u32_u24 v3, 1280, v1")
    a(f"v_lshrrev_b32 v{VE}, 1, v1")
    a(f"v_xor_b32 v{VE}, v{VE}, v2")
    a(f"v_lshlrev_b32 v{VE}, 4, v{VE}")
    a(f"v_xor_b32 v{VE+1}, 64, v{VE}")
    a(f"v_add_u32 v{VE}, v{VE}, v3")
    a(f"v_add_u32 v{VE+1}, v{VE+1}, v3")
    a("s_cmp_eq_u32 s41, 1")
    a("s_cbranch_scc1 Ll_ssm")
    for ssm in (0, 1):
        if ssm:
            a.label("Ll_ssm")
        for i in range(16):
            bit = (i & 1) ^ ((i >> 2) & 1 if ssm else 0)
            a(f"s_add_u32 s47, s46, {i*8*1280 - (i & 3)*1024}")
            a(f"v_add_u32 v{VXO+i}, s47, v{VE+bit}")
        a("s_cmp_eq_u32 s90, 0")
        if not ssm:
            a(f"s_cselect_b32 s52, s{P_W1}, s{P_W3}")
            a(f"s_cselect_b32 s53, s{P_W1+1}, s{P_W3+1}")
            a(f"s_mov_b32 s54, {640*3456}")
            a("s_mul_i32 s47, s40, 160")
            for i in range(5):
                a(f"v_add_u32 v2, {64*i}, v0")
                a("v_mul_u32_u24 v3, 6554, v2")
                a("v_lshrrev_b32 v3, 16, v3")
                a("v_mul_u32_u24 v1, 10, v3")
                a("v_sub_u32 v2, v2, v1")
                a("v_mul_u32_u24 v3, 3456, v3")
                a("v_lshl_add_u32 v3, v2, 4, v3")
                a("v_add_u32 v3, s47, v3")
                a(f"v_subrev_u32 v{VWO+i}, {(i & 3)*1024}, v3")
                a(f"v_add_u32 v{VWO+5+i}, {32*3456 - ((i+5) & 3)*1024}, v3")
            a(f"s_mul_i32 s75, s90, {F_UP}")
            a("s_add_u32 s78, s75, 8192")
            a("s_lshl_b32 s81, s90, 14")
            a(f"s_add_u32 s81, s81, {F_XO}")
            for k in (1, 2):
                a(f"s_add_u32 s{75+k}, s75, {k*F_SLOT}")
                a(f"s_add_u32 s{78+k}, s78, {k*F_SLOT}")
                a(f"s_add_u32 s{81+k}, s81, {k*F_SLOT}")
            a(f"s_mov_b32 s84, {64*3456}")
            a("s_branch Ll_go")
        else:
            a(f"s_cselect_b32 s52, s{P_BRE}, s{P_BIM}")
            a(f"s_cselect_b32 s53, s{P_BRE+1}, s{P_BIM+1}")
            a(f"s_mov_b32 s54, {640*1280}")
            a(f"s_mul_i32 s46, s40, {64*1280}")
            for i in range(8):
                a(f"s_add_u32 s47, s46, {i*8*1280 - (i & 3)*1024}")
                a(f"v_add_u32 v{VWO+i}, s47, v{VE+(i & 1)}")
            a(f"v_mov_b32 v{VWO+8}, 0x40000000")
            a(f"v_mov_b32 v{VWO+9}, 0x40000000")
            a("s_lshl_b32 s75, s90, 13")
            a("s_lshl_b32 s81, s90, 14")
            a(f"s_add_u32 s81, s81, {S_XO}")
            for k in (1, 2):
                a(f"s_add_u32 s{75+k}, s75, {k*S_SLOT}")
                a(f"s_add_u32 s{81+k}, s81, {k*S_SLOT}")
            a("s_lshl_b32 s78, s90, 11")
            a(f"s_add_u32 s78, s78, {S_DUMMY}")
            a("s_mov_b32 s79, s78")
            a("s_mov_b32 s80, s78")
            a("s_movk_i32 s84, 128")
    a.label("Ll_go")
    a("s_mov_b32 s55, 0x20000")
    a("s_mov_b32 s85, 0")
    def issue_list(stage):
        sl = slot_of(stage)
        r = []
        for i in range(16):
            pre = []
            if i == 0:
                pre.append(f"s_movk_i32 s86, {stage*128}")
            if i % 4 == 0:
                pre += [f"s_add_u32 m0, s{81+sl}, {(i >> 2)*4096}", "s_nop 0"]
            r.append((pre, f"buffer_load_dwordx4 v{VXO+i}, s[48:51], s86 offen offset:{(i & 3)*1024} lds"))
        for i in range(10):
            pre = []
            if i % 4 == 0:
                pre = [f"s_add_u32 m0, s{75+sl}, {(i >> 2)*4096}" if i < 8 else f"s_mov_b32 m0, s{78+sl}", "s_nop 0"]
            r.append((pre, f"buffer_load_dwordx4 v{VWO+i}, s[52:55], s85 offen offset:{(i & 3)*1024} lds"))
        return r
    def issue(stage, lo=0, hi=26, extra=()):
        extra = list(extra)
        for pre, ins in issue_list(stage)[lo:hi]:
            for p in pre:
                a(p)
            vm.op(ins, ("st", stage))
            if extra:
                a(extra.pop(0))
                if extra and extra[0].startswith("s_addc"):
                    a(extra.pop(0))
        assert not extra
        if hi == 26:
            a("s_add_u32 s85, s85, s84")
    def bar(s):
        vm.wait(("st", s))
        stamp(a, o, 8 + s)
        a("s_barrier")
        stamp(a, o, 20 + s)
    wo = lambda: warm_ops(o, "w")
    issue(0)
    warm_setup(a, o); warm_skip(a, o, 3)
    issue(1, 0, 16, wo()); bar(0)
    issue(1, 16); issue(2, 0, 16, wo()); bar(1)
    issue(2, 16); issue(3, 0, 16, wo()); bar(2)
    issue(3, 16); issue(4, 0, 20, wo()); bar(3)
    issue(4, 20); issue(5, extra=wo())
    for s in range(4, 8):
        bar(s); issue(s + 2, extra=wo() if s < 6 else ())
    vm.wait(("st", 8))
    p2_prefetch(a, o, vm, o.cuts_l, True)
    a("s_branch L_p2l")

    a.label("L_helper")
    a(f"s_setprio {o.hprio}")
    vm = VM(a)
    GWF, XF, GA = 40, 120, 128
    RJ, OJ, O2 = (134, 182), (150, 198), 166
    if o.codepf:
        a("s_getpc_b64 s[56:57]")
        a.label("Lpc")
        a(f"s_sub_u32 s56, s56, Lpc-{NAME}_kernel")
        a("s_subb_u32 s57, s57, 0")
        a(f"s_mov_b32 s58, L_codeend-{NAME}_kernel")
        a("s_mov_b32 s59, 0x20000")
        a("s_lshr_b32 s66, s2, 3")
        a("s_lshl_b32 s66, s66, 1")
        a("s_add_u32 s66, s66, s90")
        a("s_sub_u32 s66, s66, 2")
        a("s_lshl_b32 s66, s66, 10")
        a("v_lshlrev_b32 v21, 4, v0")
        a("buffer_load_dwordx4 v[24:27], v21, s[56:59], s66 offen")
    srd(a, 60, P_DBG, 256)
    a("v_mov_b32 v19, 0")
    a("s_lshl_b32 s65, s2, 2")
    a("s_lshl_b32 s66, s90, 1")
    a("s_add_u32 s65, s65, s66")
    a("s_sub_u32 s65, s65, 4")
    a("s_cmp_lg_u32 s65, 0")
    a("s_cbranch_scc1 Lh_nononce")
    a("s_memrealtime s[66:67]")
    a("s_waitcnt lgkmcnt(0)")
    a("s_or_b32 s66, s66, 1")
    a("v_mov_b32 v20, s66")
    a("s_mov_b64 exec, 1")
    a("buffer_store_dword v20, v19, s[60:63], 0 offen sc1")
    a("s_mov_b64 exec, -1")
    a.label("Lh_nononce")
    warm_setup(a, o); warm_skip(a, o, 3)
    warm_stage_xb(a, o, 1)
    srd(a, 52, P_GW, 1280)
    a("v_lshlrev_b32 v21, 4, v0")
    a("v_lshrrev_b32 v6, 4, v0")
    a("v_and_b32 v7, 15, v0")
    a("v_lshlrev_b32 v5, 4, v6")
    a("s_lshl_b32 s66, s41, 4")
    a("s_add_u32 s66, s66, s40")
    a("s_cmp_eq_u32 s90, 3")
    a("s_cselect_b32 s73, s66, 16")
    a("s_cmp_ge_u32 s73, 16")
    a("s_cbranch_scc1 Lh_nogw")
    for k in range(20):
        a(f"buffer_load_dwordx4 {vr(GWF+4*k, 4)}, v5, s[52:55], 0 offen offset:{k*64}")
    a.label("Lh_nogw")
    a("v_mul_u32_u24 v8, 1280, v7")
    a("v_lshl_add_u32 v8, v6, 4, v8")
    a(f"v_mul_u32_u24 v9, {8*1280}, v6")
    a("v_and_b32 v10, 3, v0")
    a("v_lshl_add_u32 v9, v10, 5, v9")
    a("v_bfe_u32 v10, v0, 2, 2")
    a("v_lshl_add_u32 v9, v10, 3, v9")
    a("v_bfe_u32 v10, v0, 1, 3")
    a("v_xor_b32 v10, v10, v6")
    a("v_lshlrev_b32 v10, 4, v10")
    a("v_lshl_add_u32 v10, v7, 7, v10")
    a("s_and_b32 s66, s40, 15")
    a("s_lshl_b32 s66, s66, 11")
    a(f"s_add_u32 s66, s66, {F_XO}")
    a("v_add_u32 v10, s66, v10")
    for k in range(3):
        a(f"v_add_u32 v{12+2*k}, {k*F_SLOT}, v10")
        a(f"v_xor_b32 v{13+2*k}, 64, v{12+2*k}")
    for k in range(4):
        a(f"v_mov_b32 v{GA+k}, 0")
    a("s_mul_i32 s66, s65, 6554")
    a("s_lshr_b32 s66, s66, 16")
    a("s_mul_i32 s67, s66, 10")
    a("s_sub_u32 s67, s65, s67")
    a(f"s_mul_i32 s87, s66, {WK}")
    a("s_cmp_ge_u32 s66, 94")
    a("s_cselect_b32 s87, 0x40000000, s87")
    for t in range(8):
        a("s_lshl_b32 s68, s67, 2")
        a(f"s_add_u32 s68, s68, {t}")
        a("s_mul_i32 s69, s68, 52")
        a("s_lshr_b32 s69, s69, 8")
        a(f"s_mul_i32 s70, s69, {WT - 5120}")
        a("s_lshl_b32 s68, s68, 10")
        a("s_add_u32 s68, s68, s70")
        a(f"s_add_u32 s{76+t}, s68, s87")
    warm_stage_xb(a, o, 1)
    def gstep(s):
        sl = slot_of(s)
        a(f"ds_read_b128 {vr(XF, 4)}, v{12+2*sl}")
        a(f"ds_read_b128 {vr(XF+4, 4)}, v{13+2*sl}")
        a("s_waitcnt lgkmcnt(0)")
        a(f"v_mfma_f32_16x16x32_bf16 {vr(GA, 4)}, {vr(GWF+8*s, 4)}, {vr(XF, 4)}, {vr(GA, 4)}")
        a(f"v_mfma_f32_16x16x32_bf16 {vr(GA, 4)}, {vr(GWF+8*s+4, 4)}, {vr(XF+4, 4)}, {vr(GA, 4)}")
    def hbar(s):
        stamp(a, o, 8 + s)
        a("s_barrier")
        gstep(s)
        if s < 5:
            warm_stage_xb(a, o, 1)
    a("s_waitcnt vmcnt(0)")
    hbar(0)
    a("s_cmp_ge_u32 s66, 40")
    a("s_cbranch_scc1 Lh_w2")
    a("s_and_b32 s68, s66, 1")
    a("s_cmp_eq_u32 s68, 0")
    a(f"s_cselect_b32 s56, s{P_CRE}, s{P_CIM}")
    a(f"s_cselect_b32 s57, s{P_CRE+1}, s{P_CIM+1}")
    a(f"s_mov_b32 s58, {640*1280}")
    a("s_mov_b32 s59, 0x20000")
    a("s_lshr_b32 s68, s66, 1")
    a("s_lshl_b32 s68, s68, 6")
    a(f"s_mul_i32 s69, s67, {64*1280}")
    a("s_add_u32 s68, s68, s69")
    for t in range(8):
        a(f"buffer_load_dwordx4 {vr(OJ[t >> 2]+4*(t & 3), 4)}, v8, s[56:59], s68 offen")
        if t < 7:
            a(f"s_add_u32 s68, s68, {16*1280}")
    a("s_branch Lh_ld")
    a.label("Lh_w2")
    srd(a, 56, P_W2, 1728 * 1280)
    a("s_sub_u32 s68, s66, 40")
    a(f"s_mul_i32 s68, s68, {32*1280}")
    a("s_lshl_b32 s69, s67, 7")
    a("s_add_u32 s68, s68, s69")
    a(f"s_add_u32 s69, s68, {4*1280}")
    for e in range(8):
        for jb in range(2):
            a(f"buffer_load_dwordx2 {vr(RJ[jb]+2*e, 2)}, v9, s[56:59], s{68 + (e >> 2)} offen offset:{(e & 3)*1280 + jb*128}")
    a.label("Lh_ld")
    hbar(1)
    srd(a, 56, P_WS, W2_SIZE, W2_OFF)
    a("s_mov_b32 s70, 0x05040100")
    a("s_mov_b32 s71, 0x07060302")
    a("s_waitcnt vmcnt(0)")
    for jb in range(2):
        R, O = RJ[jb], OJ[jb]
        a("s_cmp_lt_u32 s66, 40")
        a(f"s_cbranch_scc1 Lh_st{jb}")
        for t in range(4):
            for e in range(4):
                a(f"v_perm_b32 v{O+4*t+e}, v{R+4*e+2+(t >> 1)}, v{R+4*e+(t >> 1)}, s{70+(t & 1)}")
        for (src, dst, x, qp, m) in ((O, O2, 1, "[1,0,3,2]", 0xaaaaaaaa), (O2, O, 2, "[2,3,0,1]", 0xcccccccc)):
            for hi in (1, 0):
                mm = m if hi else (~m & 0xffffffff)
                a(f"s_mov_b32 vcc_lo, {mm:#x}")
                a(f"s_mov_b32 vcc_hi, {mm:#x}")
                a("s_nop 1")
                for t in range(4):
                    if bool(t & x) != bool(hi):
                        continue
                    for e in range(4):
                        a(f"v_cndmask_b32_dpp v{dst+4*t+e}, v{src+4*(t ^ x)+e}, v{src+4*t+e}, vcc quad_perm:{qp} row_mask:0xf bank_mask:0xf")
        a.label(f"Lh_st{jb}")
        for t in range(4):
            a(f"buffer_store_dwordx4 {vr(O+4*t, 4)}, v21, s[56:59], s{76 + 4*jb + t} offen sc1")
    stamp(a, o, 3)
    hbar(2)
    a("s_mov_b32 s72, 0")
    a.label("Lh_npoll")
    a("buffer_load_dword v23, v19, s[60:63], 0 offen sc1")
    a("s_waitcnt vmcnt(0)")
    a("v_readfirstlane_b32 s64, v23")
    a("s_add_u32 s72, s72, 1")
    a("s_cmp_lg_u32 s64, 0")
    a("s_cbranch_scc1 Lh_ngot")
    a(f"s_cmp_lt_u32 s72, {SPIN_MAX:#x}")
    a("s_cbranch_scc1 Lh_npoll")
    a.label("Lh_ngot")
    a(f"v_mov_b32 v22, {NONCE_LDS}")
    a("ds_write_b32 v22, v23")
    a("s_waitcnt lgkmcnt(0)")
    hbar(3)
    srd(a, 56, P_WS, FW_SIZE, FW_OFF)
    a("s_cmp_lg_u32 s90, 2")
    a("s_cbranch_scc1 Lh_noflag")
    a("s_lshl_b32 s66, s2, 2")
    a("s_mov_b64 exec, 1")
    a("buffer_store_dword v23, v19, s[56:59], s66 offen sc1")
    a("s_mov_b64 exec, -1")
    a.label("Lh_noflag")
    hbar(4)
    hbar(5)
    hbar(6)
    a("buffer_load_dwordx4 v[28:31], v21, s[56:59], 0 offen sc1")
    hbar(7)
    a("s_mov_b32 s72, 0")
    a.label("Lh_fpoll")
    a("s_waitcnt vmcnt(0)")
    a("v_cmp_ne_u32 vcc, s64, v28")
    a("v_cmp_ne_u32 s[66:67], s64, v29")
    a("v_cmp_ne_u32 s[68:69], s64, v30")
    a("v_cmp_ne_u32 s[70:71], s64, v31")
    a("s_or_b64 vcc, vcc, s[66:67]")
    a("s_or_b64 s[68:69], s[68:69], s[70:71]")
    a("s_or_b64 vcc, vcc, s[68:69]")
    a("s_cbranch_scc0 Lh_fgot")
    a("s_sleep 8")
    a("buffer_load_dwordx4 v[28:31], v21, s[56:59], 0 offen sc1")
    a("s_add_u32 s72, s72, 1")
    a(f"s_cmp_lt_u32 s72, {SPIN_MAX:#x}")
    a("s_cbranch_scc1 Lh_fpoll")
    a.label("Lh_fgot")
    stamp(a, o, 5)
    def hook(s):
        if s < 10:
            gstep(s)
            return
        a("s_cmp_ge_u32 s73, 16")
        a("s_cbranch_scc1 Lh_nog")
        a(f"v_cvt_pk_bf16_f32 v{GA}, v{GA}, v{GA}")
        a(f"v_lshlrev_b32 v{GA}, 16, v{GA}")
        a(f"v_mul_f32 v{GA}, {NLOG2E:#x}, v{GA}")
        a(f"v_exp_f32 v{GA}, v{GA}")
        a("s_nop 0")
        a(f"v_add_f32 v{GA}, 1.0, v{GA}")
        a(f"v_rcp_f32 v{GA}, v{GA}")
        a("s_nop 0")
        a(f"v_cvt_pk_bf16_f32 v{GA}, v{GA}, v{GA}")
        a(f"v_lshlrev_b32 v{GA}, 16, v{GA}")
        a(f"v_mov_b32 v{GA+1}, s64")
        srd(a, 60, P_WS, G_SIZE, G_OFF)
        a("v_lshlrev_b32 v2, 3, v0")
        a("s_lshl_b32 s66, s39, 4")
        a("s_add_u32 s66, s66, s40")
        a("s_lshl_b32 s66, s66, 7")
        a("s_mov_b64 exec, 0xffff")
        a(f"buffer_store_dwordx2 {vr(GA, 2)}, v2, s[60:63], s66 offen sc1")
        a("s_mov_b64 exec, -1")
        a.label("Lh_nog")
    p2_prefetch(a, o, vm, o.cuts_h, False, hook)
    a("s_setprio 0")
    a.label("L_p2l")

def p2(a, o, loader):
    X = "L" if loader else "C"
    vm = VM(a)
    NS = 14 if loader else 10
    wreg = {}; hreg = {}
    if loader:
        ACC = L_ACC
        for n in range(6):
            for dt in range(5):
                wreg[n, dt] = L_W + n * 20 + dt * 4
        free = [L_H + 4 * i for i in range(12)]
        VO = 1
        lds_steps = ()
    else:
        ACC = C_ACC
        for k, n in enumerate(C_RSTEPS):
            for dt in range(5):
                wreg[n, dt] = C_WR + k * 20 + dt * 4
        lds_steps = tuple(range(2, 8))
        for n in lds_steps:
            for dt in range(5):
                wreg[n, dt] = C_WL + (((n - 2) * 5 + dt) % 6) * 4
        free = [C_H + 4 * i for i in range(12)]
        VO = 12
    acc = lambda dt, mi: ACC + (dt * 4 + mi) * 4
    srd(a, 56, P_WS, FH_SIZE, FH_OFF)
    if not loader:
        a("v_mov_b32 v3, s64")
        a("s_waitcnt vmcnt(0)")
        a("s_mov_b64 exec, s[66:67]")
        a(f"buffer_store_dword v3, v2, s[56:59], s65 offen {o.hst}")
        a("s_mov_b64 exec, -1")
        stamp(a, o, 7)
        if not o.early_w:
            for k in range(4):
                c_wload(a, k)
        a("s_mul_i32 s68, s90, 5120")
        a(f"v_add_u32 v4, s68, v{VO}")
        a("v_add_u32 v5, 0x10000, v4")
    a("s_lshl_b32 s80, s74, 12")
    a(f"s_mul_i32 s69, s42, {HT}")
    a("s_add_u32 s80, s80, s69")
    if loader:
        a("s_mul_i32 s68, s90, 7")
        a("s_add_u32 s68, s68, 22")
        a("s_cmp_eq_u32 s90, 2")
        a("s_cselect_b32 s69, 6, 7")
        a("s_cmp_eq_u32 s90, 3")
        a("s_cselect_b32 s68, 0, s68")
        a("s_cselect_b32 s69, 6, s69")
    else:
        a("s_lshl_b32 s68, s90, 2")
        a("s_add_u32 s68, s68, 5")
        a("s_mov_b32 s69, 5")
    a("s_bfm_b64 s[78:79], s69, s68")
    a("v_lshlrev_b32 v2, 2, v0")
    a("s_lshl_b32 s65, s42, 8")
    a("s_barrier")
    stamp(a, o, 40)
    if o.dspan and not loader:
        a("s_cmp_lg_u32 s38, 0")
        a("s_cbranch_scc1 Ld2")
        dmark(a, o, 6)
        a.label("Ld2")
    a("s_mov_b32 s72, 0")
    a.label(f"L2{X}_poll")
    a("buffer_load_dword v3, v2, s[56:59], s65 offen sc1")
    a("s_waitcnt vmcnt(0)")
    a("v_cmp_ne_u32 vcc, s64, v3")
    a("s_and_b64 vcc, vcc, s[78:79]")
    a(f"s_cbranch_scc0 L2{X}_go")
    a(f"s_sleep {o.poll_sleep}")
    a("s_add_u32 s72, s72, 1")
    a(f"s_cmp_lt_u32 s72, {SPIN_MAX:#x}")
    a(f"s_cbranch_scc1 L2{X}_poll")
    a.label(f"L2{X}_go")
    stamp(a, o, 41)
    needs = []
    for n in range(NS):
        if loader and n >= 6:
            needs += [("w", n, i) for i in range(5)]
        needs += [("h", n, i) for i in range(4)]
    own = (3, 4) if loader else (0, 1, 2)
    E = {}
    def try_issue():
        if not needs or not free:
            return False
        kind, n, i = needs.pop(0)
        r = free.pop(0)
        if kind == "h":
            hreg[n, i] = r
            vm.op(f"buffer_load_dwordx4 {vr(r, 4)}, v{VO}, s[48:51], s80 offen offset:{i*1024} {o.hld}", ("h", n))
            if i == 3:
                a(f"s_add_u32 s80, s80, {HK}")
        else:
            wreg[n, i] = r
            vm.op(f"buffer_load_dwordx4 {vr(r, 4)}, v{VO}, s[52:55], s{76 + (i >> 2)} offen offset:{(i & 3)*1024} {o.hld}", ("w", n))
            if i >= 3:
                a(f"s_add_u32 s{76 + (i >> 2)}, s{76 + (i >> 2)}, {WK}")
        return True
    while try_issue():
        pass
    def lds_w(k):
        n, dt = 2 + k // 5, k % 5
        off = P2W + (n - 2) * 20480 + dt * 1024
        return f"ds_read_b128 {vr(wreg[n, dt], 4)}, v{4 if off < 65536 else 5} offset:{off & 0xffff}"
    def eloads():
        E["g"] = free.pop(0); E["x"] = [free.pop(0) for _ in own]
        srd(a, 60, P_WS, G_SIZE, G_OFF)
        a("v_and_b32 v2, 15, v0")
        a("v_lshlrev_b32 v3, 3, v2")
        a("s_lshl_b32 s68, s42, 6")
        a("s_lshl_b32 s69, s90, 4")
        a("s_add_u32 s68, s68, s69")
        a("s_lshl_b32 s81, s68, 3")
        a(f"v_mov_b32 v{E['g']+2}, v3")
        vm.op(f"buffer_load_dwordx2 {vr(E['g'], 2)}, v3, s[60:63], s81 offen sc1", "e")
        srd(a, 84, P_X, 2048 * 1280)
        a("v_lshrrev_b32 v3, 4, v0")
        a("v_lshlrev_b32 v3, 3, v3")
        a("v_mul_u32_u24 v2, 1280, v2")
        a("v_add_u32 v2, v2, v3")
        a("s_mul_i32 s71, s68, 1280")
        a("s_mul_i32 s69, s43, 160")
        a("s_add_u32 s71, s71, s69")
        for k, dt in enumerate(own):
            vm.op(f"buffer_load_dwordx2 {vr(E['x'][k], 2)}, v2, s[84:87], s71 offen offset:{dt*32}", "e")
        srd(a, 84, P_DSK, 1280)
        for k, dt in enumerate(own):
            vm.op(f"buffer_load_dwordx2 {vr(E['x'][k]+2, 2)}, v3, s[84:87], s69 offen offset:{dt*32}", "e")
        a("v_lshlrev_b32 v2, 1, v2")
        a("s_lshl_b32 s71, s71, 1")
        srd(a, 84, P_OUT, 2048 * 2560)
        a("s_mul_i32 s68, s38, 20480")
        a(f"v_add_u32 v3, s68, v{VO}")
    def put(dt):
        for mi in range(4):
            a(f"ds_write_b128 v3, {vr(acc(dt, mi), 4)} offset:{(mi*5 + dt)*1024}")
    mstep = 11 if loader else 7
    for n in range(NS):
        need = [("h", n)]
        if loader and n >= 6:
            need.append(("w", n))
        vm.wait(*need)
        if o.stamps and n in (0, 1, 5):
            stamp(a, o, 42 + (0, 1, 5).index(n))
        if not loader and n == 1:
            for k in range(5):
                a(lds_w(k))
        last = n == NS - 1
        for dt in range(5):
            if n in lds_steps:
                f = (n - 2) * 5 + dt
                a(f"s_waitcnt lgkmcnt({min(29, f + 4) - f})")
            for mi in range(4):
                c = "0" if n == 0 else vr(acc(dt, mi), 4)
                a(f"v_mfma_f32_16x16x32_bf16 {vr(acc(dt, mi), 4)}, {vr(wreg[n, dt], 4)}, {vr(hreg[n, mi], 4)}, {c}")
                if mi == 0 and n in lds_steps and (n - 2) * 5 + dt + 5 < 30:
                    a(lds_w((n - 2) * 5 + dt + 5))
                if dt == 4:
                    free.append(hreg[n, mi])
                if mi % 2 == 1:
                    try_issue()
            if n not in lds_steps:
                free.append(wreg[n, dt])
            if last and dt >= 2:
                put(dt - 2)
        while n + 1 < NS and (n + 1, 3) not in hreg:
            assert try_issue()
        if n == mstep:
            a("s_barrier")
        if not needs and not E and len(free) >= 4:
            assert n < NS - 1
            eloads()
    stamp(a, o, 45)
    put(3)
    a("s_nop 3")
    put(4)
    a("s_mul_i32 s68, s90, 5120")
    a(f"v_add_u32 v3, s68, v{VO}")
    a("v_add_u32 v4, 61440, v3")
    a("v_add_u32 v5, 122880, v3")
    vm.wait("e")
    T = free.pop(0)
    for k, dt in enumerate(own):
        b = E["x"][k]
        a(f"v_lshlrev_b32 v{T}, 16, v{b+2}")
        a(f"v_and_b32 v{T+1}, 0xffff0000, v{b+2}")
        a(f"v_lshlrev_b32 v{T+2}, 16, v{b+3}")
        a(f"v_and_b32 v{T+3}, 0xffff0000, v{b+3}")
        a(f"v_lshlrev_b32 v{b+2}, 16, v{b+1}")
        a(f"v_and_b32 v{b+3}, 0xffff0000, v{b+1}")
        a(f"v_and_b32 v{b+1}, 0xffff0000, v{b}")
        a(f"v_lshlrev_b32 v{b}, 16, v{b}")
        for p in range(2):
            a(f"v_pk_mul_f32 {vr(b+2*p, 2)}, {vr(b+2*p, 2)}, {vr(T+2*p, 2)}")
            a(f"v_cvt_pk_bf16_f32 v{b+2*p+1}, v{b+2*p}, v{b+2*p+1}")
            a(f"v_lshlrev_b32 v{b+2*p}, 16, v{b+2*p+1}")
            a(f"v_and_b32 v{b+2*p+1}, 0xffff0000, v{b+2*p+1}")
    G = E["g"]
    a("s_mov_b32 s72, 0")
    a.label(f"L2{X}_gpoll")
    a(f"v_cmp_ne_u32 vcc, s64, v{G+1}")
    a("s_cmp_eq_u64 vcc, 0")
    a(f"s_cbranch_scc1 L2{X}_ggot")
    a(f"buffer_load_dwordx2 {vr(G, 2)}, v{G+2}, s[60:63], s81 offen sc1")
    a("s_waitcnt vmcnt(0)")
    a("s_add_u32 s72, s72, 1")
    a(f"s_cmp_lt_u32 s72, {SPIN_MAX:#x}")
    a(f"s_cbranch_scc1 L2{X}_gpoll")
    a.label(f"L2{X}_ggot")
    a(f"v_sub_f32 v{G+1}, 1.0, v{G}")
    a(f"v_cvt_pk_bf16_f32 v{G+1}, v{G+1}, v{G+1}")
    a(f"v_lshlrev_b32 v{G+1}, 16, v{G+1}")
    a("s_waitcnt lgkmcnt(0)")
    stamp(a, o, 46)
    a("s_barrier")
    stamp(a, o, 47)
    RD = ACC
    def rd(k):
        for s in range(8):
            a(f"ds_read_b128 {vr(RD + (k & 1)*32 + s*4, 4)}, v{3 + s // 3} offset:{(s % 3)*20480 + own[k]*1024}")
    def fin(k, left):
        a(f"s_waitcnt lgkmcnt({left})")
        b = RD + (k & 1) * 32; sk = E["x"][k]
        for p in range(2):
            r = lambda s: vr(b + 4 * s + 2 * p, 2)
            for (x, y) in ((0, 1), (2, 3), (4, 5), (0, 7), (4, 6), (0, 2)):
                a(f"v_pk_add_f32 {r(x)}, {r(x)}, {r(y)}")
            a(f"v_pk_add_f32 {r(4)}, {r(4)}, {vr(sk+2*p, 2)}")
            lo, hi = b + 2 * p, b + 2 * p + 1
            for _ in range(2):
                a(f"v_cvt_pk_bf16_f32 v{hi}, v{lo}, v{hi}")
                a(f"v_lshlrev_b32 v{lo}, 16, v{hi}")
                a(f"v_and_b32 v{hi}, 0xffff0000, v{hi}")
                if _ == 0:
                    a(f"v_pk_mul_f32 {r(0)}, {vr(G, 2)}, {r(0)} op_sel:[1,0] op_sel_hi:[1,1]")
            a(f"v_pk_fma_f32 {vr(sk+2*p, 2)}, {vr(G, 2)}, {r(4)}, {r(0)} op_sel_hi:[0,1,1]")
        a(f"buffer_store_dwordx4 {vr(sk, 4)}, v2, s[84:87], s71 offen offset:{own[k]*64} {o.out_store}")
    rd(0)
    a("s_waitcnt lgkmcnt(7)")
    rd(1)
    fin(0, 8)
    if len(own) == 3:
        a("s_waitcnt lgkmcnt(7)")
        rd(2)
        fin(1, 8)
        fin(2, 0)
    else:
        fin(1, 0)
    stamp(a, o, 48)
    if o.dspan and not loader:
        a("s_cmp_lg_u32 s38, 0")
        a("s_cbranch_scc1 Ld1")
        a("s_waitcnt vmcnt(0)")
        dmark(a, o, 8)
        a.label("Ld1")
    stamp_flush(a, o)
    a("s_endpgm")

def generate(o):
    ref = open(f"cdna_kernels/{NAME}.s.ref").read().splitlines()
    head = [l for l in ref if l.startswith(";") and "@launch" not in l]
    out = "\n".join(head) + "\n"
    out += f"; @launch grid=(256,1,1) block=(512,1,1) lds={LDS_BYTES}\n"
    out += f'.amdgcn_target "amdgcn-amd-amdhsa--gfx950"\n.text\n.globl {NAME}_kernel\n'
    out += kernel(o).text()
    out += f""".section .rodata,"a"
.p2align 6
.amdhsa_kernel {NAME}_kernel
  .amdhsa_next_free_vgpr 256
  .amdhsa_next_free_sgpr 102
  .amdhsa_accum_offset 256
  .amdhsa_group_segment_fixed_size 0
  .amdhsa_kernarg_size 136
  .amdhsa_user_sgpr_count 2
  .amdhsa_user_sgpr_kernarg_segment_ptr 1
  .amdhsa_system_sgpr_workgroup_id_x 1
.end_amdhsa_kernel
"""
    return out

if __name__ == "__main__":
    o = Opt()
    path = f"cdna_kernels/{NAME}.s"
    for arg in sys.argv[1:]:
        k, v = arg.split("=", 1)
        if k == "out":
            path = v
        else:
            cur = getattr(o, k)
            setattr(o, k, type(cur)(int(v)) if isinstance(cur, (bool, int)) else tuple(int(x) for x in v.split(",")) if isinstance(cur, tuple) else v)
    open(path, "w").write(generate(o))
    print("wrote", path)
```

```python
import re, sys
import gen5 as G
NAME = G.NAME
kd = lambda n: f""".p2align 6
.amdhsa_kernel {n}
  .amdhsa_next_free_vgpr 32
  .amdhsa_next_free_sgpr 102
  .amdhsa_accum_offset 32
  .amdhsa_group_segment_fixed_size 0
  .amdhsa_kernarg_size 136
  .amdhsa_user_sgpr_count 2
  .amdhsa_user_sgpr_kernarg_segment_ptr 1
  .amdhsa_system_sgpr_workgroup_id_x 1
.end_amdhsa_kernel
"""
def probe(slot, K, wave, avg):
    L = f"""
    s_cmp_ge_u32 s2, 1
    s_cbranch_scc1 Lq_end
    s_load_dwordx2 s[36:37], s[0:1], 128
    v_lshlrev_b32 v1, 11, v0
    v_mov_b32 v6, 0
    v_mov_b32 v7, -1
    v_mov_b32 v8, 0
    ds_write_b32 v6, v7
    ds_write_b32 v6, v8 offset:4
    s_waitcnt lgkmcnt(0)
    s_add_u32 s40, s36, {G.ST_OFF}
    s_addc_u32 s41, s37, 0
    s_mov_b32 s42, {G.ST_SIZE}
    s_mov_b32 s43, 0x20000
    buffer_load_dword v4, v1, s[40:43], 0 offen offset:{wave*256 + slot*4}
    buffer_load_dword v5, v1, s[40:43], 0 offen
    s_barrier
    s_waitcnt vmcnt(0)
    ds_min_u32 v6, v5
    s_waitcnt lgkmcnt(0)
    s_barrier
    ds_read_b32 v7, v6
    s_waitcnt lgkmcnt(0)
    v_sub_u32 v4, v4, v7
    v_min_u32 v4, 20000, v4
    {"ds_add_u32" if avg else "ds_max_u32"} v6, v4 offset:4
    s_waitcnt lgkmcnt(0)
    s_barrier
    ds_read_b32 v7, v6 offset:4
    s_memrealtime s[10:11]
    s_waitcnt lgkmcnt(0)
    v_readfirstlane_b32 s12, v7
    s_nop 3
    s_mul_i32 s12, s12, {K}
    s_lshr_b32 s12, s12, {8 if avg else 0}
Lq_spin:
    s_memrealtime s[14:15]
    s_waitcnt lgkmcnt(0)
    s_sub_u32 s14, s14, s10
    s_cmp_lt_u32 s14, s12
    s_cbranch_scc1 Lq_spin
Lq_end:
    s_endpgm
"""
    return ".globl q_kernel\n.p2align 8\n.type q_kernel,@function\nq_kernel:" + L
def mk(src, path, slot, K=4, wave=0, avg=True):
    s = open(src).read()
    base = re.sub(r"; Override launch.*\n; grid=ceil.*\n", "", s)
    main = f"; @launch kernel={NAME}_kernel grid=(256,1,1) block=(512,1,1) lds=163840\n"
    q = "; @launch kernel=q_kernel grid=(1,1,1) block=(256,1,1) lds=64\n"
    t = base.replace("; @launch grid=(256,1,1) block=(512,1,1) lds=163840\n", main + q)
    t = t.replace('.section .rodata,"a"', probe(slot, K, wave, avg) + '.section .rodata,"a"') + kd("q_kernel")
    open(path, "w").write(t)
if __name__ == "__main__":
    src = sys.argv[1]
    mk(src, "q_base.s", 0, K=0)
    for sl in sys.argv[2:]:
        mk(src, f"q_{sl}.s", int(sl))
```

```python
import re, sys
import gen3 as G
from mkprobe import kd
NAME = G.NAME
pre = f""".globl r_kernel
.p2align 8
.type r_kernel,@function
r_kernel:
    s_memrealtime s[10:11]
    s_cmp_ge_u32 s2, 1
    s_cbranch_scc1 Lr_end
    s_load_dwordx2 s[36:37], s[0:1], 128
    s_waitcnt lgkmcnt(0)
    s_memrealtime s[12:13]
    s_add_u32 s40, s36, {G.ST_OFF + 0x80000}
    s_addc_u32 s41, s37, 0
    s_mov_b32 s42, 64
    s_mov_b32 s43, 0x20000
    v_mov_b32 v1, 0
    s_waitcnt lgkmcnt(0)
    v_mov_b32 v2, s10
    v_mov_b32 v3, s12
    buffer_store_dwordx2 v[2:3], v1, s[40:43], 0 offen
Lr_end:
    s_endpgm
"""
def probe(mode, K):
    sel = {"a": "s_sub_u32 s12, s20, s22", "b": "s_sub_u32 s12, s8, s22", "c": "s_sub_u32 s12, s8, s21", "d": "s_sub_u32 s12, s23, s22"}[mode]
    return f""".globl q_kernel
.p2align 8
.type q_kernel,@function
q_kernel:
    s_memrealtime s[8:9]
    s_cmp_ge_u32 s2, 1
    s_cbranch_scc1 Lq_end
    s_load_dwordx2 s[36:37], s[0:1], 128
    v_lshlrev_b32 v1, 11, v0
    v_mov_b32 v6, 0
    v_mov_b32 v7, -1
    v_mov_b32 v8, 0
    ds_write_b32 v6, v7
    ds_write_b32 v6, v8 offset:4
    s_waitcnt lgkmcnt(0)
    s_add_u32 s40, s36, {G.ST_OFF}
    s_addc_u32 s41, s37, 0
    s_mov_b32 s42, {G.ST_SIZE}
    s_mov_b32 s43, 0x20000
    s_mov_b32 s44, 0x80000
    buffer_load_dword v4, v1, s[40:43], 0 offen offset:{4*256 + 61*4}
    buffer_load_dword v5, v1, s[40:43], 0 offen
    buffer_load_dwordx2 v[10:11], v6, s[40:43], s44 offen
    s_barrier
    s_waitcnt vmcnt(0)
    ds_min_u32 v6, v5
    ds_max_u32 v6, v4 offset:4
    s_waitcnt lgkmcnt(0)
    s_barrier
    ds_read_b64 v[8:9], v6
    s_memrealtime s[10:11]
    s_waitcnt lgkmcnt(0)
    v_readfirstlane_b32 s20, v8
    v_readfirstlane_b32 s21, v9
    v_readfirstlane_b32 s22, v10
    v_readfirstlane_b32 s23, v11
    s_nop 3
    {sel}
    s_min_u32 s12, s12, 20000
    s_mul_i32 s12, s12, {K}
Lq_spin:
    s_memrealtime s[14:15]
    s_waitcnt lgkmcnt(0)
    s_sub_u32 s14, s14, s10
    s_cmp_lt_u32 s14, s12
    s_cbranch_scc1 Lq_spin
Lq_end:
    s_endpgm
"""
def mk(src, path, mode, K):
    s = open(src).read()
    base = re.sub(r"; Override launch.*\n; grid=ceil.*\n", "", s)
    main = f"; @launch kernel={NAME}_kernel grid=(256,1,1) block=(512,1,1) lds=163840\n"
    q = "; @launch kernel=q_kernel grid=(1,1,1) block=(256,1,1) lds=64\n"
    r = "; @launch kernel=r_kernel grid=(1,1,1) block=(64,1,1) lds=0\n"
    t = base.replace("; @launch grid=(256,1,1) block=(512,1,1) lds=163840\n", r + main + q)
    t = t.replace('.section .rodata,"a"', pre + probe(mode, K) + '.section .rodata,"a"') + kd("q_kernel") + kd("r_kernel")
    open(path, "w").write(t)
mk("g0.s", "r_0.s", "a", 0)
for m in "abcd":
    mk("g0.s", f"r_{m}.s", m, 4)
```

```python
import sys

NAME = "gated_mix__ssm_conv_s5__glu_gated_swiglu__prompt"

class Opt:
    stamps = 0
    map1 = "2x4"
    map2 = "4x2"
    out_store = ""
    poll_sleep = 4
    warm = False
    vwarm = 0
    lwarm = (0,)
    hprio = 2
    ab = 1
    lead = 3
    cwarm = 2
    codepf = 1
    dspan = 0
    hst = "sc1"
    hld = "sc1"
    throttle = 0
    early_w = False
    cuts_l = (16, 34)
    cuts_h = (16, 34)
    hsched = (-1, 0, 0, 2)
    thr_e = 6
    thr_t = 4
    pre_y = 0
    thr_y = 2
    lprio = 0
    agg_sleep = 2
    use_y = 0
    ssm_early = 1
    cprio = 3
    cprio2 = 0

HP_OFF  = 0
HP_SIZE = 94 * 128 * 1024
W2_OFF  = 0xC00000
W2_SIZE = 94 * 40 * 1024
HK = 4096
HT = 94 * HK
WK = 5120
WT = 94 * WK
G_OFF   = 0x1000000
G_SIZE  = 2048 * 8
AGG_OFF = 0x1010000
AGG_SIZE = 80 * 1024
FH_OFF  = 0x1040000
FH_SIZE = 32 * 8192
FW_OFF  = 0x1034000
FW_SIZE = 1024
ST_OFF  = 0x1100000
ST_SIZE = 0x100000

LOG2E = 0x3fb8aa3b
NLOG2E = 0xbfb8aa3b
SPIN_MAX = 0x40000

class Asm:
    def __init__(self):
        self.l = []
    def __call__(self, s):
        self.l.append("    " + s)
    def label(self, s):
        self.l.append(s + ":")
    def c(self, s):
        self.l.append("    ; " + s)
    def raw(self, s):
        self.l.append(s)
    def text(self):
        return "\n".join(self.l) + "\n"
    _uid = 0
    def uid(self):
        self._uid += 1
        return self._uid

class VM:
    def __init__(self, a):
        self.a = a; self.q = []
    def op(self, ins, tag=None):
        self.a(ins); self.q.append(tag)
    def wait(self, *tags):
        last = max(i for i, t in enumerate(self.q) if t in tags)
        n = len(self.q) - 1 - last
        assert n <= 63, n
        self.a(f"s_waitcnt vmcnt({n})")
    def drain(self):
        self.a("s_waitcnt vmcnt(0)"); self.q = []

def vr(b, n=1, p="v"):
    return f"{p}{b}" if n == 1 else f"{p}[{b}:{b+n-1}]"

def srd(a, d, base, size, off=0):
    if off:
        a(f"s_add_u32 s{d}, s{base}, {off:#x}")
        a(f"s_addc_u32 s{d+1}, s{base+1}, 0")
    else:
        a(f"s_mov_b32 s{d}, s{base}")
        a(f"s_mov_b32 s{d+1}, s{base+1}")
    a(f"s_mov_b32 s{d+2}, {size:#x}")
    a(f"s_mov_b32 s{d+3}, 0x20000")

P_X, P_LRE, P_LIM, P_BRE, P_BIM, P_CRE, P_CIM, P_LDT = 4, 6, 8, 10, 12, 14, 16, 18
P_DSK, P_BX, P_W1, P_W3, P_W2, P_GW, P_OUT, P_DBG, P_WS = 20, 22, 24, 26, 28, 30, 32, 34, 36

def stamp(a, o, slot):
    if not o.stamps or (8 <= slot < 32 and o.stamps < 2):
        return
    a("s_memrealtime s[92:93]")
    a("s_waitcnt lgkmcnt(0)")
    a(f"v_writelane_b32 v254, s92, {slot}")
def stamp_dyn(a, o, slot, sreg, mul):
    if not o.stamps:
        return
    a("s_memrealtime s[92:93]")
    a("s_waitcnt lgkmcnt(0)")
    a(f"s_mul_i32 s93, s{sreg}, {mul}")
    a(f"s_add_u32 s93, s93, {slot}")
    a("s_mov_b32 m0, s93")
    a("v_writelane_b32 v254, s92, m0")
def stamp_clk(a, o, slot):
    if not o.stamps:
        return
    a("s_memtime s[92:93]")
    a("s_waitcnt lgkmcnt(0)")
    a(f"v_writelane_b32 v254, s92, {slot}")
def dmark(a, o, slot, inv=False, tv=252):
    if not o.dspan:
        return
    srd(a, 96, P_DBG, 256)
    a("s_memrealtime s[92:93]")
    a("s_waitcnt lgkmcnt(0)")
    if inv:
        a("s_not_b32 s92, s92")
    a("v_mov_b32 v254, s92")
    a("v_mov_b32 v255, 0")
    a("s_mov_b64 exec, 1")
    a(f"buffer_atomic_umax v254, v255, s[96:99], 0 offen offset:{slot*4} sc1")
    a("s_mov_b64 exec, -1")

def stamp_setup(a, o):
    if not o.stamps:
        return
    a("v_mov_b32 v254, 0")
    a("s_lshl_b32 s91, s2, 3")
    a("s_add_u32 s91, s91, s38")
    a("s_lshl_b32 s91, s91, 8")
    a("v_lshlrev_b32 v255, 2, v0")
    stamp_clk(a, o, 62)
def stamp_flush(a, o):
    if not o.stamps:
        return
    a("s_waitcnt vmcnt(0)")
    stamp(a, o, 61)
    stamp_clk(a, o, 63)
    srd(a, 96, P_WS, ST_SIZE, ST_OFF)
    a("buffer_store_dword v254, v255, s[96:99], s91 offen")

LDS_BYTES = 163840
F_UP = 10368
F_XO = 20736
F_SLOT = F_XO + 32768
S_XO = 16384
S_SLOT = S_XO + 32768
S_DUMMY = 3 * S_SLOT
NONCE_LDS = 163832
P2W = 0
S_TR = 122880
S_AGG = 159744
SFLAG_LDS = S_TR + 128
slot_of = lambda stage: (stage + 2) % 3

def kernel(o):
    a = Asm()
    a.raw(".p2align 8")
    a.raw(f".type {NAME}_kernel,@function")
    a.label(f"{NAME}_kernel")
    a("s_cmp_ge_u32 s2, 256")
    a("s_cbranch_scc1 L_end")
    a("s_load_dwordx16 s[4:19], s[0:1], 0")
    a("s_load_dwordx16 s[20:35], s[0:1], 64")
    a("s_load_dwordx2 s[36:37], s[0:1], 128")
    a("v_lshrrev_b32 v1, 6, v0")
    a("v_and_b32 v0, 63, v0")
    a("v_readfirstlane_b32 s38, v1")
    a("s_and_b32 s42, s2, 7")
    a("s_lshr_b32 s43, s2, 3")
    if o.map1 == "2x4":
        a("s_and_b32 s39, s42, 1")
        a("s_lshl_b32 s39, s39, 2")
        a("s_and_b32 s44, s43, 3")
        a("s_add_u32 s39, s39, s44")
        a("s_lshr_b32 s48, s42, 1")
        a("s_lshr_b32 s49, s43, 2")
        a("s_lshr_b32 s44, s48, 1")
        a("s_sub_u32 s44, 6, s44")
        a("s_max_u32 s45, s48, 2")
        a("s_sub_u32 s45, s45, 2")
        a("s_mul_i32 s46, s48, 6")
        a("s_sub_u32 s46, s46, s45")
        a("s_add_u32 s46, s46, s49")
        a("s_lshl_b32 s47, s48, 1")
        a("s_add_u32 s47, s47, s45")
        a("s_add_u32 s47, s47, s49")
        a("s_sub_u32 s47, s47, s44")
        a("s_cmp_ge_u32 s49, s44")
        a("s_cselect_b32 s40, s47, s46")
        a("s_cselect_b32 s41, 1, 0")
    elif o.map1 == "8x1":
        a("s_mov_b32 s39, s42")
        a("s_sub_u32 s47, s43, 22")
        a("s_cmp_ge_u32 s43, 22")
        a("s_cselect_b32 s40, s47, s43")
        a("s_cselect_b32 s41, 1, 0")
    if o.map2 == "4x2":
        a("s_lshr_b32 s44, s42, 1")
        a("s_lshl_b32 s44, s44, 3")
        a("s_and_b32 s45, s43, 7")
        a("s_and_b32 s46, s42, 1")
        a("s_lshl_b32 s46, s46, 2")
        a("s_lshr_b32 s47, s43, 3")
        a("s_add_u32 s42, s44, s45")
        a("s_add_u32 s43, s46, s47")
    elif o.map2 == "8x1":
        a("s_lshl_b32 s42, s42, 2")
        a("s_and_b32 s44, s43, 3")
        a("s_add_u32 s42, s42, s44")
        a("s_lshr_b32 s43, s43, 2")
    a("s_and_b32 s90, s38, 3")
    stamp_setup(a, o)
    stamp(a, o, 0)
    a("s_cmp_ge_u32 s38, 4")
    a("s_cbranch_scc1 L_loader")
    if o.dspan:
        a("s_cmp_lg_u32 s38, 0")
        a("s_cbranch_scc1 Ld0")
        dmark(a, o, 2, True); dmark(a, o, 3)
        a.label("Ld0")
    a("s_waitcnt lgkmcnt(0)")
    warm_setup(a, o)
    warm_skip(a, o, 1)
    warm_stage_any(a, o, o.cwarm)
    a("s_cmp_eq_u32 s41, 1")
    a("s_cbranch_scc1 L_ssm")
    p1_ffn(a, o)
    a.label("L_p2c")
    p2(a, o, False)
    a.label("L_ssm")
    p1_ssm(a, o)
    a.label("L_loader")
    p1_loader(a, o)
    p2(a, o, True)
    a.label("L_end")
    a("s_endpgm")
    a.label("L_codeend")
    return a

def warm_setup(a, o):
    if not o.warm:
        return
    a("s_cmp_ge_u32 s90, 2")
    a(f"s_cbranch_scc1 Lw_xb{a.uid()}")
    u = a._uid
    a("s_and_b32 s44, s2, 1")
    a("s_cmp_eq_u32 s44, 0")
    a(f"s_cselect_b32 s94, s{P_W1}, s{P_W3}")
    a(f"s_cselect_b32 s95, s{P_W1+1}, s{P_W3+1}")
    a("s_lshr_b32 s44, s2, 1")
    a("s_mul_i32 s44, s44, 1728")
    a(f"s_mul_i32 s45, s90, {13*64}")
    a("s_add_u32 s44, s44, s45")
    a(f"s_mov_b32 s88, {64*3456}")
    a(f"s_branch Lw_set{u}")
    a.label(f"Lw_xb{u}")
    a("s_cmp_lt_u32 s2, 128")
    a(f"s_cselect_b32 s94, s{P_BRE}, s{P_BIM}")
    a(f"s_cselect_b32 s95, s{P_BRE+1}, s{P_BIM+1}")
    a("s_and_b32 s44, s2, 127")
    a(f"s_mul_i32 s44, s44, {5*1280}")
    a(f"s_mul_i32 s45, s2, {8*1280}")
    a("s_cmp_eq_u32 s90, 2")
    a(f"s_cselect_b32 s94, s{P_X}, s94")
    a(f"s_cselect_b32 s95, s{P_X+1}, s95")
    a("s_cselect_b32 s44, s45, s44")
    a("s_movk_i32 s88, 128")
    a.label(f"Lw_set{u}")
    a("s_add_u32 s94, s94, s44")
    a("s_addc_u32 s95, s95, 0")

def warm_skip(a, o, n):
    if not o.warm:
        return
    a(f"s_mul_i32 s44, s88, {n}")
    a("s_add_u32 s94, s94, s44")
    a("s_addc_u32 s95, s95, 0")

def warm_ops(o, kind):
    if not o.warm:
        return []
    if kind == "w":
        offs = [i * 64 for i in range(14)]
    else:
        offs = [r * 1280 + h * 64 for r in range(8 if kind == "x" else 5) for h in range(2)]
    return [f"s_load_dword s89, s[94:95], {x}" for x in offs] + ["s_add_u32 s94, s94, s88", "s_addc_u32 s95, s95, 0"]

def warm_stage_any(a, o, nst):
    if not o.warm:
        return
    u = a.uid()
    a("s_cmp_ge_u32 s90, 2")
    a(f"s_cbranch_scc1 Lv_xb{u}")
    for _ in range(nst):
        for i in warm_ops(o, "w"): a(i)
    a(f"s_branch Lv_e{u}")
    a.label(f"Lv_xb{u}")
    warm_stage_xb(a, o, nst)
    a.label(f"Lv_e{u}")

def warm_stage_xb(a, o, nst):
    if not o.warm:
        return
    for _ in range(nst):
        u = a.uid()
        ops = warm_ops(o, "x")
        for i in ops[:10]: a(i)
        a("s_cmp_eq_u32 s90, 3")
        a(f"s_cbranch_scc1 Lv_b{u}")
        for i in ops[10:16]: a(i)
        a.label(f"Lv_b{u}")
        for i in ops[16:]: a(i)

def loop_stamp_flush(a, o):
    if o.stamps:
        a("s_add_u32 m0, s52, 8")
        a("v_writelane_b32 v254, s94, m0")
        a("s_add_u32 m0, s52, 20")
        a("v_writelane_b32 v254, s92, m0")

def ring_advance(a, o, stride_sreg, stride, vregs):
    a("s_add_u32 s52, s52, 1")
    a("s_add_u32 s53, s53, 1")
    a("s_cmp_eq_u32 s53, 3")
    a(f"s_cselect_b32 s54, {-2*stride & 0xffffffff:#x}, s{stride_sreg}")
    a("s_cselect_b32 s53, 0, s53")
    for v in vregs:
        a(f"v_add_u32 v{v}, s54, v{v}")
    if o.stamps:
        a("s_memrealtime s[94:95]")
    a("s_barrier")
    if o.stamps:
        a("s_memrealtime s[92:93]")

def fw_load(a, vd, voff):
    srd(a, 60, P_WS, FW_SIZE, FW_OFF)
    a(f"buffer_load_dwordx4 {vr(vd, 4)}, v{voff}, s[60:63], 0 offen sc1")
def fw_check(a, vd, voff):
    u = a.uid()
    a("s_mov_b32 s72, 0")
    a.label(f"Lfw_poll{u}")
    a("s_waitcnt vmcnt(0)")
    a(f"v_xor_b32 v{vd}, s64, v{vd}")
    a(f"v_xor_b32 v{vd+1}, s64, v{vd+1}")
    a(f"v_xor_b32 v{vd+2}, s64, v{vd+2}")
    a(f"v_xor_b32 v{vd+3}, s64, v{vd+3}")
    a(f"v_or3_b32 v{vd}, v{vd}, v{vd+1}, v{vd+2}")
    a(f"v_or_b32 v{vd}, v{vd}, v{vd+3}")
    a(f"v_cmp_ne_u32 vcc, 0, v{vd}")
    a("s_cmp_eq_u64 vcc, 0")
    a(f"s_cbranch_scc1 Lfw_got{u}")
    a("s_sleep 8")
    a(f"buffer_load_dwordx4 {vr(vd, 4)}, v{voff}, s[60:63], 0 offen sc1")
    a("s_add_u32 s72, s72, 1")
    a(f"s_cmp_lt_u32 s72, {SPIN_MAX:#x}")
    a(f"s_cbranch_scc1 Lfw_poll{u}")
    a.label(f"Lfw_got{u}")

C_WR = 16; C_ACC = 96; C_H = 176; C_WL = 224
C_RSTEPS = (0, 1, 8, 9)
def c_wsetup(a):
    srd(a, 52, P_WS, W2_SIZE, W2_OFF)
    a("s_mul_i32 s74, s90, 10")
    a("s_add_u32 s74, s74, 54")
    a(f"s_mul_i32 s76, s74, {WK}")
    a(f"s_mul_i32 s77, s43, {WT}")
    a("s_add_u32 s76, s76, s77")
    a("s_add_u32 s77, s76, 4096")
    a("v_lshlrev_b32 v12, 4, v0")
def c_wload(a, k):
    for i in range(5):
        a(f"buffer_load_dwordx4 {vr(C_WR + k*20 + i*4, 4)}, v12, s[52:55], s{76 + (i >> 2)} offen offset:{(i & 3)*1024} sc1")
    if k < 3:
        d = (C_RSTEPS[k+1] - C_RSTEPS[k]) * WK
        a(f"s_add_u32 s76, s76, {d}")
        a(f"s_add_u32 s77, s77, {d}")

def p1_ffn(a, o):
    ACC = 16; FA = 176; FB = 216; VX = 4; VW = 8; VN = 10
    acc = lambda j, mi: ACC + (j * 2 + mi) * 16
    fa = lambda b, j: FA + b * 20 + j * 4
    fb = lambda b, mi: FB + b * 8 + mi * 4
    s0 = slot_of(0) * F_SLOT
    a.c("FFN compute wave: D[f][m] = W^T X^T")
    a("v_and_b32 v1, 31, v0")
    a("v_lshrrev_b32 v2, 5, v0")
    a("v_bfe_u32 v3, v0, 1, 3")
    a("v_xor_b32 v3, v3, v2")
    a("v_lshlrev_b32 v3, 4, v3")
    a("v_lshl_add_u32 v3, v1, 7, v3")
    a("s_lshl_b32 s44, s38, 13")
    a(f"s_add_u32 s44, s44, {s0 + F_XO}")
    a(f"v_add_u32 v{VX}, s44, v3")
    for sub in range(1, 4):
        a(f"v_xor_b32 v{VX+sub}, {sub*32}, v{VX}")
    a("v_bfe_u32 v1, v0, 4, 1")
    a(f"v_mul_u32_u24 v1, {F_UP}, v1")
    a("v_lshlrev_b32 v2, 3, v2")
    a("v_bfe_u32 v3, v0, 2, 2")
    a("v_add_u32 v2, v2, v3")
    a("v_mul_u32_u24 v2, 160, v2")
    a("v_add_u32 v1, v1, v2")
    a("v_and_b32 v2, 1, v0")
    a("v_lshlrev_b32 v2, 4, v2")
    a("v_add_u32 v1, v1, v2")
    a("v_bfe_u32 v2, v0, 1, 1")
    a("v_lshlrev_b32 v2, 3, v2")
    a("v_add_u32 v1, v1, v2")
    a(f"v_add_u32 v{VW}, {s0}, v1")
    a(f"v_mov_b32 v{VN+1}, {NONCE_LDS}")
    for r in range(ACC, ACC + 160):
        a(f"v_mov_b32 v{r}, 0")
    srd(a, 48, P_WS, HP_SIZE, HP_OFF)
    a("v_bfe_u32 v1, v0, 4, 1")
    a("v_lshlrev_b32 v1, 10, v1")
    a("v_lshrrev_b32 v2, 5, v0")
    a("v_lshlrev_b32 v2, 8, v2")
    a("v_and_b32 v3, 15, v0")
    a("v_lshlrev_b32 v3, 4, v3")
    a("v_add3_u32 v9, v1, v2, v3")
    a("s_mov_b32 s52, 0")
    a(f"s_mov_b32 s53, {slot_of(0)}")
    a(f"s_mov_b32 s55, {F_SLOT}")

    def reads(buf, sub):
        r = []
        for mi in range(2):
            r.append(f"ds_read_b128 {vr(fb(buf, mi), 4)}, v{VX+sub} offset:{mi*4096}")
        for j in range(5):
            for half in range(2):
                r.append(f"ds_read_b64_tr_b16 {vr(fa(buf, j)+2*half, 2)}, v{VW} offset:{sub*2560 + half*640 + j*32}")
        return r
    a("s_barrier")
    stamp_clk(a, o, 58); stamp(a, o, 1)
    if o.stamps:
        a("s_mov_b32 s94, s92")
    for r in reads(0, 0):
        a(r)
    a.label("Lf_loop")
    for sub in range(4):
        buf = sub & 1
        nxt = reads(buf ^ 1, (sub + 1) & 3)
        a("s_waitcnt lgkmcnt(0)")
        if sub == 0:
            loop_stamp_flush(a, o)
        mf = [(j, mi) for j in range(5) for mi in range(2)]
        for n, (j, mi) in enumerate(mf):
            a(f"v_mfma_f32_32x32x16_bf16 {vr(acc(j, mi), 16)}, {vr(fa(buf, j), 4)}, {vr(fb(buf, mi), 4)}, {vr(acc(j, mi), 16)}")
            if n == 0 and sub == 3:
                ring_advance(a, o, 55, F_SLOT, [VX, VX+1, VX+2, VX+3, VW])
            if n < 6:
                a(nxt[2 * n]); a(nxt[2 * n + 1])
            if n == 6 and sub == 0:
                a(f"ds_read_b32 v{VN}, v{VN+1}")
    a("s_cmp_lt_u32 s52, 10")
    a("s_cbranch_scc1 Lf_loop")
    a("s_waitcnt lgkmcnt(0)")
    loop_stamp_flush(a, o)
    stamp(a, o, 2); stamp_clk(a, o, 59)
    a(f"s_setprio {o.cprio}")
    a(f"v_readfirstlane_b32 s64, v{VN}")
    a(f"s_mov_b32 s56, {NLOG2E:#x}")
    a(f"s_mov_b32 s57, {NLOG2E:#x}")
    a("s_mul_i32 s58, s40, 5")
    a("s_lshl_b32 s59, s39, 2")
    a("s_add_u32 s59, s59, s38")
    a(f"s_mul_i32 s59, s59, {HT}")
    a(f"s_add_u32 s59, s59, {40*HK}")
    c_wsetup(a)
    T = FA
    for j in range(5):
        for k in {1: (0,), 2: (1, 2), 3: (3,)}.get(j, ()) if o.early_w else ():
            c_wload(a, k)
        if j == 3:
            a("s_cmp_eq_u32 s40, 21")
            a("s_cbranch_scc1 Lf_done")
        a(f"s_add_u32 s60, s58, {j}")
        a("s_lshr_b32 s61, s60, 1")
        a("s_lshl_b32 s61, s61, 12")
        a("s_and_b32 s60, s60, 1")
        a("s_lshl_b32 s60, s60, 9")
        a("s_add_u32 s61, s61, s60")
        a("s_add_u32 s62, s61, s59")
        for mi in range(2):
            g = acc(j, mi); u = g + 8
            t = T + ((j * 2 + mi) & 1) * 12
            for p in range(4):
                a(f"v_pk_mul_f32 {vr(t+2*p, 2)}, {vr(g+2*p, 2)}, s[56:57]")
            for p in range(8):
                a(f"v_exp_f32 v{t+p}, v{t+p}")
            for p in range(4):
                a(f"v_pk_mul_f32 {vr(g+2*p, 2)}, {vr(g+2*p, 2)}, {vr(u+2*p, 2)}")
            for p in range(4):
                a(f"v_pk_add_f32 {vr(t+2*p, 2)}, {vr(t+2*p, 2)}, 1.0 op_sel_hi:[1,0]")
            for p in range(8):
                a(f"v_rcp_f32 v{t+p}, v{t+p}")
            a("s_nop 0")
            for p in range(4):
                a(f"v_pk_mul_f32 {vr(g+2*p, 2)}, {vr(g+2*p, 2)}, {vr(t+2*p, 2)}")
            for p in range(4):
                a(f"v_cvt_pk_bf16_f32 v{t+8+p}, v{g+2*p}, v{g+2*p+1}")
            a(f"buffer_store_dwordx4 {vr(t+8, 4)}, v9, s[48:51], s62 offen offset:{mi*2048} {o.hst}")
    a.label("Lf_done")
    stamp(a, o, 3)
    a("s_lshl_b32 s65, s39, 2")
    a("s_add_u32 s65, s65, s38")
    a("s_lshl_b32 s65, s65, 13")
    a("s_lshl_b32 s66, s40, 7")
    a("s_add_u32 s65, s65, s66")
    a("s_mov_b64 s[66:67], 1")
    a("v_mov_b32 v2, 0")

def cmul(a, dr, di, ar, ai, br, bi, t):
    a(f"v_mul_f32 v{t}, v{ar}, v{br}")
    a(f"v_mul_f32 v{t+1}, v{ar}, v{bi}")
    a(f"v_fma_f32 v{t}, -v{ai}, v{bi}, v{t}")
    a(f"v_fma_f32 v{di}, v{ai}, v{br}, v{t+1}")
    a(f"v_mov_b32 v{dr}, v{t}")

def cfma(a, dr, di, ar, ai, br, bi, cr, ci):
    a(f"v_fma_f32 v{dr}, v{ar}, v{br}, v{cr}")
    a(f"v_fma_f32 v{di}, v{ar}, v{bi}, v{ci}")
    a(f"v_fma_f32 v{dr}, -v{ai}, v{bi}, v{dr}")
    a(f"v_fma_f32 v{di}, v{ai}, v{br}, v{di}")

def p1_ssm(a, o):
    ACC = 16; FA = 176; FB = 208; VX = 4; VB = 8
    LAM = 144; L32 = 146; L256 = 148; C2 = 150; TMP = 152; VN = 14
    PW = 224
    acc = lambda j, c: ACC + (j * 2 + c) * 16
    fa = lambda b, j: FA + b * 16 + j * 4
    fb = lambda b, c: FB + b * 8 + c * 4
    s0 = slot_of(0) * S_SLOT
    a.c("SSM compute wave: D[t][p] = X B^T")
    a("s_lshr_b32 s44, s38, 1")
    a("s_and_b32 s45, s38, 1")
    srd(a, 48, P_LRE, 1280)
    srd(a, 52, P_LIM, 1280)
    srd(a, 56, P_LDT, 1280)
    a("s_lshl_b32 s46, s40, 6")
    a("s_lshl_b32 s47, s45, 5")
    a("s_add_u32 s46, s46, s47")
    a("v_and_b32 v1, 31, v0")
    a("v_add_u32 v2, s46, v1")
    a("v_lshlrev_b32 v2, 1, v2")
    a(f"buffer_load_ushort v{TMP}, v2, s[48:51], 0 offen")
    a(f"buffer_load_ushort v{TMP+1}, v2, s[52:55], 0 offen")
    a(f"buffer_load_ushort v{TMP+2}, v2, s[56:59], 0 offen")
    a("v_bfe_u32 v2, v0, 2, 1")
    a("v_lshlrev_b32 v2, 6, v2")
    a("v_and_b32 v3, 1, v0")
    a("v_lshl_add_u32 v2, v3, 5, v2")
    a(f"v_bfe_u32 v{VX}, v0, 1, 1")
    a(f"v_add_u32 v2, v2, v{VX}")
    a(f"v_bfe_u32 v{VX}, v0, 3, 2")
    a(f"v_lshl_add_u32 v2, v{VX}, 1, v2")
    a(f"v_lshl_or_b32 v3, v3, 2, v{VX}")
    a(f"v_lshrrev_b32 v{VX}, 5, v0")
    a(f"v_xor_b32 v3, v3, v{VX}")
    a("v_lshlrev_b32 v3, 4, v3")
    a("v_lshl_add_u32 v3, v2, 7, v3")
    a("s_lshl_b32 s47, s44, 14")
    a(f"s_add_u32 s47, s47, {s0 + S_XO}")
    a(f"v_add_u32 v{VX}, s47, v3")
    for sub in range(1, 4):
        a(f"v_xor_b32 v{VX+sub}, {sub*32}, v{VX}")
    a("v_lshrrev_b32 v2, 5, v0")
    a("v_bfe_u32 v3, v0, 1, 3")
    a("v_xor_b32 v3, v3, v2")
    a("v_lshlrev_b32 v3, 4, v3")
    a("v_lshl_add_u32 v3, v1, 7, v3")
    a("s_lshl_b32 s47, s45, 12")
    a(f"s_add_u32 s47, s47, {s0}")
    a(f"v_add_u32 v{VB}, s47, v3")
    for sub in range(1, 4):
        a(f"v_xor_b32 v{VB+sub}, {sub*32}, v{VB}")
    a(f"v_mov_b32 v{VN+1}, {NONCE_LDS}")
    for r in range(ACC, ACC + 128):
        a(f"v_mov_b32 v{r}, 0")
    a("s_waitcnt vmcnt(0)")
    t = TMP
    a(f"v_lshlrev_b32 v{t}, 16, v{t}")
    a(f"v_lshlrev_b32 v{t+1}, 16, v{t+1}")
    a(f"v_lshlrev_b32 v{t+2}, 16, v{t+2}")
    a(f"v_mul_f32 v{t+2}, {LOG2E:#x}, v{t+2}")
    a(f"v_exp_f32 v{t+2}, v{t+2}")
    a("s_nop 0")
    a(f"v_cvt_pk_bf16_f32 v{t+2}, v{t+2}, v{t+2}")
    a(f"v_lshlrev_b32 v{t+2}, 16, v{t+2}")
    a(f"v_mul_f32 v{t+3}, v{t+2}, v{t}")
    a(f"v_mul_f32 v{t+4}, v{t+2}, v{t+1}")
    a(f"v_mul_f32 v{t+3}, {LOG2E:#x}, v{t+3}")
    a(f"v_exp_f32 v{t+3}, v{t+3}")
    a(f"v_mul_f32 v{t+4}, 0.15915494, v{t+4}")
    a(f"v_rndne_f32 v{t+5}, v{t+4}")
    a(f"v_sub_f32 v{t+4}, v{t+4}, v{t+5}")
    a(f"v_cos_f32 v{t+5}, v{t+4}")
    a(f"v_sin_f32 v{t+6}, v{t+4}")
    a("s_nop 0")
    a(f"v_mul_f32 v{LAM}, v{t+3}, v{t+5}")
    a(f"v_mul_f32 v{LAM+1}, v{t+3}, v{t+6}")
    a(f"v_mul_f32 v{t+3}, v{t}, v{t}")
    a(f"v_fma_f32 v{t+3}, v{t+1}, v{t+1}, v{t+3}")
    a(f"v_rcp_f32 v{t+3}, v{t+3}")
    a(f"v_add_f32 v{t+4}, -1.0, v{LAM}")
    a(f"v_mul_f32 v{t+5}, v{t+4}, v{t}")
    a(f"v_fma_f32 v{t+5}, v{LAM+1}, v{t+1}, v{t+5}")
    a(f"v_mul_f32 v{t+6}, v{LAM+1}, v{t}")
    a(f"v_fma_f32 v{t+6}, -v{t+4}, v{t+1}, v{t+6}")
    a(f"v_add_f32 v{t+3}, v{t+3}, v{t+3}")
    a(f"v_mul_f32 v{C2}, v{t+5}, v{t+3}")
    a(f"v_mul_f32 v{C2+1}, v{t+6}, v{t+3}")
    cmul(a, L32, L32 + 1, LAM, LAM + 1, LAM, LAM + 1, t)
    for _ in range(4):
        cmul(a, L32, L32 + 1, L32, L32 + 1, L32, L32 + 1, t)
    cmul(a, L256, L256 + 1, L32, L32 + 1, L32, L32 + 1, t)
    for _ in range(2):
        cmul(a, L256, L256 + 1, L256, L256 + 1, L256, L256 + 1, t)
    SEL = TMP + 8
    a(f"v_mov_b32 v{PW}, v{C2}"); a(f"v_mov_b32 v{PW+1}, v{C2+1}")
    for s in range(1, 8):
        a(f"v_mul_f32 v{PW+2*s}, v{PW+2*s-2}, v{L32}")
        a(f"v_mul_f32 v{PW+2*s+1}, v{PW+2*s-2}, v{L32+1}")
        a(f"v_fma_f32 v{PW+2*s}, -v{PW+2*s-1}, v{L32+1}, v{PW+2*s}")
        a(f"v_fma_f32 v{PW+2*s+1}, v{PW+2*s-1}, v{L32}, v{PW+2*s+1}")
    a("s_cmp_eq_u32 s44, 0")
    a("s_cselect_b64 s[68:69], 0, -1")
    a("s_mov_b32 s70, 0")
    a("s_mov_b32 s71, -1")
    def select(src, dst):
        for par in range(2):
            for c in range(2):
                r = lambda s: src + 2 * s + c
                a(f"v_cndmask_b32 v{TMP+16}, v{r(par)}, v{r(2+par)}, s[70:71]")
                a(f"v_cndmask_b32 v{TMP+17}, v{r(4+par)}, v{r(6+par)}, s[70:71]")
                a(f"v_cndmask_b32 v{dst+2*c+par}, v{TMP+16}, v{TMP+17}, s[68:69]")
    select(PW, SEL + 4)
    a("s_mov_b32 s52, 0")
    a(f"s_mov_b32 s53, {slot_of(0)}")
    a(f"s_mov_b32 s55, {S_SLOT}")

    def reads(buf, sub):
        r = []
        r.append(f"ds_read_b128 {vr(fb(buf, 0), 4)}, v{VB+sub}")
        r.append(f"ds_read_b128 {vr(fa(buf, 0), 4)}, v{VX+sub}")
        r.append(f"ds_read_b128 {vr(fb(buf, 1), 4)}, v{VB+sub} offset:8192")
        for j in range(1, 4):
            r.append(f"ds_read_b128 {vr(fa(buf, j), 4)}, v{VX+(sub ^ ((j & 1) << 1))} offset:{j*1024}")
        return r
    a("s_barrier")
    stamp_clk(a, o, 58); stamp(a, o, 1)
    if o.stamps:
        a("s_mov_b32 s94, s92")
    for r in reads(0, 0):
        a(r)
    a.label("Ls_loop")
    for sub in range(4):
        buf = sub & 1
        nxt = reads(buf ^ 1, (sub + 1) & 3)
        a("s_waitcnt lgkmcnt(0)")
        if sub == 0:
            loop_stamp_flush(a, o)
        mf = [(j, c) for j in range(4) for c in range(2)]
        for n, (j, c) in enumerate(mf):
            a(f"v_mfma_f32_32x32x16_bf16 {vr(acc(j, c), 16)}, {vr(fa(buf, j), 4)}, {vr(fb(buf, c), 4)}, {vr(acc(j, c), 16)}")
            if n == 0 and sub == 3:
                ring_advance(a, o, 55, S_SLOT, range(VX, VX + 8))
            if n < 3:
                a(nxt[2 * n]); a(nxt[2 * n + 1])
            if n == 3 and sub == 0:
                a(f"ds_read_b32 v{VN}, v{VN+1}")
    a("s_cmp_lt_u32 s52, 10")
    a("s_cbranch_scc1 Ls_loop")
    a("s_waitcnt lgkmcnt(0)")
    loop_stamp_flush(a, o)
    stamp(a, o, 2); stamp_clk(a, o, 59)
    a(f"s_setprio {o.cprio}")
    a(f"v_readfirstlane_b32 s64, v{VN}")
    a("v_and_b32 v1, 31, v0")
    a("s_lshl_b32 s47, s45, 5")
    a("v_add_u32 v1, s47, v1")
    a("v_lshlrev_b32 v2, 6, v1")
    a(f"v_add_u32 v2, {S_AGG}, v2")
    a("v_lshrrev_b32 v3, 5, v0")
    a("v_lshl_add_u32 v3, v3, 4, v2")
    a("s_lshl_b32 s47, s44, 5")
    a("v_add_u32 v3, s47, v3")
    srd(a, 48, P_WS, AGG_SIZE, AGG_OFF)
    LR = vr(LAM, 2)
    def pk_lr(d, x, y):
        a(f"v_pk_fma_f32 {vr(d, 2)}, {LR}, {vr(x, 2)}, {vr(y, 2)} op_sel_hi:[0,1,1]")
    def pk_li(d, x, y, neg):
        n = " neg_lo:[1,0,0] neg_hi:[1,0,0]" if neg else ""
        a(f"v_pk_fma_f32 {vr(d, 2)}, {LR}, {vr(x, 2)}, {vr(y, 2)} op_sel:[1,0,0] op_sel_hi:[1,1,1]{n}")
    ure = lambda n: acc(n >> 3, 0) + 2 * (n & 7)
    uim = lambda n: acc(n >> 3, 1) + 2 * (n & 7)
    S = [TMP, TMP + 4]
    pr, pi = ure(0), uim(0)
    for n in range(1, 32):
        d = S[n & 1]
        pk_lr(d, pr, ure(n)); pk_lr(d + 2, pi, uim(n))
        pk_li(d, pi, d, True); pk_li(d + 2, pr, d + 2, False)
        pr, pi = d, d + 2
    Sf = S[31 & 1]
    a(f"ds_write_b128 v3, {vr(Sf, 4)}")
    a("s_waitcnt lgkmcnt(0)")
    a("s_barrier")
    AG = FA
    for q in range(4):
        a(f"ds_read_b128 {vr(AG+4*q, 4)}, v2 offset:{q*16}")
    are = lambda s: AG + 4 * (s >> 1) + (s & 1)
    aim = lambda s: AG + 4 * (s >> 1) + 2 + (s & 1)
    PF = FA + 16
    a("v_lshlrev_b32 v3, 4, v1")
    a("s_lshl_b32 s46, s40, 13")
    a("s_lshl_b32 s47, s39, 10")
    a("s_add_u32 s47, s47, s46")
    a(f"v_mov_b32 v{PF}, 0"); a(f"v_mov_b32 v{PF+1}, 0")
    a(f"v_mov_b32 v{TMP+1}, s64"); a(f"v_mov_b32 v{TMP+3}, s64")
    a("s_waitcnt lgkmcnt(0)")
    a(f"v_mov_b32 v{PF+2}, v{are(0)}"); a(f"v_mov_b32 v{PF+3}, v{aim(0)}")
    for s in range(1, 7):
        cfma(a, PF + 2 * (s + 1), PF + 2 * (s + 1) + 1, L32, L32 + 1, PF + 2 * s, PF + 2 * s + 1, are(s), aim(s))
    cfma(a, TMP, TMP + 2, L32, L32 + 1, PF + 14, PF + 15, are(7), aim(7))
    a("s_cmp_lg_u32 s44, 0")
    a("s_cbranch_scc1 Ls_nopub")
    a("s_mov_b32 exec_hi, 0")
    a(f"buffer_store_dwordx4 {vr(TMP, 4)}, v3, s[48:51], s47 offen sc1")
    a("s_mov_b64 exec, -1")
    a.label("Ls_nopub")
    stamp(a, o, 3)
    select(PF, SEL)
    CC = vr(C2, 2)
    def scale(re, im):
        a(f"v_pk_mul_f32 {vr(TMP+4, 2)}, {CC}, {vr(re, 2)} op_sel:[1,0] op_sel_hi:[1,1]")
        a(f"v_pk_mul_f32 {vr(re, 2)}, {CC}, {vr(re, 2)} op_sel_hi:[0,1]")
        a(f"v_pk_fma_f32 {vr(re, 2)}, {CC}, {vr(im, 2)}, {vr(re, 2)} op_sel:[1,0,0] op_sel_hi:[1,1,1] neg_lo:[1,0,0] neg_hi:[1,0,0]")
        a(f"v_pk_fma_f32 {vr(im, 2)}, {CC}, {vr(im, 2)}, {vr(TMP+4, 2)} op_sel_hi:[0,1,1]")
    scale(SEL, SEL + 2)
    for n in range(32):
        scale(ure(n), uim(n))
    stamp(a, o, 4)
    CR = TMP + 16
    a("s_cmp_eq_u32 s39, 0")
    a("s_cbranch_scc1 Ls_nocarry")
    GL = FA
    a("s_mov_b32 s72, 0")
    a("s_mov_b32 s50, s47")
    a("s_add_u32 s47, s46, 4096")
    a.label("Ls_poll")
    for i in range(7):
        a(f"buffer_load_dwordx4 {vr(GL+4*i, 4)}, v3, s[48:51], s{46 + (i >> 2)} offen offset:{(i & 3)*1024} sc1")
    a("s_waitcnt vmcnt(0)")
    a(f"v_mov_b32 v{CR+2}, 0"); a(f"v_mov_b32 v{CR+3}, 0")
    for i in range(7):
        a(f"v_cmp_ne_u32 vcc, s64, v{GL+4*i+1}")
        a(f"v_cmp_ne_u32 s[66:67], s64, v{GL+4*i+3}")
        a(f"v_mov_b32 v{CR}, v{CR+2}"); a(f"v_mov_b32 v{CR+1}, v{CR+3}")
        a("s_or_b64 vcc, vcc, s[66:67]")
        a("s_cbranch_scc1 Ls_retry")
        cfma(a, CR + 2, CR + 3, L256, L256 + 1, CR, CR + 1, GL + 4 * i, GL + 4 * i + 2)
        if i < 6:
            a(f"s_cmp_eq_u32 s39, {i+1}")
            a("s_cbranch_scc1 Ls_gotcarry")
    a("s_branch Ls_gotcarry")
    a.label("Ls_retry")
    a(f"s_sleep {o.agg_sleep}")
    a("s_add_u32 s72, s72, 1")
    a(f"s_cmp_lt_u32 s72, {SPIN_MAX:#x}")
    a("s_cbranch_scc1 Ls_poll")
    a.label("Ls_gotcarry")
    CY = vr(CR + 2, 2)
    a(f"v_pk_fma_f32 {vr(SEL, 2)}, {CY}, {vr(SEL+4, 2)}, {vr(SEL, 2)} op_sel_hi:[0,1,1]")
    a(f"v_pk_fma_f32 {vr(SEL+2, 2)}, {CY}, {vr(SEL+6, 2)}, {vr(SEL+2, 2)} op_sel_hi:[0,1,1]")
    a(f"v_pk_fma_f32 {vr(SEL, 2)}, {CY}, {vr(SEL+6, 2)}, {vr(SEL, 2)} op_sel:[1,0,0] op_sel_hi:[1,1,1] neg_lo:[1,0,0] neg_hi:[1,0,0]")
    a(f"v_pk_fma_f32 {vr(SEL+2, 2)}, {CY}, {vr(SEL+4, 2)}, {vr(SEL+2, 2)} op_sel:[1,0,0] op_sel_hi:[1,1,1]")
    a.label("Ls_nocarry")
    stamp(a, o, 5)
    TS = 144
    a(f"s_mul_i32 s47, s38, {64*TS}")
    a(f"s_add_u32 s47, s47, {S_TR}")
    a("v_and_b32 v1, 31, v0")
    a(f"v_mul_u32_u24 v1, {TS}, v1")
    a("v_lshrrev_b32 v2, 5, v0")
    a("v_lshl_add_u32 v1, v2, 6, v1")
    a("v_add_u32 v1, s47, v1")
    a("v_lshrrev_b32 v2, 4, v0")
    a("v_lshlrev_b32 v2, 3, v2")
    a("v_bfe_u32 v3, v0, 2, 2")
    a("v_add_u32 v2, v2, v3")
    a(f"v_mul_u32_u24 v2, {TS}, v2")
    a("v_and_b32 v3, 3, v0")
    a("v_lshl_add_u32 v2, v3, 3, v2")
    a("v_add_u32 v2, s47, v2")
    a("v_lshlrev_b32 v3, 4, v0")
    srd(a, 48, P_WS, HP_SIZE, HP_OFF)
    a("s_lshl_b32 s46, s40, 1")
    a("s_add_u32 s73, s46, s45")
    a("s_lshl_b32 s46, s73, 13")
    a("s_lshl_b32 s47, s39, 2")
    a("s_lshl_b32 s56, s44, 1")
    a("s_add_u32 s47, s47, s56")
    a(f"s_mul_i32 s47, s47, {HT}")
    a("s_add_u32 s46, s46, s47")
    a(f"s_add_u32 s47, s46, {HT}")
    a(f"s_add_u32 s56, s46, {HK}")
    a(f"s_add_u32 s57, s47, {HK}")
    c_wsetup(a)
    pr, pi = SEL, SEL + 2
    PKD = FA; OUT = FA + 32
    def flush_round(rd):
        a("s_waitcnt lgkmcnt(0)")
        for c in range(2):
            for sg in range(4):
                d = OUT + (c * 4 + sg) * 4
                a(f"ds_read_b64_tr_b16 {vr(d, 2)}, v2 offset:{c*32*TS + sg*32}")
                a(f"ds_read_b64_tr_b16 {vr(d+2, 2)}, v2 offset:{c*32*TS + 4*TS + sg*32}")
    def store_round(rd):
        a("s_waitcnt lgkmcnt(0)")
        for c in range(2):
            for sg in range(4):
                d = OUT + (c * 4 + sg) * 4
                mi = 2 * sg + rd
                so = (46, 47, 56, 57)[c * 2 + (mi >> 2)]
                a(f"buffer_store_dwordx4 {vr(d, 4)}, v3, s[48:51], s{so} offen offset:{(mi & 3)*1024} {o.hst}")
    for n in range(32):
        r, i = ure(n), uim(n)
        pk_lr(r, pr, r); pk_lr(i, pi, i)
        pk_li(r, pi, r, True); pk_li(i, pr, i, False)
        pr, pi = r, i
        if n == 17:
            flush_round(0)
        if n == 21:
            store_round(0)
        if n in (10, 25, 28) and o.early_w:
            c_wload(a, (10, 25, 28).index(n))
        if (n & 7) == 7:
            j = n >> 3
            st = PKD + (j & 1) * 16
            for c in range(2):
                sg = "-" if c else ""
                for par in range(2):
                    for e in range(4):
                        b = acc(j, c) + par
                        a(f"v_cvt_pk_bf16_f32 v{st+c*8+par*4+e}, {sg}v{b+4*e}, {sg}v{b+4*e+2}")
                    a(f"ds_write_b128 v1, {vr(st+c*8+par*4, 4)} offset:{c*32*TS + par*32 + (j & 1)*16}")
    flush_round(1)
    if o.early_w:
        c_wload(a, 3)
    store_round(1)
    stamp(a, o, 6)
    a("s_lshl_b32 s65, s39, 2")
    a("s_lshl_b32 s66, s44, 1")
    a("s_add_u32 s65, s65, s66")
    a("s_lshl_b32 s65, s65, 13")
    a("s_lshl_b32 s66, s73, 7")
    a("s_add_u32 s65, s65, s66")
    a(f"s_add_u32 s65, s65, {22*128}")
    a("s_mov_b64 s[66:67], 3")
    a("v_lshlrev_b32 v2, 13, v0")
    a("s_branch L_p2c")

L_ACC = 6; L_H = 86; L_W = 134
def p2_prefetch(a, o, vm, cuts, wait9, hook=None):
    if wait9:
        a(f"v_mov_b32 v2, {NONCE_LDS}")
        a("ds_read_b32 v2, v2")
    srd(a, 48, P_WS, HP_SIZE, HP_OFF)
    srd(a, 52, P_WS, W2_SIZE, W2_OFF)
    a("s_mul_i32 s74, s90, 14")
    a("s_min_u32 s74, s74, 40")
    a(f"s_mul_i32 s66, s42, {HT}")
    a(f"s_add_u32 s66, s66, {40*HK}")
    a(f"s_mul_i32 s67, s43, {WT}")
    a(f"s_add_u32 s67, s67, {40*WK}")
    a("s_cmp_lt_u32 s90, 3")
    a("s_cselect_b32 s50, s66, s50")
    a("s_cselect_b32 s54, s67, s54")
    srd(a, 56, P_WS, W2_SIZE, W2_OFF)
    if wait9:
        a("s_waitcnt lgkmcnt(0)")
        a("v_readfirstlane_b32 s64, v2")
    a("v_lshlrev_b32 v1, 4, v0")
    a(f"s_mul_i32 s76, s74, {WK}")
    a(f"s_mul_i32 s66, s43, {WT}")
    a("s_add_u32 s76, s76, s66")
    a("s_add_u32 s77, s76, 4096")
    a("s_mul_i32 s68, s90, 10")
    a("s_add_u32 s68, s68, 56")
    a(f"s_mul_i32 s68, s68, {WK}")
    a("s_add_u32 s68, s68, s66")
    a("s_add_u32 s70, s68, 4096")
    a("s_mul_i32 s69, s90, 5120")
    ops = []
    for n in range(6):
        for i in range(5):
            post = [f"s_add_u32 s76, s76, {WK}", f"s_add_u32 s77, s77, {WK}"] if i == 4 else []
            ops.append(([], f"buffer_load_dwordx4 {vr(L_W + n*20 + i*4, 4)}, v1, s[52:55], s{76 + (i >> 2)} offen offset:{(i & 3)*1024} sc1", post, 0))
    for n in range(6):
        for i in range(5):
            pre = [f"s_add_u32 m0, s69, {P2W + n*20480 + (i >> 2)*4096}", "s_nop 0"] if i in (0, 4) else []
            post = [f"s_add_u32 s68, s68, {WK}", f"s_add_u32 s70, s70, {WK}"] if i == 4 else []
            ops.append((pre, f"buffer_load_dwordx4 v1, s[56:59], s{68 + 2*(i >> 2)} offen offset:{(i & 3)*1024} sc1 lds", post, 9 if n < 4 else 10))
    tag = int(wait9)
    def run(lo, hi, passed, thr=0):
        for pre, ins, post, need in ops[lo:hi]:
            assert need <= passed
            for p in pre: a(p)
            if thr:
                a(f"s_waitcnt vmcnt({thr - 1})")
            vm.op(ins, "pf")
            for p in post: a(p)
    def bar(s):
        stamp(a, o, 8 + s)
        a("s_barrier")
        stamp(a, o, 20 + s)
        if hook and s < 10: hook(s)
    def fwok():
        a("s_setprio 0")
        a("s_lshl_b32 s67, s90, 2")
        a(f"s_add_u32 s67, s67, {SFLAG_LDS}")
        a("v_mov_b32 v2, s67")
        a("v_mov_b32 v3, s64")
        a("ds_write_b32 v2, v3 offset:144")
    if not o.ssm_early:
        a("s_cmp_eq_u32 s41, 1")
        a(f"s_cbranch_scc1 Lp_nolook{tag}")
    fw_load(a, 24, 1)
    a.label(f"Lp_nolook{tag}")
    bar(8)
    a("s_waitcnt vmcnt(0)")
    for k in range(4):
        a(f"v_xor_b32 v{24+k}, s64, v{24+k}")
    a("v_or3_b32 v24, v24, v25, v26")
    a("v_or3_b32 v24, v24, v27, s41" if not o.ssm_early else "v_or_b32 v24, v24, v27")
    a("v_cmp_ne_u32 vcc, 0, v24")
    a("s_cmp_eq_u64 vcc, 0")
    a(f"s_cbranch_scc0 Lp_late{tag}")
    stamp(a, o, 5)
    vm.q = []
    run(0, cuts[0], 8)
    bar(9)
    run(cuts[0], cuts[1], 9)
    bar(10)
    if o.ssm_early:
        assert not o.use_y
        a("s_cmp_eq_u32 s41, 0")
        a(f"s_cbranch_scc1 Ll_noxe{tag}")
        a("s_barrier")
        a.label(f"Ll_noxe{tag}")
    fwok()
    run(cuts[1], 60, 10, o.thr_e)
    a(f"s_branch Lp_done{tag}")
    a.label(f"Lp_late{tag}")
    bar(9)
    bar(10)
    a("s_cmp_eq_u32 s41, 0")
    a(f"s_cbranch_scc1 Ll_nox{tag}")
    a("s_barrier")
    a.label(f"Ll_nox{tag}")
    fw_load(a, 24, 1)
    fw_check(a, 24, 1)
    fwok()
    stamp(a, o, 4)
    vm.q = []
    run(0, o.pre_y, 10, o.thr_y)
    if o.use_y:
        a("s_cmp_eq_u32 s41, 0")
        a(f"s_cbranch_scc1 Ll_noy{tag}")
        a("s_barrier")
        a.label(f"Ll_noy{tag}")
    run(o.pre_y, 60, 10, o.thr_t)
    a.label(f"Lp_done{tag}")
    if hook: hook(10)
    vm.drain()
    a("s_lshl_b32 s66, s90, 2")
    a(f"s_add_u32 s66, s66, {SFLAG_LDS}")
    a("v_mov_b32 v2, s66")
    a("v_mov_b32 v3, s64")
    a("ds_write_b32 v2, v3")
    stamp(a, o, 6)

def p1_loader(a, o):
    a("s_cmp_ge_u32 s90, 2")
    a("s_cbranch_scc1 L_helper")
    VXO = 4; VWO = 12; VE = 18
    vm = VM(a)
    a("v_lshrrev_b32 v1, 3, v0")
    a("v_and_b32 v2, 7, v0")
    a("v_mul_u32_u24 v3, 1280, v1")
    a(f"v_lshrrev_b32 v{VE}, 1, v1")
    a(f"v_xor_b32 v{VE}, v{VE}, v2")
    a(f"v_lshlrev_b32 v{VE}, 4, v{VE}")
    a(f"v_xor_b32 v{VE+1}, 64, v{VE}")
    a(f"v_add_u32 v{VE}, v{VE}, v3")
    a(f"v_add_u32 v{VE+1}, v{VE+1}, v3")
    a(f"s_and_b32 s44, s40, {o.ab}")
    a(f"s_and_b32 s45, s39, {o.ab}")
    a("s_lshl_b32 s46, s39, 8")
    a("s_lshl_b32 s47, s90, 7")
    a("s_add_u32 s46, s46, s47")
    a("s_lshl_b32 s47, s44, 6")
    a("s_add_u32 s85, s46, s47")
    a("s_xor_b32 s47, s47, 64")
    a("s_add_u32 s86, s46, s47")
    a("s_mul_i32 s85, s85, 1280")
    a("s_mul_i32 s86, s86, 1280")
    a("s_lshl_b32 s75, s90, 14")
    a("s_lshl_b32 s47, s44, 13")
    a("s_add_u32 s75, s75, s47")
    a("s_xor_b32 s76, s75, 8192")
    a("s_cmp_eq_u32 s41, 1")
    a("s_cbranch_scc1 Ll_ssm")
    for ssm in (0, 1):
        if ssm:
            a.label("Ll_ssm")
        for i in range(8):
            bit = (i & 1) ^ ((i >> 2) & 1 if ssm else 0)
            a(f"v_add_u32 v{VXO+i}, {i*8*1280 - (i & 3)*1024}, v{VE+bit}")
        xo, slot = (S_XO, S_SLOT) if ssm else (F_XO, F_SLOT)
        a(f"s_add_u32 s75, s75, {xo}")
        a(f"s_add_u32 s76, s76, {xo}")
        a(f"s_mov_b32 s81, {slot}")
        a(f"s_mov_b32 s82, {2*slot}")
        a("s_xor_b32 s47, s45, 1")
        if not ssm:
            for i in range(5):
                a(f"v_add_u32 v2, {64*i}, v0")
                a("v_mul_u32_u24 v3, 6554, v2")
                a("v_lshrrev_b32 v3, 16, v3")
                a("v_mul_u32_u24 v1, 10, v3")
                a("v_sub_u32 v2, v2, v1")
                a("v_mul_u32_u24 v3, 3456, v3")
                a("v_lshl_add_u32 v3, v2, 4, v3")
                a(f"v_subrev_u32 v{VWO+i}, {(i & 3)*1024}, v3")
            a("s_mul_i32 s46, s40, 160")
            a(f"s_mul_i32 s66, s45, {32*3456}")
            a(f"s_mul_i32 s67, s47, {32*3456}")
            a("s_add_u32 s66, s66, s46")
            a("s_add_u32 s67, s67, s46")
            a(f"s_mul_i32 s46, s90, {F_UP}")
            a("s_mul_i32 s77, s45, 5120")
            a("s_mul_i32 s78, s47, 5120")
            a("s_add_u32 s77, s77, s46")
            a("s_add_u32 s78, s78, s46")
            a("s_add_u32 s79, s77, 4096")
            a("s_add_u32 s80, s78, 4096")
            a("s_mov_b32 s83, s81")
            a("s_mov_b32 s87, s82")
            a(f"s_mov_b32 s84, {64*3456}")
            a("s_waitcnt lgkmcnt(0)")
            a("s_cmp_eq_u32 s90, 0")
            a(f"s_cselect_b32 s52, s{P_W1}, s{P_W3}")
            a(f"s_cselect_b32 s53, s{P_W1+1}, s{P_W3+1}")
            a(f"s_mov_b32 s54, {640*3456}")
            a("s_branch Ll_go")
        else:
            for i in range(4):
                a(f"v_add_u32 v{VWO+i}, {i*8*1280 - i*1024}, v{VE+(i & 1)}")
            a(f"v_mov_b32 v{VWO+4}, 0x40000000")
            a(f"s_mul_i32 s46, s40, {64*1280}")
            a(f"s_mul_i32 s66, s45, {32*1280}")
            a(f"s_mul_i32 s67, s47, {32*1280}")
            a("s_add_u32 s66, s66, s46")
            a("s_add_u32 s67, s67, s46")
            a("s_lshl_b32 s46, s90, 13")
            a("s_lshl_b32 s77, s45, 12")
            a("s_add_u32 s77, s77, s46")
            a("s_xor_b32 s78, s77, 4096")
            a("s_lshl_b32 s79, s90, 10")
            a(f"s_add_u32 s79, s79, {S_DUMMY}")
            a("s_mov_b32 s80, s79")
            a("s_mov_b32 s83, 0")
            a("s_mov_b32 s87, 0")
            a("s_movk_i32 s84, 128")
            a("s_waitcnt lgkmcnt(0)")
            a("s_cmp_eq_u32 s90, 0")
            a(f"s_cselect_b32 s52, s{P_BRE}, s{P_BIM}")
            a(f"s_cselect_b32 s53, s{P_BRE+1}, s{P_BIM+1}")
            a(f"s_mov_b32 s54, {640*1280}")
    a.label("Ll_go")
    a("s_mov_b32 s55, 0x20000")
    srd(a, 48, P_X, 2048 * 1280)
    def setm0(base, sl, five=False):
        if sl == 0:
            return f"s_mov_b32 m0, s{base}"
        return f"s_add_u32 m0, s{base}, s{((83, 87) if five else (81, 82))[sl-1]}"
    def half(stage, h, extra=()):
        extra = list(extra)
        sl = slot_of(stage)
        def dma(ins):
            vm.op(ins, ("st", stage))
            for _ in range(2 if len(extra) > 14 else 1):
                if extra:
                    a(extra.pop(0))
                    if extra and extra[0].startswith("s_addc"):
                        a(extra.pop(0))
        a(setm0(75 + h, sl)); a("s_nop 0")
        for i in range(8):
            if i == 4:
                a("s_add_u32 m0, m0, 4096"); a("s_nop 0")
            dma(f"buffer_load_dwordx4 v{VXO+i}, s[48:51], s{85+h} offen offset:{(i & 3)*1024} lds")
        a(setm0(77 + h, sl))
        a(f"s_add_u32 s{85+h}, s{85+h}, 128")
        for i in range(4):
            dma(f"buffer_load_dwordx4 v{VWO+i}, s[52:55], s{66+h} offen offset:{i*1024} lds")
        a(setm0(79 + h, sl, True)); a("s_nop 0")
        dma(f"buffer_load_dwordx4 v{VWO+4}, s[52:55], s{66+h} offen lds")
        a(f"s_add_u32 s{66+h}, s{66+h}, s84")
        for x in extra:
            a(x)
    def bar(s):
        vm.wait(("st", s))
        stamp(a, o, 8 + s)
        a("s_barrier")
        stamp(a, o, 20 + s)
    wo = lambda: warm_ops(o, "w")
    lw = list(o.lwarm)
    assert sum(lw) in (0, 9)
    half0 = half
    def lwarm_setup():
        a("v_lshlrev_b32 v20, 4, v0")
        a("s_cmp_eq_u32 s90, 1")
        a("s_cbranch_scc1 Ll_wx")
        a("s_and_b32 s68, s2, 1")
        a("s_cmp_eq_u32 s68, 0")
        a(f"s_cselect_b32 s56, s{P_W1}, s{P_W3}")
        a(f"s_cselect_b32 s57, s{P_W1+1}, s{P_W3+1}")
        a(f"s_mov_b32 s58, {640*3456}")
        a("s_mov_b32 s60, s56")
        a("s_mov_b32 s61, s57")
        a("s_mov_b32 s62, s58")
        a("s_lshr_b32 s68, s2, 1")
        a("s_mul_i32 s68, s68, 1728")
        a("s_add_u32 s69, s68, 1008")
        a("v_min_u32 v21, 704, v20")
        a(f"s_mov_b32 s70, {64*3456}")
        a("s_branch Ll_wd")
        a.label("Ll_wx")
        a(f"s_mov_b32 s56, s{P_X}")
        a(f"s_mov_b32 s57, s{P_X+1}")
        a(f"s_mov_b32 s58, {2048*1280}")
        a("s_cmp_lt_u32 s2, 128")
        a(f"s_cselect_b32 s60, s{P_BRE}, s{P_BIM}")
        a(f"s_cselect_b32 s61, s{P_BRE+1}, s{P_BIM+1}")
        a(f"s_mov_b32 s62, {640*1280}")
        a("v_lshrrev_b32 v20, 3, v0")
        a("v_min_u32 v21, 4, v20")
        a("v_and_b32 v22, 7, v0")
        a("v_lshlrev_b32 v22, 4, v22")
        a("v_mul_u32_u24 v20, 1280, v20")
        a("v_mul_u32_u24 v21, 1280, v21")
        a("v_add_u32 v20, v20, v22")
        a("v_add_u32 v21, v21, v22")
        a(f"s_mul_i32 s68, s2, {8*1280}")
        a("s_and_b32 s69, s2, 127")
        a(f"s_mul_i32 s69, s69, {5*1280}")
        a("s_movk_i32 s70, 128")
        a.label("Ll_wd")
        a("s_mov_b32 s59, 0x20000")
        a("s_mov_b32 s63, 0x20000")
    nh = [0]
    def half(stage, h, extra=()):
        half0(stage, h, extra)
        if nh[0] == 0 and sum(lw):
            lwarm_setup()
        k = lw[nh[0]] if nh[0] < len(lw) else 0
        nh[0] += 1
        for _ in range(k):
            a("s_add_u32 s68, s68, s70")
            a("s_add_u32 s69, s69, s70")
            vm.op("buffer_load_dwordx4 v[28:31], v20, s[56:59], s68 offen", "lw")
            vm.op("buffer_load_dwordx4 v[28:31], v21, s[60:63], s69 offen", "lw")
    half(0, 0); half(0, 1)
    warm_setup(a, o); warm_skip(a, o, 3)
    half(1, 0, wo()); bar(0)
    nw = 1
    for s in range(0, 8):
        if s < o.lead:
            half(s + 1, 1); half(s + 2, 0, wo() if nw < 7 else ()); nw += 1
        elif s == o.lead:
            half(s + 1, 1); half(s + 2, 0, wo() if nw < 7 else ()); nw += 1; half(s + 2, 1)
        else:
            half(s + 2, 0, wo() if nw < 7 else ()); nw += 1; half(s + 2, 1)
        if s < 7:
            bar(s + 1)
    assert o.lead <= 7 and nw >= 7
    vm.wait(("st", 8))
    p2_prefetch(a, o, vm, o.cuts_l, True)
    a("s_branch L_p2l")

    a.label("L_helper")
    a(f"s_setprio {o.hprio}")
    a("s_waitcnt lgkmcnt(0)")
    vm = VM(a)
    GWF, XF, GA = 40, 120, 128
    RJ, OJ, O2 = (134, 182), (150, 198), 166
    if o.codepf:
        a("s_getpc_b64 s[56:57]")
        a.label("Lpc")
        a(f"s_sub_u32 s56, s56, Lpc-{NAME}_kernel")
        a("s_subb_u32 s57, s57, 0")
        a(f"s_mov_b32 s58, L_codeend-{NAME}_kernel")
        a("s_mov_b32 s59, 0x20000")
        a("s_lshr_b32 s66, s2, 3")
        a("s_lshl_b32 s66, s66, 1")
        a("s_add_u32 s66, s66, s90")
        a("s_sub_u32 s66, s66, 2")
        a("s_lshl_b32 s66, s66, 10")
        a("v_lshlrev_b32 v21, 4, v0")
        a("buffer_load_dwordx4 v[24:27], v21, s[56:59], s66 offen")
    srd(a, 60, P_DBG, 256)
    a("v_mov_b32 v19, 0")
    a("s_lshl_b32 s65, s2, 2")
    a("s_lshl_b32 s66, s90, 1")
    a("s_add_u32 s65, s65, s66")
    a("s_sub_u32 s65, s65, 4")
    a("s_cmp_lg_u32 s65, 0")
    a("s_cbranch_scc1 Lh_nononce")
    a("s_memrealtime s[66:67]")
    a("s_waitcnt lgkmcnt(0)")
    a("s_or_b32 s66, s66, 1")
    a("v_mov_b32 v20, s66")
    a("s_mov_b64 exec, 1")
    a("buffer_store_dword v20, v19, s[60:63], 0 offen sc1")
    a("s_mov_b64 exec, -1")
    a.label("Lh_nononce")
    warm_setup(a, o); warm_skip(a, o, 3)
    warm_stage_xb(a, o, 1)
    srd(a, 52, P_GW, 1280)
    a("v_lshlrev_b32 v21, 4, v0")
    a("v_lshrrev_b32 v6, 4, v0")
    a("v_and_b32 v7, 15, v0")
    a("v_lshlrev_b32 v5, 4, v6")
    a("s_lshl_b32 s66, s41, 4")
    a("s_add_u32 s66, s66, s40")
    a("s_cmp_eq_u32 s90, 3")
    a("s_cselect_b32 s73, s66, 16")
    a("s_cmp_ge_u32 s73, 16")
    a("s_cbranch_scc1 Lh_nogw")
    for k in range(20):
        a(f"buffer_load_dwordx4 {vr(GWF+4*k, 4)}, v5, s[52:55], 0 offen offset:{k*64}")
    a.label("Lh_nogw")
    a("v_mul_u32_u24 v8, 1280, v7")
    a("v_lshl_add_u32 v8, v6, 4, v8")
    a(f"v_mul_u32_u24 v9, {8*1280}, v6")
    a("v_and_b32 v10, 3, v0")
    a("v_lshl_add_u32 v9, v10, 5, v9")
    a("v_bfe_u32 v10, v0, 2, 2")
    a("v_lshl_add_u32 v9, v10, 3, v9")
    a("v_bfe_u32 v10, v0, 1, 3")
    a("v_xor_b32 v10, v10, v6")
    a("v_lshlrev_b32 v10, 4, v10")
    a("v_lshl_add_u32 v10, v7, 7, v10")
    a("s_and_b32 s66, s40, 15")
    a("s_lshl_b32 s66, s66, 11")
    a(f"s_add_u32 s66, s66, {F_XO}")
    a("v_add_u32 v10, s66, v10")
    for k in range(3):
        a(f"v_add_u32 v{12+2*k}, {k*F_SLOT}, v10")
        a(f"v_xor_b32 v{13+2*k}, 64, v{12+2*k}")
    for k in range(4):
        a(f"v_mov_b32 v{GA+k}, 0")
    a("s_lshr_b32 s65, s65, 1")
    a("s_mul_i32 s66, s65, 3277")
    a("s_lshr_b32 s66, s66, 16")
    a("s_mul_i32 s67, s66, 20")
    a("s_sub_u32 s67, s65, s67")
    a("s_and_b32 s84, s67, 1")
    a("s_lshr_b32 s67, s67, 1")
    a("s_lshl_b32 s85, s66, 7")
    a(f"s_mul_i32 s68, s67, {64*1280}")
    a("s_add_u32 s85, s85, s68")
    a("s_lshl_b32 s66, s66, 2")
    a("s_add_u32 s66, s66, s84")
    a("s_lshl_b32 s67, s67, 2")
    a("s_sub_u32 s68, s65, 200")
    a("s_mul_i32 s69, s68, 13108")
    a("s_lshr_b32 s69, s69, 16")
    a("s_mul_i32 s70, s69, 5")
    a("s_sub_u32 s70, s68, s70")
    a(f"s_mul_i32 s86, s69, {32*1280}")
    a("s_lshl_b32 s68, s70, 8")
    a("s_add_u32 s86, s86, s68")
    a("s_add_u32 s69, s69, 40")
    a("s_lshl_b32 s70, s70, 3")
    a("s_cmp_ge_u32 s65, 200")
    a("s_cselect_b32 s66, s69, s66")
    a("s_cselect_b32 s67, s70, s67")
    a("s_cselect_b32 s71, 4, 0")
    a(f"s_cselect_b32 s72, 0, {2*WK}")
    a(f"s_mul_i32 s87, s66, {WK}")
    a("s_cmp_ge_u32 s65, 470")
    a("s_cselect_b32 s87, 0x40000000, s87")
    for t in range(8):
        if t == 4:
            a("s_add_u32 s67, s67, s71")
            a("s_add_u32 s87, s87, s72")
        a(f"s_add_u32 s68, s67, {t & 3}")
        a("s_mul_i32 s69, s68, 52")
        a("s_lshr_b32 s69, s69, 8")
        a(f"s_mul_i32 s70, s69, {WT - 5120}")
        a("s_lshl_b32 s68, s68, 10")
        a("s_add_u32 s68, s68, s70")
        a(f"s_add_u32 s{76+t}, s68, s87")
    warm_stage_xb(a, o, 1)
    def gstep(s):
        sl = slot_of(s)
        a(f"ds_read_b128 {vr(XF, 4)}, v{12+2*sl}")
        a(f"ds_read_b128 {vr(XF+4, 4)}, v{13+2*sl}")
        a("s_waitcnt lgkmcnt(0)")
        a(f"v_mfma_f32_16x16x32_bf16 {vr(GA, 4)}, {vr(GWF+8*s, 4)}, {vr(XF, 4)}, {vr(GA, 4)}")
        a(f"v_mfma_f32_16x16x32_bf16 {vr(GA, 4)}, {vr(GWF+8*s+4, 4)}, {vr(XF+4, 4)}, {vr(GA, 4)}")
    def ev_load():
        a("buffer_load_dword v23, v19, s[60:63], 0 offen sc1")
        a("s_cmp_ge_u32 s65, 200")
        a("s_cbranch_scc1 Lh_w2")
        a("s_cmp_eq_u32 s84, 0")
        a(f"s_cselect_b32 s56, s{P_CRE}, s{P_CIM}")
        a(f"s_cselect_b32 s57, s{P_CRE+1}, s{P_CIM+1}")
        a(f"s_mov_b32 s58, {640*1280}")
        a("s_mov_b32 s59, 0x20000")
        for t in range(4):
            for hb in range(2):
                a(f"buffer_load_dwordx4 {vr(OJ[hb]+4*t, 4)}, v8, s[56:59], s85 offen offset:{hb*64}")
            if t < 3:
                a(f"s_add_u32 s85, s85, {16*1280}")
        a("s_branch Lh_ld")
        a.label("Lh_w2")
        srd(a, 56, P_W2, 1728 * 1280)
        a(f"s_add_u32 s87, s86, {4*1280}")
        for e in range(8):
            for jb in range(2):
                a(f"buffer_load_dwordx2 {vr(RJ[jb]+2*e, 2)}, v9, s[56:59], s{86 + (e >> 2)} offen offset:{(e & 3)*1280 + jb*128}")
        a.label("Lh_ld")
    def ev_store(jb):
        if jb == 0:
            srd(a, 56, P_WS, W2_SIZE, W2_OFF)
            a("s_mov_b32 s70, 0x05040100")
            a("s_mov_b32 s71, 0x07060302")
            a("s_waitcnt vmcnt(0)")
        R, O = RJ[jb], OJ[jb]
        a("s_cmp_lt_u32 s65, 200")
        a(f"s_cbranch_scc1 Lh_st{jb}")
        for t in range(4):
            for e in range(4):
                a(f"v_perm_b32 v{O+4*t+e}, v{R+4*e+2+(t >> 1)}, v{R+4*e+(t >> 1)}, s{70+(t & 1)}")
        for (src, dst, x, qp, m) in ((O, O2, 1, "[1,0,3,2]", 0xaaaaaaaa), (O2, O, 2, "[2,3,0,1]", 0xcccccccc)):
            for hi in (1, 0):
                mm = m if hi else (~m & 0xffffffff)
                a(f"s_mov_b32 vcc_lo, {mm:#x}")
                a(f"s_mov_b32 vcc_hi, {mm:#x}")
                a("s_nop 1")
                for t in range(4):
                    if bool(t & x) != bool(hi):
                        continue
                    for e in range(4):
                        a(f"v_cndmask_b32_dpp v{dst+4*t+e}, v{src+4*(t ^ x)+e}, v{src+4*t+e}, vcc quad_perm:{qp} row_mask:0xf bank_mask:0xf")
        a.label(f"Lh_st{jb}")
        for t in range(4):
            a(f"buffer_store_dwordx4 {vr(O+4*t, 4)}, v21, s[56:59], s{76 + 4*jb + t} offen sc1")
    def ev_drain():
        a("s_mov_b32 s72, 0")
        a.label("Lh_npoll")
        a("s_waitcnt vmcnt(0)")
        a("v_readfirstlane_b32 s64, v23")
        a("s_add_u32 s72, s72, 1")
        a("s_cmp_lg_u32 s64, 0")
        a("s_cbranch_scc1 Lh_ngot")
        a("buffer_load_dword v23, v19, s[60:63], 0 offen sc1")
        a(f"s_cmp_lt_u32 s72, {SPIN_MAX:#x}")
        a("s_cbranch_scc1 Lh_npoll")
        a.label("Lh_ngot")
        a(f"v_mov_b32 v22, {NONCE_LDS}")
        a("ds_write_b32 v22, v23")
        a("s_waitcnt lgkmcnt(0)")
    def ev_flag():
        srd(a, 56, P_WS, FW_SIZE, FW_OFF)
        a("s_cmp_lg_u32 s90, 2")
        a("s_cbranch_scc1 Lh_noflag")
        a("s_lshl_b32 s66, s2, 2")
        a("s_mov_b64 exec, 1")
        a("buffer_store_dword v23, v19, s[56:59], s66 offen sc1")
        a("s_mov_b64 exec, -1")
        a.label("Lh_noflag")
    t_ld, t_s0, t_s1, t_dr = o.hsched
    assert t_ld < t_s0 <= t_s1 < t_dr <= 6
    nyoung = 0
    if o.vwarm:
        a("s_cmp_eq_u32 s90, 3")
        a("s_cbranch_scc1 Lh_wx")
        a("s_and_b32 s68, s2, 1")
        a("s_cmp_eq_u32 s68, 0")
        a(f"s_cselect_b32 s56, s{P_W1}, s{P_W3}")
        a(f"s_cselect_b32 s57, s{P_W1+1}, s{P_W3+1}")
        a(f"s_mov_b32 s58, {640*3456}")
        a("s_mov_b32 s59, 0x20000")
        a("s_lshr_b32 s68, s2, 1")
        a("s_mul_i32 s68, s68, 1728")
        a("v_min_u32 v24, 704, v21")
        for st in range(1, 10):
            a(f"s_add_u32 s68, s68, {64*3456}")
            a("buffer_load_dwordx4 v[28:31], v21, s[56:59], s68 offen")
            a("buffer_load_dwordx4 v[28:31], v24, s[56:59], s68 offen offset:1008")
        a("s_branch Lh_wd")
        a.label("Lh_wx")
        srd(a, 52, P_X, 2048 * 1280)
        a("s_cmp_lt_u32 s2, 128")
        a(f"s_cselect_b32 s56, s{P_BRE}, s{P_BIM}")
        a(f"s_cselect_b32 s57, s{P_BRE+1}, s{P_BIM+1}")
        a(f"s_mov_b32 s58, {640*1280}")
        a("s_mov_b32 s59, 0x20000")
        a("v_lshrrev_b32 v24, 3, v0")
        a("v_min_u32 v25, 4, v24")
        a("v_and_b32 v26, 7, v0")
        a("v_lshlrev_b32 v26, 4, v26")
        a("v_mad_u32_u24 v24, v24, s98, v26").__class__
        a.l.pop()
        a("v_mul_u32_u24 v24, 1280, v24")
        a("v_mul_u32_u24 v25, 1280, v25")
        a("v_add_u32 v24, v24, v26")
        a("v_add_u32 v25, v25, v26")
        a(f"s_mul_i32 s68, s2, {8*1280}")
        a("s_and_b32 s69, s2, 127")
        a(f"s_mul_i32 s69, s69, {5*1280}")
        for st in range(1, 10):
            a(f"buffer_load_dwordx4 v[28:31], v24, s[52:55], s68 offen offset:{st*128}")
            a(f"buffer_load_dwordx4 v[28:31], v25, s[56:59], s69 offen offset:{st*128}")
        a.label("Lh_wd")
        nyoung = 18
    if t_ld < 0:
        ev_load()
        nyoung += 9
    a(f"s_waitcnt vmcnt({nyoung})")
    for s in range(8):
        stamp(a, o, 8 + s)
        a("s_barrier")
        gstep(s)
        if s == t_dr: ev_drain()
        if s == t_dr + 1: ev_flag()
        if s < 5:
            warm_stage_xb(a, o, 1)
        if s == t_ld: ev_load()
        if s == t_s0: ev_store(0)
        if s == t_s1: ev_store(1)
    def hook(s):
        if s < 10:
            gstep(s)
            return
        a("s_cmp_ge_u32 s73, 16")
        a("s_cbranch_scc1 Lh_nog")
        a(f"v_cvt_pk_bf16_f32 v{GA}, v{GA}, v{GA}")
        a(f"v_lshlrev_b32 v{GA}, 16, v{GA}")
        a(f"v_mul_f32 v{GA}, {NLOG2E:#x}, v{GA}")
        a(f"v_exp_f32 v{GA}, v{GA}")
        a("s_nop 0")
        a(f"v_add_f32 v{GA}, 1.0, v{GA}")
        a(f"v_rcp_f32 v{GA}, v{GA}")
        a("s_nop 0")
        a(f"v_cvt_pk_bf16_f32 v{GA}, v{GA}, v{GA}")
        a(f"v_lshlrev_b32 v{GA}, 16, v{GA}")
        a(f"v_mov_b32 v{GA+1}, s64")
        srd(a, 60, P_WS, G_SIZE, G_OFF)
        a("v_lshlrev_b32 v2, 3, v0")
        a("s_lshl_b32 s66, s39, 4")
        a("s_add_u32 s66, s66, s40")
        a("s_lshl_b32 s66, s66, 7")
        a("s_mov_b64 exec, 0xffff")
        a(f"buffer_store_dwordx2 {vr(GA, 2)}, v2, s[60:63], s66 offen sc1")
        a("s_mov_b64 exec, -1")
        a.label("Lh_nog")
    p2_prefetch(a, o, vm, o.cuts_h, False, hook)
    a.label("L_p2l")
    a(f"s_setprio {o.lprio}")

def lds_wait(a, name, off):
    a("s_mov_b32 s72, 0")
    a.label(f"{name}poll")
    a(f"ds_read_b32 v7, v6 offset:{off}")
    a("s_waitcnt lgkmcnt(0)")
    a("v_readfirstlane_b32 s68, v7")
    a("s_add_u32 s72, s72, 1")
    a("s_cmp_eq_u32 s68, s64")
    a(f"s_cbranch_scc1 {name}got")
    a("s_sleep 1")
    a(f"s_cmp_lt_u32 s72, {SPIN_MAX*4:#x}")
    a(f"s_cbranch_scc1 {name}poll")
    a.label(f"{name}got")

def p2(a, o, loader):
    X = "L" if loader else "C"
    vm = VM(a)
    NS = 14 if loader else 10
    wreg = {}; hreg = {}
    if loader:
        ACC = L_ACC
        for n in range(6):
            for dt in range(5):
                wreg[n, dt] = L_W + n * 20 + dt * 4
        free = [L_H + 4 * i for i in range(12)]
        VO = 1
        lds_steps = ()
    else:
        ACC = C_ACC
        for k, n in enumerate(C_RSTEPS):
            for dt in range(5):
                wreg[n, dt] = C_WR + k * 20 + dt * 4
        lds_steps = tuple(range(2, 8))
        for n in lds_steps:
            for dt in range(5):
                wreg[n, dt] = C_WL + (((n - 2) * 5 + dt) % 6) * 4
        free = [C_H + 4 * i for i in range(12)]
        VO = 12
    acc = lambda dt, mi: ACC + (dt * 4 + mi) * 4
    srd(a, 56, P_WS, FH_SIZE, FH_OFF)
    if not loader:
        a("v_mov_b32 v3, s64")
        a("s_lshl_b32 s68, s90, 2")
        a(f"s_add_u32 s68, s68, {SFLAG_LDS}")
        a("v_mov_b32 v6, s68")
        a("s_waitcnt vmcnt(0)")
        a("s_mov_b64 exec, s[66:67]")
        a(f"buffer_store_dword v3, v2, s[56:59], s65 offen {o.hst}")
        a("s_mov_b64 exec, -1")
        a(f"s_setprio {o.cprio2}")
        stamp(a, o, 7)
        if o.use_y:
            a("s_cmp_eq_u32 s41, 0")
            a("s_cbranch_scc1 L2C_noy")
            a("s_barrier")
            a.label("L2C_noy")
        lds_wait(a, "L2C_f", 144)
        if not o.early_w:
            for k in range(4):
                c_wload(a, k)
        a("s_mul_i32 s68, s90, 5120")
        a(f"v_add_u32 v4, s68, v{VO}")
        a("v_add_u32 v5, 0x10000, v4")
    a("s_lshl_b32 s80, s74, 12")
    a(f"s_mul_i32 s69, s42, {HT}")
    a("s_add_u32 s80, s80, s69")
    if loader:
        a("s_mul_i32 s68, s90, 7")
        a("s_add_u32 s68, s68, 22")
        a("s_cmp_eq_u32 s90, 2")
        a("s_cselect_b32 s69, 6, 7")
        a("s_cmp_eq_u32 s90, 3")
        a("s_cselect_b32 s68, 0, s68")
        a("s_cselect_b32 s69, 6, s69")
    else:
        a("s_lshl_b32 s68, s90, 2")
        a("s_add_u32 s68, s68, 5")
        a("s_mov_b32 s69, 5")
    a("s_bfm_b64 s[78:79], s69, s68")
    a("v_lshlrev_b32 v2, 7, v0")
    a("s_lshl_b32 s65, s42, 13")
    stamp(a, o, 40)
    if o.dspan and not loader:
        a("s_cmp_lg_u32 s38, 0")
        a("s_cbranch_scc1 Ld2")
        dmark(a, o, 6)
        a.label("Ld2")
    a("s_mov_b32 s72, 0")
    a.label(f"L2{X}_poll")
    a("s_mov_b64 exec, s[78:79]")
    a("buffer_load_dword v3, v2, s[56:59], s65 offen sc1")
    a("s_waitcnt vmcnt(0)")
    a("v_cmp_ne_u32 vcc, s64, v3")
    a("s_mov_b64 exec, -1")
    a("s_and_b64 s[78:79], vcc, s[78:79]")
    a(f"s_cbranch_scc0 L2{X}_go")
    a(f"s_sleep {o.poll_sleep}")
    a("s_add_u32 s72, s72, 1")
    a(f"s_cmp_lt_u32 s72, {SPIN_MAX:#x}")
    a(f"s_cbranch_scc1 L2{X}_poll")
    a.label(f"L2{X}_go")
    stamp(a, o, 41)
    needs = []
    for n in range(NS):
        if loader and n >= 6:
            needs += [("w", n, i) for i in range(5)]
        needs += [("h", n, i) for i in range(4)]
    own = (3, 4) if loader else (0, 1, 2)
    E = {}
    def try_issue():
        if not needs or not free:
            return False
        kind, n, i = needs.pop(0)
        r = free.pop(0)
        if kind == "h":
            hreg[n, i] = r
            vm.op(f"buffer_load_dwordx4 {vr(r, 4)}, v{VO}, s[48:51], s80 offen offset:{i*1024} {o.hld}", ("h", n))
            if i == 3:
                a(f"s_add_u32 s80, s80, {HK}")
        else:
            wreg[n, i] = r
            vm.op(f"buffer_load_dwordx4 {vr(r, 4)}, v{VO}, s[52:55], s{76 + (i >> 2)} offen offset:{(i & 3)*1024} {o.hld}", ("w", n))
            if i >= 3:
                a(f"s_add_u32 s{76 + (i >> 2)}, s{76 + (i >> 2)}, {WK}")
        return True
    while try_issue():
        pass
    def lds_w(k):
        n, dt = 2 + k // 5, k % 5
        off = P2W + (n - 2) * 20480 + dt * 1024
        return f"ds_read_b128 {vr(wreg[n, dt], 4)}, v{4 if off < 65536 else 5} offset:{off & 0xffff}"
    def eloads():
        E["g"] = free.pop(0); E["x"] = [free.pop(0) for _ in own]
        srd(a, 60, P_WS, G_SIZE, G_OFF)
        a("v_and_b32 v2, 15, v0")
        a("v_lshlrev_b32 v3, 3, v2")
        a("s_lshl_b32 s68, s42, 6")
        a("s_lshl_b32 s69, s90, 4")
        a("s_add_u32 s68, s68, s69")
        a("s_lshl_b32 s81, s68, 3")
        a(f"v_mov_b32 v{E['g']+2}, v3")
        vm.op(f"buffer_load_dwordx2 {vr(E['g'], 2)}, v3, s[60:63], s81 offen sc1", "e")
        srd(a, 84, P_X, 2048 * 1280)
        a("v_lshrrev_b32 v3, 4, v0")
        a("v_lshlrev_b32 v3, 3, v3")
        a("v_mul_u32_u24 v2, 1280, v2")
        a("v_add_u32 v2, v2, v3")
        a("s_mul_i32 s71, s68, 1280")
        a("s_mul_i32 s69, s43, 160")
        a("s_add_u32 s71, s71, s69")
        for k, dt in enumerate(own):
            vm.op(f"buffer_load_dwordx2 {vr(E['x'][k], 2)}, v2, s[84:87], s71 offen offset:{dt*32}", "e")
        srd(a, 84, P_DSK, 1280)
        for k, dt in enumerate(own):
            vm.op(f"buffer_load_dwordx2 {vr(E['x'][k]+2, 2)}, v3, s[84:87], s69 offen offset:{dt*32}", "e")
        a("v_lshlrev_b32 v2, 1, v2")
        a("s_lshl_b32 s71, s71, 1")
        srd(a, 84, P_OUT, 2048 * 2560)
        a("s_mul_i32 s68, s38, 20480")
        a(f"v_add_u32 v3, s68, v{VO}")
    def put(dt):
        for mi in range(4):
            a(f"ds_write_b128 v3, {vr(acc(dt, mi), 4)} offset:{(mi*5 + dt)*1024}")
    mstep = 12 if loader else 7
    for n in range(NS):
        need = [("h", n)]
        if loader and n >= 6:
            need.append(("w", n))
        vm.wait(*need)
        if o.stamps and n in (0, 1, 5):
            stamp(a, o, 42 + (0, 1, 5).index(n))
        if not loader and n == 1:
            lds_wait(a, "L2C_s", 0)
            for k in range(5):
                a(lds_w(k))
        last = n == NS - 1
        for dt in range(5):
            if n in lds_steps:
                f = (n - 2) * 5 + dt
                a(f"s_waitcnt lgkmcnt({min(29, f + 4) - f})")
            for mi in range(4):
                c = "0" if n == 0 else vr(acc(dt, mi), 4)
                a(f"v_mfma_f32_16x16x32_bf16 {vr(acc(dt, mi), 4)}, {vr(wreg[n, dt], 4)}, {vr(hreg[n, mi], 4)}, {c}")
                if mi == 0 and n in lds_steps and (n - 2) * 5 + dt + 5 < 30:
                    a(lds_w((n - 2) * 5 + dt + 5))
                if dt == 4:
                    free.append(hreg[n, mi])
                if mi % 2 == 1:
                    try_issue()
            if n not in lds_steps:
                free.append(wreg[n, dt])
            if last and dt >= 2:
                put(dt - 2)
        while n + 1 < NS and (n + 1, 3) not in hreg:
            assert try_issue()
        if n == mstep:
            a("s_barrier")
        if not needs and not E and len(free) >= 4:
            assert n < NS - 1
            eloads()
    stamp(a, o, 45)
    put(3)
    a("s_nop 3")
    put(4)
    a("s_mul_i32 s68, s90, 5120")
    a(f"v_add_u32 v3, s68, v{VO}")
    a("v_add_u32 v4, 61440, v3")
    a("v_add_u32 v5, 122880, v3")
    vm.wait("e")
    T = free.pop(0)
    for k, dt in enumerate(own):
        b = E["x"][k]
        a(f"v_lshlrev_b32 v{T}, 16, v{b+2}")
        a(f"v_and_b32 v{T+1}, 0xffff0000, v{b+2}")
        a(f"v_lshlrev_b32 v{T+2}, 16, v{b+3}")
        a(f"v_and_b32 v{T+3}, 0xffff0000, v{b+3}")
        a(f"v_lshlrev_b32 v{b+2}, 16, v{b+1}")
        a(f"v_and_b32 v{b+3}, 0xffff0000, v{b+1}")
        a(f"v_and_b32 v{b+1}, 0xffff0000, v{b}")
        a(f"v_lshlrev_b32 v{b}, 16, v{b}")
        for p in range(2):
            a(f"v_pk_mul_f32 {vr(b+2*p, 2)}, {vr(b+2*p, 2)}, {vr(T+2*p, 2)}")
            a(f"v_cvt_pk_bf16_f32 v{b+2*p+1}, v{b+2*p}, v{b+2*p+1}")
            a(f"v_lshlrev_b32 v{b+2*p}, 16, v{b+2*p+1}")
            a(f"v_and_b32 v{b+2*p+1}, 0xffff0000, v{b+2*p+1}")
    G = E["g"]
    a("s_mov_b32 s72, 0")
    a.label(f"L2{X}_gpoll")
    a(f"v_cmp_ne_u32 vcc, s64, v{G+1}")
    a("s_cmp_eq_u64 vcc, 0")
    a(f"s_cbranch_scc1 L2{X}_ggot")
    a(f"buffer_load_dwordx2 {vr(G, 2)}, v{G+2}, s[60:63], s81 offen sc1")
    a("s_waitcnt vmcnt(0)")
    a("s_add_u32 s72, s72, 1")
    a(f"s_cmp_lt_u32 s72, {SPIN_MAX:#x}")
    a(f"s_cbranch_scc1 L2{X}_gpoll")
    a.label(f"L2{X}_ggot")
    a(f"v_sub_f32 v{G+1}, 1.0, v{G}")
    a(f"v_cvt_pk_bf16_f32 v{G+1}, v{G+1}, v{G+1}")
    a(f"v_lshlrev_b32 v{G+1}, 16, v{G+1}")
    a("s_waitcnt lgkmcnt(0)")
    stamp(a, o, 46)
    a("s_barrier")
    stamp(a, o, 47)
    RD = ACC
    def rd(k):
        for s in range(8):
            a(f"ds_read_b128 {vr(RD + (k & 1)*32 + s*4, 4)}, v{3 + s // 3} offset:{(s % 3)*20480 + own[k]*1024}")
    def fin(k, left):
        a(f"s_waitcnt lgkmcnt({left})")
        b = RD + (k & 1) * 32; sk = E["x"][k]
        for p in range(2):
            r = lambda s: vr(b + 4 * s + 2 * p, 2)
            for (x, y) in ((0, 1), (2, 3), (4, 5), (0, 7), (4, 6), (0, 2)):
                a(f"v_pk_add_f32 {r(x)}, {r(x)}, {r(y)}")
            a(f"v_pk_add_f32 {r(4)}, {r(4)}, {vr(sk+2*p, 2)}")
            lo, hi = b + 2 * p, b + 2 * p + 1
            for _ in range(2):
                a(f"v_cvt_pk_bf16_f32 v{hi}, v{lo}, v{hi}")
                a(f"v_lshlrev_b32 v{lo}, 16, v{hi}")
                a(f"v_and_b32 v{hi}, 0xffff0000, v{hi}")
                if _ == 0:
                    a(f"v_pk_mul_f32 {r(0)}, {vr(G, 2)}, {r(0)} op_sel:[1,0] op_sel_hi:[1,1]")
            a(f"v_pk_fma_f32 {vr(sk+2*p, 2)}, {vr(G, 2)}, {r(4)}, {r(0)} op_sel_hi:[0,1,1]")
        a(f"buffer_store_dwordx4 {vr(sk, 4)}, v2, s[84:87], s71 offen offset:{own[k]*64} {o.out_store}")
    rd(0)
    a("s_waitcnt lgkmcnt(7)")
    rd(1)
    fin(0, 8)
    if len(own) == 3:
        a("s_waitcnt lgkmcnt(7)")
        rd(2)
        fin(1, 8)
        fin(2, 0)
    else:
        fin(1, 0)
    stamp(a, o, 48)
    if o.dspan and not loader:
        a("s_cmp_lg_u32 s38, 0")
        a("s_cbranch_scc1 Ld1")
        a("s_waitcnt vmcnt(0)")
        dmark(a, o, 8)
        a.label("Ld1")
    stamp_flush(a, o)
    a("s_endpgm")

def generate(o):
    ref = open(f"cdna_kernels/{NAME}.s.ref").read().splitlines()
    head = [l for l in ref if l.startswith(";") and "@launch" not in l]
    out = "\n".join(head) + "\n"
    out += f"; @launch grid=(256,1,1) block=(512,1,1) lds={LDS_BYTES}\n"
    out += f'.amdgcn_target "amdgcn-amd-amdhsa--gfx950"\n.text\n.globl {NAME}_kernel\n'
    out += kernel(o).text()
    out += f""".section .rodata,"a"
.p2align 6
.amdhsa_kernel {NAME}_kernel
  .amdhsa_next_free_vgpr 256
  .amdhsa_next_free_sgpr 102
  .amdhsa_accum_offset 256
  .amdhsa_group_segment_fixed_size 0
  .amdhsa_kernarg_size 136
  .amdhsa_user_sgpr_count 2
  .amdhsa_user_sgpr_kernarg_segment_ptr 1
  .amdhsa_system_sgpr_workgroup_id_x 1
.end_amdhsa_kernel
"""
    return out

if __name__ == "__main__":
    o = Opt()
    path = f"cdna_kernels/{NAME}.s"
    for arg in sys.argv[1:]:
        k, v = arg.split("=", 1)
        if k == "out":
            path = v
        else:
            cur = getattr(o, k)
            setattr(o, k, type(cur)(int(v)) if isinstance(cur, (bool, int)) else tuple(int(x) for x in v.split(",")) if isinstance(cur, tuple) else v)
    open(path, "w").write(generate(o))
    print("wrote", path)
```

```python
import sys

NAME = "gated_mix__ssm_conv_s5__glu_gated_swiglu__prompt"

class Opt:
    stamps = 0
    map1 = "2x4"
    map2 = "4x2"
    out_store = ""
    poll_sleep = 4
    warm = False
    vwarm = 0
    lwarm = (0,)
    hprio = 2
    look_l = 3
    look_c = 9
    mstep = 11
    ltog = 0
    peel = 0
    cwait = 1
    rot = 10
    rotm = 0
    rots = 1
    rotx = 6
    barpos = 2
    b9_back = 2
    epi_pk = 0
    fill_max = 12
    hops = 0
    align = 3
    hopsched = (3, 4, 5)
    ab = 1
    lead = 3
    cwarm = 2
    codepf = 1
    dspan = 0
    hst = "sc1"
    hld = "sc1"
    throttle = 0
    early_w = False
    cuts_l = (16, 34)
    cuts_h = (16, 34)
    hsched = (0, 1, 1, 3)
    thr_e = 6
    thr_t = 4
    pre_y = 0
    thr_y = 2
    lprio = 0
    agg_sleep = 2
    use_y = 0
    ssm_early = 1
    cprio = 3
    cprio2 = 0

HP_OFF  = 0
HP_SIZE = 94 * 128 * 1024
W2_OFF  = 0xC00000
W2_SIZE = 94 * 40 * 1024
HK = 4096
HT = 94 * HK
WK = 5120
WT = 94 * WK
G_OFF   = 0x1000000
G_SIZE  = 2048 * 8
AGG_OFF = 0x1010000
AGG_SIZE = 80 * 1024
FH_OFF  = 0x1040000
FH_SIZE = 32 * 8192
FW_OFF  = 0x1080000
FW_SIZE = 256 * 128
ST_OFF  = 0x1100000
ST_SIZE = 0x100000

LOG2E = 0x3fb8aa3b
NLOG2E = 0xbfb8aa3b
SPIN_MAX = 0x40000

class Asm:
    def __init__(self):
        self.l = []
    def __call__(self, s):
        self.l.append("    " + s)
    def label(self, s):
        self.l.append(s + ":")
    def c(self, s):
        self.l.append("    ; " + s)
    def raw(self, s):
        self.l.append(s)
    def text(self):
        return "\n".join(self.l) + "\n"
    def seg(self, name):
        self.l.append(("SEG", name))
    _uid = 0
    def uid(self):
        self._uid += 1
        return self._uid

class VM:
    def __init__(self, a):
        self.a = a; self.q = []
    def op(self, ins, tag=None):
        self.a(ins); self.q.append(tag)
    def wait(self, *tags):
        last = max(i for i, t in enumerate(self.q) if t in tags)
        n = len(self.q) - 1 - last
        assert n <= 63, n
        self.a(f"s_waitcnt vmcnt({n})")
    def drain(self):
        self.a("s_waitcnt vmcnt(0)"); self.q = []

def vr(b, n=1, p="v"):
    return f"{p}{b}" if n == 1 else f"{p}[{b}:{b+n-1}]"

def srd(a, d, base, size, off=0):
    if off:
        a(f"s_add_u32 s{d}, s{base}, {off:#x}")
        a(f"s_addc_u32 s{d+1}, s{base+1}, 0")
    else:
        a(f"s_mov_b32 s{d}, s{base}")
        a(f"s_mov_b32 s{d+1}, s{base+1}")
    a(f"s_mov_b32 s{d+2}, {size:#x}")
    a(f"s_mov_b32 s{d+3}, 0x20000")

P_X, P_LRE, P_LIM, P_BRE, P_BIM, P_CRE, P_CIM, P_LDT = 4, 6, 8, 10, 12, 14, 16, 18
P_DSK, P_BX, P_W1, P_W3, P_W2, P_GW, P_OUT, P_DBG, P_WS = 20, 22, 24, 26, 28, 30, 32, 34, 36

def stamp(a, o, slot):
    if not o.stamps or (8 <= slot < 32 and o.stamps != 2):
        return
    a("s_memrealtime s[92:93]")
    a("s_waitcnt lgkmcnt(0)")
    a(f"v_writelane_b32 v254, s92, {slot}")
def stamp_dyn(a, o, slot, sreg, mul):
    if not o.stamps:
        return
    a("s_memrealtime s[92:93]")
    a("s_waitcnt lgkmcnt(0)")
    a(f"s_mul_i32 s93, s{sreg}, {mul}")
    a(f"s_add_u32 s93, s93, {slot}")
    a("s_mov_b32 m0, s93")
    a("v_writelane_b32 v254, s92, m0")
def stamp_clk(a, o, slot):
    if not o.stamps:
        return
    a("s_memtime s[92:93]")
    a("s_waitcnt lgkmcnt(0)")
    a(f"v_writelane_b32 v254, s92, {slot}")
def dmark(a, o, slot, inv=False, tv=252):
    if not o.dspan:
        return
    srd(a, 96, P_DBG, 256)
    a("s_memrealtime s[92:93]")
    a("s_waitcnt lgkmcnt(0)")
    if inv:
        a("s_not_b32 s92, s92")
    a("v_mov_b32 v254, s92")
    a("v_mov_b32 v255, 0")
    a("s_mov_b64 exec, 1")
    a(f"buffer_atomic_umax v254, v255, s[96:99], 0 offen offset:{slot*4} sc1")
    a("s_mov_b64 exec, -1")

def stamp_setup(a, o):
    if not o.stamps:
        return
    a("v_mov_b32 v254, 0")
    a("s_lshl_b32 s91, s2, 3")
    a("s_add_u32 s91, s91, s38")
    a("s_lshl_b32 s91, s91, 8")
    a("v_lshlrev_b32 v255, 2, v0")
    stamp_clk(a, o, 62)
def stamp_flush(a, o):
    if not o.stamps:
        return
    a("s_waitcnt vmcnt(0)")
    stamp(a, o, 61)
    stamp_clk(a, o, 63)
    srd(a, 96, P_WS, ST_SIZE, ST_OFF)
    a("buffer_store_dword v254, v255, s[96:99], s91 offen")

LDS_BYTES = 163840
F_UP = 10368
XS = 32768
WB = 3 * XS
F_WS = 20736
S_WS = 16384
S_DUMMY = WB + 3 * S_WS
NONCE_LDS = 163832
CREG = 30720
S_TR = 122880
S_AGG = 159744
SFLAG_LDS = S_TR + 128
slot_of = lambda stage: (stage + 2) % 3

def kernel(o):
    a = Asm()
    a.raw(".p2align 8")
    a.raw(f".type {NAME}_kernel,@function")
    a.label(f"{NAME}_kernel")
    a("s_cmp_ge_u32 s2, 256")
    a("s_cbranch_scc1 L_end")
    a("s_load_dwordx16 s[4:19], s[0:1], 0")
    a("s_load_dwordx16 s[20:35], s[0:1], 64")
    a("s_load_dwordx2 s[36:37], s[0:1], 128")
    a("v_lshrrev_b32 v1, 6, v0")
    a("v_and_b32 v0, 63, v0")
    a("v_readfirstlane_b32 s38, v1")
    a("s_and_b32 s42, s2, 7")
    a("s_lshr_b32 s43, s2, 3")
    if o.map1 == "2x4":
        a("s_and_b32 s39, s42, 1")
        a("s_lshl_b32 s39, s39, 2")
        a("s_and_b32 s44, s43, 3")
        a("s_add_u32 s39, s39, s44")
        a("s_lshr_b32 s48, s42, 1")
        a("s_lshr_b32 s49, s43, 2")
        a("s_lshr_b32 s44, s48, 1")
        a("s_sub_u32 s44, 6, s44")
        a("s_max_u32 s45, s48, 2")
        a("s_sub_u32 s45, s45, 2")
        a("s_mul_i32 s46, s48, 6")
        a("s_sub_u32 s46, s46, s45")
        a("s_add_u32 s46, s46, s49")
        a("s_lshl_b32 s47, s48, 1")
        a("s_add_u32 s47, s47, s45")
        a("s_add_u32 s47, s47, s49")
        a("s_sub_u32 s47, s47, s44")
        a("s_cmp_ge_u32 s49, s44")
        a("s_cselect_b32 s40, s47, s46")
        a("s_cselect_b32 s41, 1, 0")
    elif o.map1 == "8x1":
        a("s_mov_b32 s39, s42")
        a("s_sub_u32 s47, s43, 22")
        a("s_cmp_ge_u32 s43, 22")
        a("s_cselect_b32 s40, s47, s43")
        a("s_cselect_b32 s41, 1, 0")
    if o.map2 == "4x2":
        a("s_lshr_b32 s44, s42, 1")
        a("s_lshl_b32 s44, s44, 3")
        a("s_and_b32 s45, s43, 7")
        a("s_and_b32 s46, s42, 1")
        a("s_lshl_b32 s46, s46, 2")
        a("s_lshr_b32 s47, s43, 3")
        a("s_add_u32 s42, s44, s45")
        a("s_add_u32 s43, s46, s47")
    elif o.map2 == "8x1":
        a("s_lshl_b32 s42, s42, 2")
        a("s_and_b32 s44, s43, 3")
        a("s_add_u32 s42, s42, s44")
        a("s_lshr_b32 s43, s43, 2")
    a("s_and_b32 s90, s38, 3")
    if o.rot:
        a("s_mul_i32 s44, s41, 22")
        a("s_add_u32 s44, s44, s40")
        a(f"s_mul_i32 s44, s44, {o.rots}")
        if o.rotx:
            a("s_and_b32 s44, s2, 7")
            a(f"s_mul_i32 s44, s44, {o.rotx}")
        a(f"s_mul_i32 s45, s39, {o.rotm}")
        a("s_add_u32 s44, s44, s45")
        a(f"s_mul_i32 s45, s44, {65536 // o.rot + 1}")
        a("s_lshr_b32 s45, s45, 16")
        a(f"s_mul_i32 s45, s45, {o.rot}")
        a("s_sub_u32 s44, s44, s45")
        a(f"s_mul_i32 s3, s44, {10 // o.rot}")
    else:
        a("s_mov_b32 s3, 0")
    stamp_setup(a, o)
    stamp(a, o, 0)
    a("s_cmp_ge_u32 s38, 4")
    a("s_cbranch_scc1 L_loader")
    if o.dspan:
        a("s_cmp_lg_u32 s38, 0")
        a("s_cbranch_scc1 Ld0")
        dmark(a, o, 2, True); dmark(a, o, 3)
        a.label("Ld0")
    a("s_waitcnt lgkmcnt(0)")
    warm_setup(a, o)
    warm_skip(a, o, 1)
    warm_stage_any(a, o, 1)
    a("s_cmp_eq_u32 s41, 1")
    a("s_cbranch_scc1 L_ssm")
    p1_ffn(a, o)
    a.seg("pc")
    a.label("L_p2c")
    p2(a, o, False)
    a.seg(None)
    a.label("L_ssm")
    p1_ssm(a, o)
    a.seg(None)
    a.label("L_loader")
    p1_loader(a, o)
    p2(a, o, True)
    a.seg(None)
    a.label("L_end")
    a("s_endpgm")
    a.label("L_codeend")
    return a

def warm_setup(a, o):
    if not o.warm:
        return
    a("s_cmp_ge_u32 s90, 2")
    a(f"s_cbranch_scc1 Lw_xb{a.uid()}")
    u = a._uid
    a("s_and_b32 s44, s2, 1")
    a("s_cmp_eq_u32 s44, 0")
    a(f"s_cselect_b32 s94, s{P_W1}, s{P_W3}")
    a(f"s_cselect_b32 s95, s{P_W1+1}, s{P_W3+1}")
    a("s_lshr_b32 s44, s2, 1")
    a("s_mul_i32 s44, s44, 1728")
    a(f"s_mul_i32 s45, s90, {13*64}")
    a("s_add_u32 s44, s44, s45")
    a(f"s_mov_b32 s88, {64*3456}")
    a(f"s_branch Lw_set{u}")
    a.label(f"Lw_xb{u}")
    a("s_cmp_lt_u32 s2, 128")
    a(f"s_cselect_b32 s94, s{P_BRE}, s{P_BIM}")
    a(f"s_cselect_b32 s95, s{P_BRE+1}, s{P_BIM+1}")
    a("s_and_b32 s44, s2, 127")
    a(f"s_mul_i32 s44, s44, {5*1280}")
    a(f"s_mul_i32 s45, s2, {8*1280}")
    a("s_cmp_eq_u32 s90, 2")
    a(f"s_cselect_b32 s94, s{P_X}, s94")
    a(f"s_cselect_b32 s95, s{P_X+1}, s95")
    a("s_cselect_b32 s44, s45, s44")
    a("s_movk_i32 s88, 128")
    a.label(f"Lw_set{u}")
    a("s_add_u32 s94, s94, s44")
    a("s_addc_u32 s95, s95, 0")

def warm_skip(a, o, n):
    if not o.warm:
        return
    a(f"s_mul_i32 s44, s88, {n}")
    a("s_add_u32 s94, s94, s44")
    a("s_addc_u32 s95, s95, 0")

def warm_ops(o, kind):
    if not o.warm:
        return []
    if kind == "w":
        offs = [i * 64 for i in range(14)]
    else:
        offs = [r * 1280 + h * 64 for r in range(8 if kind == "x" else 5) for h in range(2)]
    return [f"s_load_dword s89, s[94:95], {x}" for x in offs] + ["s_add_u32 s94, s94, s88", "s_addc_u32 s95, s95, 0"]

def warm_stage_any(a, o, nst):
    if not o.warm:
        return
    u = a.uid()
    a("s_cmp_ge_u32 s90, 2")
    a(f"s_cbranch_scc1 Lv_xb{u}")
    for _ in range(nst):
        for i in warm_ops(o, "w"): a(i)
    a(f"s_branch Lv_e{u}")
    a.label(f"Lv_xb{u}")
    warm_stage_xb(a, o, nst)
    a.label(f"Lv_e{u}")

def warm_stage_xb(a, o, nst):
    if not o.warm:
        return
    for _ in range(nst):
        u = a.uid()
        ops = warm_ops(o, "x")
        for i in ops[:10]: a(i)
        a("s_cmp_eq_u32 s90, 3")
        a(f"s_cbranch_scc1 Lv_b{u}")
        for i in ops[10:16]: a(i)
        a.label(f"Lv_b{u}")
        for i in ops[16:]: a(i)

def loop_stamp_flush(a, o):
    if o.stamps in (1, 2):
        a("s_add_u32 m0, s52, 8")
        a("v_writelane_b32 v254, s94, m0")
        a("s_add_u32 m0, s52, 20")
        a("v_writelane_b32 v254, s92, m0")

def ring_advance(a, o, ws, xregs, wregs):
    a("s_add_u32 s52, s52, 1")
    a("s_add_u32 s53, s53, 1")
    a("s_cmp_eq_u32 s53, 3")
    a(f"s_cselect_b32 s54, {-2*XS & 0xffffffff:#x}, s55")
    a(f"s_cselect_b32 s56, {-2*ws & 0xffffffff:#x}, s57")
    a("s_cselect_b32 s53, 0, s53")
    for v in xregs:
        a(f"v_add_u32 v{v}, s54, v{v}")
    for v in wregs:
        a(f"v_add_u32 v{v}, s56, v{v}")
    if o.stamps:
        a("s_memrealtime s[94:95]")
    a("s_barrier")
    if o.stamps:
        a("s_memrealtime s[92:93]")

def fw_setup(a):
    srd(a, 60, P_WS, FW_SIZE, FW_OFF)
    a("s_mul_i32 s44, s43, 80")
    a("s_add_u32 s45, s44, 79")
    a("s_lshr_b32 s44, s44, 7")
    a("s_lshr_b32 s45, s45, 7")
    a("s_mul_i32 s44, s44, 47")
    a("s_mul_i32 s45, s45, 47")
    a("s_add_u32 s45, s45, 46")
    a("v_add_u32 v26, s44, v0")
    a("v_add_u32 v27, 64, v26")
    a("v_min_u32 v26, s45, v26")
    a("v_min_u32 v27, s45, v27")
    a("v_lshlrev_b32 v26, 7, v26")
    a("v_lshlrev_b32 v27, 7, v27")
def fw_load(a):
    a("buffer_load_dword v24, v26, s[60:63], 0 offen sc1")
    a("buffer_load_dword v25, v27, s[60:63], 0 offen sc1")
def fw_test(a):
    a("s_waitcnt vmcnt(0)")
    a("v_xor_b32 v24, s64, v24")
    a("v_xor_b32 v25, s64, v25")
    a("v_or_b32 v24, v24, v25")
    a("v_cmp_ne_u32 vcc, 0, v24")
    a("s_cmp_eq_u64 vcc, 0")
def fw_check(a):
    u = a.uid()
    a("s_mov_b32 s72, 0")
    a.label(f"Lfw_poll{u}")
    fw_load(a)
    fw_test(a)
    a(f"s_cbranch_scc1 Lfw_got{u}")
    a("s_sleep 12")
    a("s_add_u32 s72, s72, 1")
    a(f"s_cmp_lt_u32 s72, {SPIN_MAX:#x}")
    a(f"s_cbranch_scc1 Lfw_poll{u}")
    a.label(f"Lfw_got{u}")

C_WR = 16; C_ACC = 96; C_H = 176; C_WL = 224
C_RSTEPS = (0, 1, 8, 9)
def c_wsetup(a):
    srd(a, 52, P_WS, W2_SIZE, W2_OFF)
    a("s_mul_i32 s74, s90, 10")
    a("s_add_u32 s74, s74, 54")
    a(f"s_mul_i32 s76, s74, {WK}")
    a(f"s_mul_i32 s77, s43, {WT}")
    a("s_add_u32 s76, s76, s77")
    a("s_add_u32 s77, s76, 4096")
    a("v_lshlrev_b32 v12, 4, v0")
def c_wload(a, k):
    for i in range(5):
        a(f"buffer_load_dwordx4 {vr(C_WR + k*20 + i*4, 4)}, v12, s[52:55], s{76 + (i >> 2)} offen offset:{(i & 3)*1024} sc1")
    if k < 3:
        d = (C_RSTEPS[k+1] - C_RSTEPS[k]) * WK
        a(f"s_add_u32 s76, s76, {d}")
        a(f"s_add_u32 s77, s77, {d}")

class Lds:
    def __init__(self, a):
        self.a = a; self.q = []; self.done = 0
    def op(self, ins, tag):
        self.a(ins); self.q.append(tag)
    def pending(self):
        return len(self.q) - self.done
    def wait(self, *tags):
        last = max(i for i, t in enumerate(self.q) if t in tags)
        if last + 1 > self.done:
            n = len(self.q) - 1 - last
            assert n <= 15
            self.a(f"s_waitcnt lgkmcnt({n})")
            self.done = last + 1

def k_loop(a, o, label, reads, needs_of, mfma_of, nm, adv, nonce, cnt):
    a.label(label)
    lds = Lds(a)
    lds.q = [(0, t) for _, t in reads(0, 0)]
    for sub in range(4):
        buf = sub & 1
        nxt = list(reads(buf ^ 1, (sub + 1) & 3))
        if sub == 0 and (o.stamps in (1, 2)):
            a("s_waitcnt lgkmcnt(0)")
            loop_stamp_flush(a, o)
        extra = list(adv) if sub == 3 else []
        go = sub != 3
        for n in range(nm):
            if o.cwait:
                lds.wait(*[(sub, t) for t in needs_of(n)])
            elif n == 0:
                a("s_waitcnt lgkmcnt(0)"); lds.done = len(lds.q)
            a(mfma_of(buf, n))
            if sub == 3 and not go:
                k = -(-len(extra) // max(1, o.barpos + 1 - n))
                for _ in range(min(k, len(extra))):
                    a(extra.pop(0))
                if n == o.barpos:
                    if lds.pending():
                        a("s_waitcnt lgkmcnt(0)"); lds.done = len(lds.q)
                    if (o.stamps in (1, 2)):
                        a("s_memrealtime s[94:95]")
                    a("s_barrier")
                    if (o.stamps in (1, 2)):
                        a("s_memrealtime s[92:93]")
                    go = True
            if go:
                for _ in range(2):
                    if nxt and lds.pending() < (13 if not (o.stamps in (1, 2)) else 10):
                        ins, t = nxt.pop(0)
                        lds.op(ins, (sub + 1, t))
            if sub == 0 and n == nm - 1:
                lds.op(nonce, "n")
        assert not nxt, (label, sub, len(nxt))
    a(f"s_cmp_lt_u32 s52, {cnt}")
    a(f"s_cbranch_scc1 {label}")

def ring_ops(ws, xregs, wregs):
    return ["s_add_u32 s52, s52, 1", "s_add_u32 s53, s53, 1",
            f"s_cmp_eq_u32 s53, 3\n    s_cselect_b32 s54, {-2*XS & 0xffffffff:#x}, s55\n    s_cselect_b32 s56, {-2*ws & 0xffffffff:#x}, s57\n    s_cselect_b32 s53, 0, s53"] + \
           [f"v_add_u32 v{v}, s54, v{v}" for v in xregs] + [f"v_add_u32 v{v}, s56, v{v}" for v in wregs]

def ffn_peel(a, o, acc, fa, fb, VX, VW, VN):
    a.seg("fe")
    lds = Lds(a)
    reg = {}
    for mi in range(2):
        reg["x", 0, mi] = fb(0, mi); lds.q.append(("x", 0, mi))
    for j in range(5):
        reg["w", j, 0] = fa(0, j); lds.q += [("w", j, 0)] * 2
    if o.stamps:
        a("s_waitcnt lgkmcnt(0)")
        loop_stamp_flush(a, o)
    free = [fb(1, 0), fb(1, 1)] + [fa(1, j) for j in range(5)] + [232 + 4 * i for i in range(5)]
    mf = [(j, 0) for j in range(5)] + [(j, kk) for kk in (1, 2, 3) for j in (0, 1)]
    n1 = len(mf)
    mf += [(j, kk) for j in (0, 1) for kk in range(4, 8)] + [(j, kk) for j in (2, 3, 4) for kk in range(1, 8)]
    needs = []
    for j, kk in mf:
        for t in (("x", kk, 0), ("x", kk, 1), ("w", j, kk)):
            if t not in reg and t not in needs:
                needs.append(t)
    last_use = {}
    for n, (j, kk) in enumerate(mf):
        last_use["x", kk, 0] = last_use["x", kk, 1] = last_use["w", j, kk] = n
    passed9 = [False]
    def try_read():
        if not needs or not free or lds.pending() > 11:
            return False
        t = needs[0]
        kk = t[1] if t[0] == "x" else t[2]
        if kk >= 4 and not passed9[0]:
            return False
        needs.pop(0)
        r = reg[t] = free.pop(0)
        if t[0] == "x":
            lds.op(f"ds_read_b128 {vr(r, 4)}, v{VX + (kk & 3)} offset:{(kk >> 2)*XS + t[2]*4096}", t)
        else:
            for half in range(2):
                lds.op(f"ds_read_b64_tr_b16 {vr(r + 2*half, 2)}, v{VW} offset:{(kk >> 2)*F_WS + (kk & 3)*2560 + half*640 + t[1]*32}", t)
        return True
    pre = [f"v_readfirstlane_b32 s64, v{VN}", f"s_mov_b32 s56, {NLOG2E:#x}", f"s_mov_b32 s57, {NLOG2E:#x}", "s_mul_i32 s58, s40, 5",
           "s_lshl_b32 s59, s39, 2", "s_add_u32 s59, s59, s38", f"s_mul_i32 s59, s59, {HT}", f"s_add_u32 s59, s59, {40*HK}"]
    for j in range(5):
        pre += [f"s_add_u32 s60, s58, {j}", "s_lshr_b32 s61, s60, 1", "s_lshl_b32 s61, s61, 12", "s_and_b32 s60, s60, 1",
                "s_lshl_b32 s60, s60, 9", "s_add_u32 s61, s61, s60", f"s_add_u32 s{68+j}, s61, s59"]
    pre += ["s_cmp_eq_u32 s40, 21\n    s_cselect_b32 s71, 0x40000000, s71\n    s_cselect_b32 s72, 0x40000000, s72"]
    def epi(j, pk):
        r = []
        for mi in range(2):
            g = acc(j, mi); u = g + 8
            if pk:
                r += [f"v_pk_mul_f32 {vr(u+2*p, 2)}, {vr(g+2*p, 2)}, {vr(u+2*p, 2)}" for p in range(4)]
                r += [f"v_pk_mul_f32 {vr(g+2*p, 2)}, {vr(g+2*p, 2)}, s[56:57]" for p in range(4)]
            else:
                r += [f"v_mul_f32 v{u+p}, v{g+p}, v{u+p}" for p in range(8)]
                r += [f"v_mul_f32 v{g+p}, s56, v{g+p}" for p in range(8)]
            r += [f"v_exp_f32 v{g+p}, v{g+p}" for p in range(8)]
            if pk:
                r += ["s_nop 0"] + [f"v_pk_add_f32 {vr(g+2*p, 2)}, {vr(g+2*p, 2)}, 1.0 op_sel_hi:[1,0]" for p in range(4)]
            else:
                r += [f"v_add_f32 v{g+p}, 1.0, v{g+p}" for p in range(8)]
            r += [f"v_rcp_f32 v{g+p}, v{g+p}" for p in range(8)]
            if pk:
                r += ["s_nop 0"] + [f"v_pk_mul_f32 {vr(u+2*p, 2)}, {vr(u+2*p, 2)}, {vr(g+2*p, 2)}" for p in range(4)]
            else:
                r += [f"v_mul_f32 v{u+p}, v{u+p}, v{g+p}" for p in range(8)]
            r += [f"v_cvt_pk_bf16_f32 v{g+p}, v{u+2*p}, v{u+2*p+1}" for p in range(4)]
            r += [f"buffer_store_dwordx4 {vr(g, 4)}, v9, s[48:51], s{68+j} offen offset:{mi*2048} {o.hst}"]
        return r
    fill = list(pre)
    done_at = {j: max(n for n, (jj, kk) in enumerate(mf) if jj == j) for j in range(5)}
    pend = []
    barred10 = False
    for n, (j, kk) in enumerate(mf):
        for mi in range(2):
            while any(t not in reg for t in (("x", kk, mi), ("w", j, kk))):
                assert try_read(), (n, j, kk, free, needs[:3])
            lds.wait(("x", kk, mi), ("w", j, kk))
            a(f"v_mfma_f32_32x32x16_bf16 {vr(acc(j, mi), 16)}, {vr(reg['w', j, kk], 4)}, {vr(reg['x', kk, mi], 4)}, {vr(acc(j, mi), 16)}")
            if last_use["x", kk, mi] == n:
                free.append(reg["x", kk, mi])
            if mi == 1:
                free.append(reg["w", j, kk])
            if n == n1 - o.b9_back and mi == 0:
                lds.wait(*[("x", k2, m2) for k2 in range(4) for m2 in range(2)])
                a("s_barrier")
                passed9[0] = True
            try_read()
            if n < n1 + 4:
                try_read()
            if not needs and not barred10 and lds.pending() == 0:
                a("s_barrier")
                barred10 = True
            while pend and len(a.l) >= pend[0][0] and not fill:
                fill = epi(pend.pop(0)[1], o.epi_pk)
            nxt = min(d for d in done_at.values() if d >= n)
            left = (nxt - n) * 2 + (1 - mi) + 1
            k = min(-(-len(fill) // left), o.fill_max)
            for _ in range(min(k, len(fill))):
                a(fill.pop(0))
        if done_at[j] == n:
            pend.append((len(a.l) + 14, j))
        if n == n1:
            a(f"s_setprio {o.cprio}")
    assert barred10 and passed9[0]
    stamp(a, o, 2); stamp_clk(a, o, 59)
    for x in fill:
        a(x)
    c_wsetup(a)
    a("s_nop 7")
    for _, j in pend:
        for x in epi(j, True):
            a(x)

def p1_ffn(a, o):
    ACC = 16; FA = 176; FB = 216; VX = 4; VW = 8; VN = 10
    acc = lambda j, mi: ACC + (j * 2 + mi) * 16
    fa = lambda b, j: FA + b * 20 + j * 4
    fb = lambda b, mi: FB + b * 8 + mi * 4
    s0 = WB + slot_of(0) * F_WS
    a.c("FFN compute wave: D[f][m] = W^T X^T")
    a("v_and_b32 v1, 31, v0")
    a("v_lshrrev_b32 v2, 5, v0")
    a("v_bfe_u32 v3, v0, 1, 3")
    a("v_xor_b32 v3, v3, v2")
    a("v_lshlrev_b32 v3, 4, v3")
    a("v_lshl_add_u32 v3, v1, 7, v3")
    a("s_lshl_b32 s44, s38, 13")
    a(f"s_add_u32 s44, s44, {slot_of(0) * XS}")
    a(f"v_add_u32 v{VX}, s44, v3")
    for sub in range(1, 4):
        a(f"v_xor_b32 v{VX+sub}, {sub*32}, v{VX}")
    a("v_bfe_u32 v1, v0, 4, 1")
    a(f"v_mul_u32_u24 v1, {F_UP}, v1")
    a("v_lshlrev_b32 v2, 3, v2")
    a("v_bfe_u32 v3, v0, 2, 2")
    a("v_add_u32 v2, v2, v3")
    a("v_mul_u32_u24 v2, 160, v2")
    a("v_add_u32 v1, v1, v2")
    a("v_and_b32 v2, 1, v0")
    a("v_lshlrev_b32 v2, 4, v2")
    a("v_add_u32 v1, v1, v2")
    a("v_bfe_u32 v2, v0, 1, 1")
    a("v_lshlrev_b32 v2, 3, v2")
    a("v_add_u32 v1, v1, v2")
    a(f"v_add_u32 v{VW}, {s0}, v1")
    a(f"v_mov_b32 v{VN+1}, {NONCE_LDS}")
    for r in range(ACC, ACC + 160):
        a(f"v_mov_b32 v{r}, 0")
    warm_stage_any(a, o, 1)
    srd(a, 48, P_WS, HP_SIZE, HP_OFF)
    a("v_bfe_u32 v1, v0, 4, 1")
    a("v_lshlrev_b32 v1, 10, v1")
    a("v_lshrrev_b32 v2, 5, v0")
    a("v_lshlrev_b32 v2, 8, v2")
    a("v_and_b32 v3, 15, v0")
    a("v_lshlrev_b32 v3, 4, v3")
    a("v_add3_u32 v9, v1, v2, v3")
    a("s_mov_b32 s52, 0")
    a(f"s_mov_b32 s53, {slot_of(0)}")
    a(f"s_mov_b32 s55, {XS}")
    a(f"s_mov_b32 s57, {F_WS}")

    def reads(buf, sub):
        r = []
        for mi in range(2):
            r.append(f"ds_read_b128 {vr(fb(buf, mi), 4)}, v{VX+sub} offset:{mi*4096}")
        for j in range(5):
            for half in range(2):
                r.append(f"ds_read_b64_tr_b16 {vr(fa(buf, j)+2*half, 2)}, v{VW} offset:{sub*2560 + half*640 + j*32}")
        return r
    a("s_barrier")
    stamp_clk(a, o, 58); stamp(a, o, 1)
    if o.stamps:
        a("s_mov_b32 s94, s92")
    for r in reads(0, 0):
        a(r)
    tags = [("b", 0), ("b", 1)] + [("a", j) for j in range(5) for _ in range(2)]
    k_loop(a, o, "Lf_loop", lambda b, sb: list(zip(reads(b, sb), tags)), lambda n: [("a", n >> 1), ("b", n & 1)],
           lambda buf, n: f"v_mfma_f32_32x32x16_bf16 {vr(acc(n >> 1, n & 1), 16)}, {vr(fa(buf, n >> 1), 4)}, {vr(fb(buf, n & 1), 4)}, {vr(acc(n >> 1, n & 1), 16)}",
           10, ring_ops(F_WS, range(VX, VX + 4), [VW]), f"ds_read_b32 v{VN}, v{VN+1}", 8 if o.peel else 10)
    if o.peel:
        ffn_peel(a, o, acc, fa, fb, VX, VW, VN)
    else:
        a.seg("fe")
        a("s_waitcnt lgkmcnt(0)")
        loop_stamp_flush(a, o)
        stamp(a, o, 2); stamp_clk(a, o, 59)
        a(f"s_setprio {o.cprio}")
        a(f"v_readfirstlane_b32 s64, v{VN}")
        a(f"s_mov_b32 s56, {NLOG2E:#x}")
        a(f"s_mov_b32 s57, {NLOG2E:#x}")
        a("s_mul_i32 s58, s40, 5")
        a("s_lshl_b32 s59, s39, 2")
        a("s_add_u32 s59, s59, s38")
        a(f"s_mul_i32 s59, s59, {HT}")
        a(f"s_add_u32 s59, s59, {40*HK}")
        c_wsetup(a)
        T = FA
        for j in range(5):
            for k in {1: (0,), 2: (1, 2), 3: (3,)}.get(j, ()) if o.early_w else ():
                c_wload(a, k)
            if j == 3:
                a("s_cmp_eq_u32 s40, 21")
                a("s_cbranch_scc1 Lf_done")
            a(f"s_add_u32 s60, s58, {j}")
            a("s_lshr_b32 s61, s60, 1")
            a("s_lshl_b32 s61, s61, 12")
            a("s_and_b32 s60, s60, 1")
            a("s_lshl_b32 s60, s60, 9")
            a("s_add_u32 s61, s61, s60")
            a("s_add_u32 s62, s61, s59")
            for mi in range(2):
                g = acc(j, mi); u = g + 8
                t = T + ((j * 2 + mi) & 1) * 12
                for p in range(4):
                    a(f"v_pk_mul_f32 {vr(t+2*p, 2)}, {vr(g+2*p, 2)}, s[56:57]")
                for p in range(8):
                    a(f"v_exp_f32 v{t+p}, v{t+p}")
                for p in range(4):
                    a(f"v_pk_mul_f32 {vr(g+2*p, 2)}, {vr(g+2*p, 2)}, {vr(u+2*p, 2)}")
                for p in range(4):
                    a(f"v_pk_add_f32 {vr(t+2*p, 2)}, {vr(t+2*p, 2)}, 1.0 op_sel_hi:[1,0]")
                for p in range(8):
                    a(f"v_rcp_f32 v{t+p}, v{t+p}")
                a("s_nop 0")
                for p in range(4):
                    a(f"v_pk_mul_f32 {vr(g+2*p, 2)}, {vr(g+2*p, 2)}, {vr(t+2*p, 2)}")
                for p in range(4):
                    a(f"v_cvt_pk_bf16_f32 v{t+8+p}, v{g+2*p}, v{g+2*p+1}")
                a(f"buffer_store_dwordx4 {vr(t+8, 4)}, v9, s[48:51], s62 offen offset:{mi*2048} {o.hst}")
    a.label("Lf_done")
    stamp(a, o, 3)
    a("s_lshl_b32 s65, s39, 2")
    a("s_add_u32 s65, s65, s38")
    a("s_lshl_b32 s65, s65, 13")
    a("s_lshl_b32 s66, s40, 7")
    a("s_add_u32 s65, s65, s66")
    a("s_mov_b64 s[66:67], 1")
    a("v_mov_b32 v2, 0")

def cmul(a, dr, di, ar, ai, br, bi, t):
    a(f"v_mul_f32 v{t}, v{ar}, v{br}")
    a(f"v_mul_f32 v{t+1}, v{ar}, v{bi}")
    a(f"v_fma_f32 v{t}, -v{ai}, v{bi}, v{t}")
    a(f"v_fma_f32 v{di}, v{ai}, v{br}, v{t+1}")
    a(f"v_mov_b32 v{dr}, v{t}")

def cfma(a, dr, di, ar, ai, br, bi, cr, ci):
    a(f"v_fma_f32 v{dr}, v{ar}, v{br}, v{cr}")
    a(f"v_fma_f32 v{di}, v{ar}, v{bi}, v{ci}")
    a(f"v_fma_f32 v{dr}, -v{ai}, v{bi}, v{dr}")
    a(f"v_fma_f32 v{di}, v{ai}, v{br}, v{di}")

def p1_ssm(a, o):
    ACC = 16; FA = 176; FB = 208; VX = 4; VB = 8
    LAM = 144; L32 = 146; L256 = 148; C2 = 150; TMP = 152; VN = 14
    PW = 224
    acc = lambda j, c: ACC + (j * 2 + c) * 16
    fa = lambda b, j: FA + b * 16 + j * 4
    fb = lambda b, c: FB + b * 8 + c * 4
    s0 = WB + slot_of(0) * S_WS
    a.c("SSM compute wave: D[t][p] = X B^T")
    a("s_lshr_b32 s44, s38, 1")
    a("s_and_b32 s45, s38, 1")
    srd(a, 48, P_LRE, 1280)
    srd(a, 52, P_LIM, 1280)
    srd(a, 56, P_LDT, 1280)
    a("s_lshl_b32 s46, s40, 6")
    a("s_lshl_b32 s47, s45, 5")
    a("s_add_u32 s46, s46, s47")
    a("v_and_b32 v1, 31, v0")
    a("v_add_u32 v2, s46, v1")
    a("v_lshlrev_b32 v2, 1, v2")
    a(f"buffer_load_ushort v{TMP}, v2, s[48:51], 0 offen")
    a(f"buffer_load_ushort v{TMP+1}, v2, s[52:55], 0 offen")
    a(f"buffer_load_ushort v{TMP+2}, v2, s[56:59], 0 offen")
    a("v_bfe_u32 v2, v0, 2, 1")
    a("v_lshlrev_b32 v2, 6, v2")
    a("v_and_b32 v3, 1, v0")
    a("v_lshl_add_u32 v2, v3, 5, v2")
    a(f"v_bfe_u32 v{VX}, v0, 1, 1")
    a(f"v_add_u32 v2, v2, v{VX}")
    a(f"v_bfe_u32 v{VX}, v0, 3, 2")
    a(f"v_lshl_add_u32 v2, v{VX}, 1, v2")
    a(f"v_lshl_or_b32 v3, v3, 2, v{VX}")
    a(f"v_lshrrev_b32 v{VX}, 5, v0")
    a(f"v_xor_b32 v3, v3, v{VX}")
    a("v_lshlrev_b32 v3, 4, v3")
    a("v_lshl_add_u32 v3, v2, 7, v3")
    a("s_lshl_b32 s47, s44, 14")
    a(f"s_add_u32 s47, s47, {slot_of(0) * XS}")
    a(f"v_add_u32 v{VX}, s47, v3")
    for sub in range(1, 4):
        a(f"v_xor_b32 v{VX+sub}, {sub*32}, v{VX}")
    a("v_lshrrev_b32 v2, 5, v0")
    a("v_bfe_u32 v3, v0, 1, 3")
    a("v_xor_b32 v3, v3, v2")
    a("v_lshlrev_b32 v3, 4, v3")
    a("v_lshl_add_u32 v3, v1, 7, v3")
    a("s_lshl_b32 s47, s45, 12")
    a(f"s_add_u32 s47, s47, {s0}")
    a(f"v_add_u32 v{VB}, s47, v3")
    for sub in range(1, 4):
        a(f"v_xor_b32 v{VB+sub}, {sub*32}, v{VB}")
    a(f"v_mov_b32 v{VN+1}, {NONCE_LDS}")
    for r in range(ACC, ACC + 128):
        a(f"v_mov_b32 v{r}, 0")
    warm_stage_any(a, o, 1)
    a("s_waitcnt vmcnt(0)")
    t = TMP
    a(f"v_lshlrev_b32 v{t}, 16, v{t}")
    a(f"v_lshlrev_b32 v{t+1}, 16, v{t+1}")
    a(f"v_lshlrev_b32 v{t+2}, 16, v{t+2}")
    a(f"v_mul_f32 v{t+2}, {LOG2E:#x}, v{t+2}")
    a(f"v_exp_f32 v{t+2}, v{t+2}")
    a("s_nop 0")
    a(f"v_cvt_pk_bf16_f32 v{t+2}, v{t+2}, v{t+2}")
    a(f"v_lshlrev_b32 v{t+2}, 16, v{t+2}")
    a(f"v_mul_f32 v{t+3}, v{t+2}, v{t}")
    a(f"v_mul_f32 v{t+4}, v{t+2}, v{t+1}")
    a(f"v_mul_f32 v{t+3}, {LOG2E:#x}, v{t+3}")
    a(f"v_exp_f32 v{t+3}, v{t+3}")
    a(f"v_mul_f32 v{t+4}, 0.15915494, v{t+4}")
    a(f"v_rndne_f32 v{t+5}, v{t+4}")
    a(f"v_sub_f32 v{t+4}, v{t+4}, v{t+5}")
    a(f"v_cos_f32 v{t+5}, v{t+4}")
    a(f"v_sin_f32 v{t+6}, v{t+4}")
    a("s_nop 0")
    a(f"v_mul_f32 v{LAM}, v{t+3}, v{t+5}")
    a(f"v_mul_f32 v{LAM+1}, v{t+3}, v{t+6}")
    a(f"v_mul_f32 v{t+3}, v{t}, v{t}")
    a(f"v_fma_f32 v{t+3}, v{t+1}, v{t+1}, v{t+3}")
    a(f"v_rcp_f32 v{t+3}, v{t+3}")
    a(f"v_add_f32 v{t+4}, -1.0, v{LAM}")
    a(f"v_mul_f32 v{t+5}, v{t+4}, v{t}")
    a(f"v_fma_f32 v{t+5}, v{LAM+1}, v{t+1}, v{t+5}")
    a(f"v_mul_f32 v{t+6}, v{LAM+1}, v{t}")
    a(f"v_fma_f32 v{t+6}, -v{t+4}, v{t+1}, v{t+6}")
    a(f"v_add_f32 v{t+3}, v{t+3}, v{t+3}")
    a(f"v_mul_f32 v{C2}, v{t+5}, v{t+3}")
    a(f"v_mul_f32 v{C2+1}, v{t+6}, v{t+3}")
    cmul(a, L32, L32 + 1, LAM, LAM + 1, LAM, LAM + 1, t)
    for _ in range(4):
        cmul(a, L32, L32 + 1, L32, L32 + 1, L32, L32 + 1, t)
    cmul(a, L256, L256 + 1, L32, L32 + 1, L32, L32 + 1, t)
    for _ in range(2):
        cmul(a, L256, L256 + 1, L256, L256 + 1, L256, L256 + 1, t)
    SEL = TMP + 8
    a(f"v_mov_b32 v{PW}, v{C2}"); a(f"v_mov_b32 v{PW+1}, v{C2+1}")
    for s in range(1, 8):
        a(f"v_mul_f32 v{PW+2*s}, v{PW+2*s-2}, v{L32}")
        a(f"v_mul_f32 v{PW+2*s+1}, v{PW+2*s-2}, v{L32+1}")
        a(f"v_fma_f32 v{PW+2*s}, -v{PW+2*s-1}, v{L32+1}, v{PW+2*s}")
        a(f"v_fma_f32 v{PW+2*s+1}, v{PW+2*s-1}, v{L32}, v{PW+2*s+1}")
    a("s_cmp_eq_u32 s44, 0")
    a("s_cselect_b64 s[68:69], 0, -1")
    a("s_mov_b32 s70, 0")
    a("s_mov_b32 s71, -1")
    def select(src, dst):
        for par in range(2):
            for c in range(2):
                r = lambda s: src + 2 * s + c
                a(f"v_cndmask_b32 v{TMP+16}, v{r(par)}, v{r(2+par)}, s[70:71]")
                a(f"v_cndmask_b32 v{TMP+17}, v{r(4+par)}, v{r(6+par)}, s[70:71]")
                a(f"v_cndmask_b32 v{dst+2*c+par}, v{TMP+16}, v{TMP+17}, s[68:69]")
    select(PW, SEL + 4)
    a("s_mov_b32 s52, 0")
    a(f"s_mov_b32 s53, {slot_of(0)}")
    a(f"s_mov_b32 s55, {XS}")
    a(f"s_mov_b32 s57, {S_WS}")

    def reads(buf, sub):
        r = []
        r.append(f"ds_read_b128 {vr(fb(buf, 0), 4)}, v{VB+sub}")
        r.append(f"ds_read_b128 {vr(fa(buf, 0), 4)}, v{VX+sub}")
        r.append(f"ds_read_b128 {vr(fb(buf, 1), 4)}, v{VB+sub} offset:8192")
        for j in range(1, 4):
            r.append(f"ds_read_b128 {vr(fa(buf, j), 4)}, v{VX+(sub ^ ((j & 1) << 1))} offset:{j*1024}")
        return r
    a("s_barrier")
    stamp_clk(a, o, 58); stamp(a, o, 1)
    if o.stamps:
        a("s_mov_b32 s94, s92")
    for r in reads(0, 0):
        a(r)
    tags = [("b", 0), ("a", 0), ("b", 1), ("a", 1), ("a", 2), ("a", 3)]
    k_loop(a, o, "Ls_loop", lambda b, sb: list(zip(reads(b, sb), tags)), lambda n: [("a", n >> 1), ("b", n & 1)],
           lambda buf, n: f"v_mfma_f32_32x32x16_bf16 {vr(acc(n >> 1, n & 1), 16)}, {vr(fa(buf, n >> 1), 4)}, {vr(fb(buf, n & 1), 4)}, {vr(acc(n >> 1, n & 1), 16)}",
           8, ring_ops(S_WS, range(VX, VX + 4), range(VB, VB + 4)), f"ds_read_b32 v{VN}, v{VN+1}", 10)
    a.seg("s1")
    a("s_waitcnt lgkmcnt(0)")
    loop_stamp_flush(a, o)
    stamp(a, o, 2); stamp_clk(a, o, 59)
    a(f"s_setprio {o.cprio}")
    a(f"v_readfirstlane_b32 s64, v{VN}")
    a("v_and_b32 v1, 31, v0")
    a("s_lshl_b32 s47, s45, 5")
    a("v_add_u32 v1, s47, v1")
    a("v_lshlrev_b32 v2, 6, v1")
    a(f"v_add_u32 v2, {S_AGG}, v2")
    a("v_lshrrev_b32 v3, 5, v0")
    a("v_lshl_add_u32 v3, v3, 4, v2")
    a("s_lshl_b32 s47, s44, 5")
    a("v_add_u32 v3, s47, v3")
    srd(a, 48, P_WS, AGG_SIZE, AGG_OFF)
    LR = vr(LAM, 2)
    def pk_lr(d, x, y):
        a(f"v_pk_fma_f32 {vr(d, 2)}, {LR}, {vr(x, 2)}, {vr(y, 2)} op_sel_hi:[0,1,1]")
    def pk_li(d, x, y, neg):
        n = " neg_lo:[1,0,0] neg_hi:[1,0,0]" if neg else ""
        a(f"v_pk_fma_f32 {vr(d, 2)}, {LR}, {vr(x, 2)}, {vr(y, 2)} op_sel:[1,0,0] op_sel_hi:[1,1,1]{n}")
    ure = lambda n: acc(n >> 3, 0) + 2 * (n & 7)
    uim = lambda n: acc(n >> 3, 1) + 2 * (n & 7)
    S = [TMP, TMP + 4]
    pr, pi = ure(0), uim(0)
    for n in range(1, 32):
        d = S[n & 1]
        pk_lr(d, pr, ure(n)); pk_lr(d + 2, pi, uim(n))
        pk_li(d, pi, d, True); pk_li(d + 2, pr, d + 2, False)
        pr, pi = d, d + 2
    Sf = S[31 & 1]
    a(f"ds_write_b128 v3, {vr(Sf, 4)}")
    a("s_waitcnt lgkmcnt(0)")
    a("s_barrier")
    AG = FA
    for q in range(4):
        a(f"ds_read_b128 {vr(AG+4*q, 4)}, v2 offset:{q*16}")
    are = lambda s: AG + 4 * (s >> 1) + (s & 1)
    aim = lambda s: AG + 4 * (s >> 1) + 2 + (s & 1)
    PF = FA + 16
    a("v_lshlrev_b32 v3, 4, v1")
    a("s_lshl_b32 s46, s40, 13")
    a("s_lshl_b32 s47, s39, 10")
    a("s_add_u32 s47, s47, s46")
    a(f"v_mov_b32 v{PF}, 0"); a(f"v_mov_b32 v{PF+1}, 0")
    a(f"v_mov_b32 v{TMP+1}, s64"); a(f"v_mov_b32 v{TMP+3}, s64")
    a("s_waitcnt lgkmcnt(0)")
    a(f"v_mov_b32 v{PF+2}, v{are(0)}"); a(f"v_mov_b32 v{PF+3}, v{aim(0)}")
    for s in range(1, 7):
        cfma(a, PF + 2 * (s + 1), PF + 2 * (s + 1) + 1, L32, L32 + 1, PF + 2 * s, PF + 2 * s + 1, are(s), aim(s))
    cfma(a, TMP, TMP + 2, L32, L32 + 1, PF + 14, PF + 15, are(7), aim(7))
    a("s_cmp_lg_u32 s44, 0")
    a("s_cbranch_scc1 Ls_nopub")
    a("s_mov_b32 exec_hi, 0")
    a(f"buffer_store_dwordx4 {vr(TMP, 4)}, v3, s[48:51], s47 offen sc1")
    a("s_mov_b64 exec, -1")
    a.label("Ls_nopub")
    stamp(a, o, 3)
    select(PF, SEL)
    CC = vr(C2, 2)
    def scale(re, im):
        a(f"v_pk_mul_f32 {vr(TMP+4, 2)}, {CC}, {vr(re, 2)} op_sel:[1,0] op_sel_hi:[1,1]")
        a(f"v_pk_mul_f32 {vr(re, 2)}, {CC}, {vr(re, 2)} op_sel_hi:[0,1]")
        a(f"v_pk_fma_f32 {vr(re, 2)}, {CC}, {vr(im, 2)}, {vr(re, 2)} op_sel:[1,0,0] op_sel_hi:[1,1,1] neg_lo:[1,0,0] neg_hi:[1,0,0]")
        a(f"v_pk_fma_f32 {vr(im, 2)}, {CC}, {vr(im, 2)}, {vr(TMP+4, 2)} op_sel_hi:[0,1,1]")
    scale(SEL, SEL + 2)
    for n in range(32):
        scale(ure(n), uim(n))
    stamp(a, o, 4)
    CR = TMP + 16
    a("s_cmp_eq_u32 s39, 0")
    a("s_cbranch_scc1 Ls_nocarry")
    GL = FA
    a("s_mov_b32 s72, 0")
    a("s_mov_b32 s50, s47")
    a("s_add_u32 s47, s46, 4096")
    a.label("Ls_poll")
    for i in range(7):
        a(f"buffer_load_dwordx4 {vr(GL+4*i, 4)}, v3, s[48:51], s{46 + (i >> 2)} offen offset:{(i & 3)*1024} sc1")
    a("s_waitcnt vmcnt(0)")
    a(f"v_mov_b32 v{CR+2}, 0"); a(f"v_mov_b32 v{CR+3}, 0")
    for i in range(7):
        a(f"v_cmp_ne_u32 vcc, s64, v{GL+4*i+1}")
        a(f"v_cmp_ne_u32 s[66:67], s64, v{GL+4*i+3}")
        a(f"v_mov_b32 v{CR}, v{CR+2}"); a(f"v_mov_b32 v{CR+1}, v{CR+3}")
        a("s_or_b64 vcc, vcc, s[66:67]")
        a("s_cbranch_scc1 Ls_retry")
        cfma(a, CR + 2, CR + 3, L256, L256 + 1, CR, CR + 1, GL + 4 * i, GL + 4 * i + 2)
        if i < 6:
            a(f"s_cmp_eq_u32 s39, {i+1}")
            a("s_cbranch_scc1 Ls_gotcarry")
    a("s_branch Ls_gotcarry")
    a.label("Ls_retry")
    a(f"s_sleep {o.agg_sleep}")
    a("s_add_u32 s72, s72, 1")
    a(f"s_cmp_lt_u32 s72, {SPIN_MAX:#x}")
    a("s_cbranch_scc1 Ls_poll")
    a.label("Ls_gotcarry")
    CY = vr(CR + 2, 2)
    a(f"v_pk_fma_f32 {vr(SEL, 2)}, {CY}, {vr(SEL+4, 2)}, {vr(SEL, 2)} op_sel_hi:[0,1,1]")
    a(f"v_pk_fma_f32 {vr(SEL+2, 2)}, {CY}, {vr(SEL+6, 2)}, {vr(SEL+2, 2)} op_sel_hi:[0,1,1]")
    a(f"v_pk_fma_f32 {vr(SEL, 2)}, {CY}, {vr(SEL+6, 2)}, {vr(SEL, 2)} op_sel:[1,0,0] op_sel_hi:[1,1,1] neg_lo:[1,0,0] neg_hi:[1,0,0]")
    a(f"v_pk_fma_f32 {vr(SEL+2, 2)}, {CY}, {vr(SEL+4, 2)}, {vr(SEL+2, 2)} op_sel:[1,0,0] op_sel_hi:[1,1,1]")
    a.seg("s2")
    a.label("Ls_nocarry")
    stamp(a, o, 5)
    TS = 144
    a(f"s_mul_i32 s47, s38, {64*TS}")
    a(f"s_add_u32 s47, s47, {S_TR}")
    a("v_and_b32 v1, 31, v0")
    a(f"v_mul_u32_u24 v1, {TS}, v1")
    a("v_lshrrev_b32 v2, 5, v0")
    a("v_lshl_add_u32 v1, v2, 6, v1")
    a("v_add_u32 v1, s47, v1")
    a("v_lshrrev_b32 v2, 4, v0")
    a("v_lshlrev_b32 v2, 3, v2")
    a("v_bfe_u32 v3, v0, 2, 2")
    a("v_add_u32 v2, v2, v3")
    a(f"v_mul_u32_u24 v2, {TS}, v2")
    a("v_and_b32 v3, 3, v0")
    a("v_lshl_add_u32 v2, v3, 3, v2")
    a("v_add_u32 v2, s47, v2")
    a("v_lshlrev_b32 v3, 4, v0")
    srd(a, 48, P_WS, HP_SIZE, HP_OFF)
    a("s_lshl_b32 s46, s40, 1")
    a("s_add_u32 s73, s46, s45")
    a("s_lshl_b32 s46, s73, 13")
    a("s_lshl_b32 s47, s39, 2")
    a("s_lshl_b32 s56, s44, 1")
    a("s_add_u32 s47, s47, s56")
    a(f"s_mul_i32 s47, s47, {HT}")
    a("s_add_u32 s46, s46, s47")
    a(f"s_add_u32 s47, s46, {HT}")
    a(f"s_add_u32 s56, s46, {HK}")
    a(f"s_add_u32 s57, s47, {HK}")
    c_wsetup(a)
    pr, pi = SEL, SEL + 2
    PKD = FA; OUT = FA + 32
    def flush_round(rd):
        a("s_waitcnt lgkmcnt(0)")
        for c in range(2):
            for sg in range(4):
                d = OUT + (c * 4 + sg) * 4
                a(f"ds_read_b64_tr_b16 {vr(d, 2)}, v2 offset:{c*32*TS + sg*32}")
                a(f"ds_read_b64_tr_b16 {vr(d+2, 2)}, v2 offset:{c*32*TS + 4*TS + sg*32}")
    def store_round(rd):
        a("s_waitcnt lgkmcnt(0)")
        for c in range(2):
            for sg in range(4):
                d = OUT + (c * 4 + sg) * 4
                mi = 2 * sg + rd
                so = (46, 47, 56, 57)[c * 2 + (mi >> 2)]
                a(f"buffer_store_dwordx4 {vr(d, 4)}, v3, s[48:51], s{so} offen offset:{(mi & 3)*1024} {o.hst}")
    for n in range(32):
        r, i = ure(n), uim(n)
        pk_lr(r, pr, r); pk_lr(i, pi, i)
        pk_li(r, pi, r, True); pk_li(i, pr, i, False)
        pr, pi = r, i
        if n == 17:
            flush_round(0)
        if n == 21:
            store_round(0)
        if n in (10, 25, 28) and o.early_w:
            c_wload(a, (10, 25, 28).index(n))
        if (n & 7) == 7:
            j = n >> 3
            st = PKD + (j & 1) * 16
            for c in range(2):
                sg = "-" if c else ""
                for par in range(2):
                    for e in range(4):
                        b = acc(j, c) + par
                        a(f"v_cvt_pk_bf16_f32 v{st+c*8+par*4+e}, {sg}v{b+4*e}, {sg}v{b+4*e+2}")
                    a(f"ds_write_b128 v1, {vr(st+c*8+par*4, 4)} offset:{c*32*TS + par*32 + (j & 1)*16}")
    flush_round(1)
    if o.early_w:
        c_wload(a, 3)
    store_round(1)
    stamp(a, o, 6)
    a("s_lshl_b32 s65, s39, 2")
    a("s_lshl_b32 s66, s44, 1")
    a("s_add_u32 s65, s65, s66")
    a("s_lshl_b32 s65, s65, 13")
    a("s_lshl_b32 s66, s73, 7")
    a("s_add_u32 s65, s65, s66")
    a(f"s_add_u32 s65, s65, {22*128}")
    a("s_mov_b64 s[66:67], 3")
    a("v_lshlrev_b32 v2, 13, v0")
    a("s_branch L_p2c")

L_ACC = 6; L_H = 86; L_W = 134
def p2_prefetch(a, o, vm, cuts, wait9, hook=None):
    if wait9:
        a(f"v_mov_b32 v2, {NONCE_LDS}")
        a("ds_read_b32 v2, v2")
    srd(a, 48, P_WS, HP_SIZE, HP_OFF)
    srd(a, 52, P_WS, W2_SIZE, W2_OFF)
    a("s_mul_i32 s74, s90, 14")
    a("s_min_u32 s74, s74, 40")
    a(f"s_mul_i32 s66, s42, {HT}")
    a(f"s_add_u32 s66, s66, {40*HK}")
    a(f"s_mul_i32 s67, s43, {WT}")
    a(f"s_add_u32 s67, s67, {40*WK}")
    a("s_cmp_lt_u32 s90, 3")
    a("s_cselect_b32 s50, s66, s50")
    a("s_cselect_b32 s54, s67, s54")
    srd(a, 56, P_WS, W2_SIZE, W2_OFF)
    if wait9:
        a("s_waitcnt lgkmcnt(0)")
        a("v_readfirstlane_b32 s64, v2")
    a("v_lshlrev_b32 v1, 4, v0")
    a(f"s_mul_i32 s76, s74, {WK}")
    a(f"s_mul_i32 s66, s43, {WT}")
    a("s_add_u32 s76, s76, s66")
    a("s_add_u32 s77, s76, 4096")
    ops = []
    for n in range(6):
        for i in range(5):
            post = [f"s_add_u32 s76, s76, {WK}", f"s_add_u32 s77, s77, {WK}"] if i == 4 else []
            ops.append(([], f"buffer_load_dwordx4 {vr(L_W + n*20 + i*4, 4)}, v1, s[52:55], s{76 + (i >> 2)} offen offset:{(i & 3)*1024} sc1", post, 0))
    for n in range(6):
        for i in range(5):
            pre = []
            if i == 0:
                pre = [f"s_add_u32 s69, s90, {4*n}", "s_mul_i32 s68, s69, 43", "s_lshr_b32 s68, s68, 8", "s_lshl_b32 s68, s68, 2",
                       "s_add_u32 s68, s68, s69", "s_add_u32 s68, s68, 56", f"s_mul_i32 s68, s68, {WK}", "s_add_u32 s68, s68, s66",
                       "s_mul_i32 m0, s69, 5120", "s_add_u32 s70, s68, 4096"]
            if i == 4:
                pre = ["s_add_u32 m0, m0, 4096", "s_nop 0"]
            ops.append((pre, f"buffer_load_dwordx4 v1, s[56:59], s{68 + 2*(i >> 2)} offen offset:{(i & 3)*1024} sc1 lds", [], 8 if n < 1 else 9 if n < 3 else 10))
    tag = int(wait9)
    def run(lo, hi, passed, thr=0):
        for pre, ins, post, need in ops[lo:hi]:
            assert need <= passed
            for p in pre: a(p)
            if thr:
                a(f"s_waitcnt vmcnt({thr - 1})")
            vm.op(ins, "pf")
            for p in post: a(p)
    def bar(s):
        stamp(a, o, 8 + s)
        a("s_barrier")
        stamp(a, o, 20 + s)
        if hook and s < 10: hook(s)
    def fwok():
        a("s_setprio 0")
        a("s_lshl_b32 s67, s90, 2")
        a(f"s_add_u32 s67, s67, {SFLAG_LDS}")
        a("v_mov_b32 v2, s67")
        a("v_mov_b32 v3, s64")
        a("ds_write_b32 v2, v3 offset:144")
    fw_setup(a)
    a(f"v_mov_b32 v28, {NONCE_LDS - 8}")
    if not wait9:
        a("s_cmp_lg_u32 s90, 2")
        a("s_cbranch_scc1 Lp_nolook")
        fw_load(a)
        fw_test(a)
        a("s_cselect_b32 s44, s64, 0")
        a("v_mov_b32 v29, s44")
        a("ds_write_b32 v28, v29")
        a("s_waitcnt lgkmcnt(0)")
        a.label("Lp_nolook")
    bar(8)
    a("ds_read_b32 v29, v28")
    a("s_waitcnt vmcnt(0) lgkmcnt(0)")
    a("v_readfirstlane_b32 s44, v29")
    a("s_nop 3")
    a("s_cmp_eq_u32 s44, s64")
    a(f"s_cbranch_scc0 Lp_late{tag}")
    stamp(a, o, 5)
    vm.q = []
    run(0, cuts[0], 8)
    bar(9)
    run(cuts[0], cuts[1], 9)
    bar(10)
    if o.ssm_early:
        assert not o.use_y
        a("s_cmp_eq_u32 s41, 0")
        a(f"s_cbranch_scc1 Ll_noxe{tag}")
        a("s_barrier")
        a.label(f"Ll_noxe{tag}")
    fwok()
    run(cuts[1], 60, 10, o.thr_e)
    a(f"s_branch Lp_done{tag}")
    a.label(f"Lp_late{tag}")
    bar(9)
    bar(10)
    a("s_cmp_eq_u32 s41, 0")
    a(f"s_cbranch_scc1 Ll_nox{tag}")
    a("s_barrier")
    a.label(f"Ll_nox{tag}")
    fw_check(a)
    fwok()
    stamp(a, o, 4)
    vm.q = []
    run(0, o.pre_y, 10, o.thr_y)
    if o.use_y:
        a("s_cmp_eq_u32 s41, 0")
        a(f"s_cbranch_scc1 Ll_noy{tag}")
        a("s_barrier")
        a.label(f"Ll_noy{tag}")
    run(o.pre_y, 60, 10, o.thr_t)
    a.label(f"Lp_done{tag}")
    if hook: hook(10)
    vm.drain()
    a("s_lshl_b32 s66, s90, 2")
    a(f"s_add_u32 s66, s66, {SFLAG_LDS}")
    a("v_mov_b32 v2, s66")
    a("v_mov_b32 v3, s64")
    a("ds_write_b32 v2, v3")
    stamp(a, o, 6)

def p1_loader(a, o):
    a("s_cmp_ge_u32 s90, 2")
    a("s_cbranch_scc1 L_helper")
    VXO = 4; VWO = 12; VE = 18
    vm = VM(a)
    a("v_lshrrev_b32 v1, 3, v0")
    a("v_and_b32 v2, 7, v0")
    a("v_mul_u32_u24 v3, 1280, v1")
    a(f"v_lshrrev_b32 v{VE}, 1, v1")
    a(f"v_xor_b32 v{VE}, v{VE}, v2")
    a(f"v_lshlrev_b32 v{VE}, 4, v{VE}")
    a(f"v_xor_b32 v{VE+1}, 64, v{VE}")
    a(f"v_add_u32 v{VE}, v{VE}, v3")
    a(f"v_add_u32 v{VE+1}, v{VE+1}, v3")
    a(f"s_and_b32 s44, s40, {o.ab}")
    a(f"s_and_b32 s45, s39, {o.ab}")
    a("s_lshl_b32 s46, s39, 8")
    a("s_lshl_b32 s47, s90, 7")
    a("s_add_u32 s46, s46, s47")
    a("s_lshl_b32 s47, s44, 6")
    a("s_add_u32 s85, s46, s47")
    a("s_xor_b32 s47, s47, 64")
    a("s_add_u32 s86, s46, s47")
    a("s_mul_i32 s85, s85, 1280")
    a("s_mul_i32 s86, s86, 1280")
    a("s_lshl_b32 s75, s90, 14")
    a("s_lshl_b32 s47, s44, 13")
    a("s_add_u32 s75, s75, s47")
    a("s_xor_b32 s76, s75, 8192")
    a("s_cmp_eq_u32 s41, 1")
    a("s_cbranch_scc1 Ll_ssm")
    for ssm in (0, 1):
        if ssm:
            a.label("Ll_ssm")
        for i in range(8):
            bit = (i & 1) ^ ((i >> 2) & 1 if ssm else 0)
            a(f"v_add_u32 v{VXO+i}, {i*8*1280 - (i & 3)*1024}, v{VE+bit}")
        slot = S_WS if ssm else F_WS
        a(f"s_mov_b32 s81, {slot}")
        a(f"s_mov_b32 s82, {2*slot}")
        a("s_xor_b32 s47, s45, 1")
        if not ssm:
            for i in range(5):
                a(f"v_add_u32 v2, {64*i}, v0")
                a("v_mul_u32_u24 v3, 6554, v2")
                a("v_lshrrev_b32 v3, 16, v3")
                a("v_mul_u32_u24 v1, 10, v3")
                a("v_sub_u32 v2, v2, v1")
                a("v_mul_u32_u24 v3, 3456, v3")
                a("v_lshl_add_u32 v3, v2, 4, v3")
                a(f"v_subrev_u32 v{VWO+i}, {(i & 3)*1024}, v3")
            a("s_mul_i32 s46, s40, 160")
            a(f"s_mul_i32 s66, s45, {32*3456}")
            a(f"s_mul_i32 s67, s47, {32*3456}")
            a("s_add_u32 s66, s66, s46")
            a("s_add_u32 s67, s67, s46")
            a(f"s_mul_i32 s46, s90, {F_UP}")
            a(f"s_add_u32 s46, s46, {WB}")
            a("s_mul_i32 s77, s45, 5120")
            a("s_mul_i32 s78, s47, 5120")
            a("s_add_u32 s77, s77, s46")
            a("s_add_u32 s78, s78, s46")
            a("s_add_u32 s79, s77, 4096")
            a("s_add_u32 s80, s78, 4096")
            a("s_mov_b32 s83, s81")
            a("s_mov_b32 s87, s82")
            a(f"s_mov_b32 s84, {64*3456}")
            a("s_waitcnt lgkmcnt(0)")
            a("s_cmp_eq_u32 s90, 0")
            a(f"s_cselect_b32 s52, s{P_W1}, s{P_W3}")
            a(f"s_cselect_b32 s53, s{P_W1+1}, s{P_W3+1}")
            a(f"s_mov_b32 s54, {640*3456}")
            a("s_branch Ll_go")
        else:
            for i in range(4):
                a(f"v_add_u32 v{VWO+i}, {i*8*1280 - i*1024}, v{VE+(i & 1)}")
            a(f"v_mov_b32 v{VWO+4}, 0x40000000")
            a(f"s_mul_i32 s46, s40, {64*1280}")
            a(f"s_mul_i32 s66, s45, {32*1280}")
            a(f"s_mul_i32 s67, s47, {32*1280}")
            a("s_add_u32 s66, s66, s46")
            a("s_add_u32 s67, s67, s46")
            a("s_lshl_b32 s46, s90, 13")
            a("s_lshl_b32 s77, s45, 12")
            a("s_add_u32 s77, s77, s46")
            a("s_xor_b32 s78, s77, 4096")
            a(f"s_add_u32 s77, s77, {WB}")
            a(f"s_add_u32 s78, s78, {WB}")
            a("s_lshl_b32 s79, s90, 10")
            a(f"s_add_u32 s79, s79, {S_DUMMY}")
            a("s_mov_b32 s80, s79")
            a("s_mov_b32 s83, 0")
            a("s_mov_b32 s87, 0")
            a("s_movk_i32 s84, 128")
            a("s_waitcnt lgkmcnt(0)")
            a("s_cmp_eq_u32 s90, 0")
            a(f"s_cselect_b32 s52, s{P_BRE}, s{P_BIM}")
            a(f"s_cselect_b32 s53, s{P_BRE+1}, s{P_BIM+1}")
            a(f"s_mov_b32 s54, {640*1280}")
    a.label("Ll_go")
    a("s_mov_b32 s55, 0x20000")
    srd(a, 48, P_X, 2048 * 1280)
    a("s_lshl_b32 s44, s3, 7")
    a("s_add_u32 s85, s85, s44")
    a("s_add_u32 s86, s86, s44")
    a("s_mul_i32 s44, s3, s84")
    a("s_add_u32 s66, s66, s44")
    a("s_add_u32 s67, s67, s44")
    a("s_mul_i32 s73, s84, -9")
    a("s_mov_b32 s71, s3")
    a("s_mov_b32 s72, s3")
    a("s_movk_i32 s74, 128")
    def setm0(base, sl, five=False):
        if sl == 0:
            return f"s_mov_b32 m0, s{base}"
        return f"s_add_u32 m0, s{base}, s{((83, 87) if five else (81, 82))[sl-1]}"
    def half(stage, h, extra=()):
        extra = list(extra)
        sl = slot_of(stage)
        def dma(ins):
            vm.op(ins, ("st", stage))
            for _ in range(2 if len(extra) > 14 else 1):
                if extra:
                    a(extra.pop(0))
                    if extra and extra[0].startswith("s_addc"):
                        a(extra.pop(0))
        a(f"s_add_u32 m0, s{75 + h}, {sl*XS}"); a("s_nop 0")
        for i in range(8):
            if i == 4:
                a("s_add_u32 m0, m0, 4096"); a("s_nop 0")
            dma(f"buffer_load_dwordx4 v{VXO+i}, s[48:51], s{85+h} offen offset:{(i & 3)*1024} lds")
        a(setm0(77 + h, sl))
        a(f"s_add_u32 s{71+h}, s{71+h}, 1")
        for i in range(4):
            dma(f"buffer_load_dwordx4 v{VWO+i}, s[52:55], s{66+h} offen offset:{i*1024} lds")
        a(setm0(79 + h, sl, True)); a("s_nop 0")
        dma(f"buffer_load_dwordx4 v{VWO+4}, s[52:55], s{66+h} offen lds")
        a(f"s_cmp_eq_u32 s{71+h}, 10")
        a(f"s_cselect_b32 s44, {-9*128 & 0xffffffff:#x}, s74")
        a("s_cselect_b32 s45, s73, s84")
        a(f"s_add_u32 s{85+h}, s{85+h}, s44")
        a(f"s_add_u32 s{66+h}, s{66+h}, s45")
        for x in extra:
            a(x)
    def bar(s):
        vm.wait(("st", s))
        stamp(a, o, 8 + s)
        a("s_barrier")
        stamp(a, o, 20 + s)
    wo = lambda: warm_ops(o, "w")
    lw = list(o.lwarm)
    assert sum(lw) in (0, 9)
    half0 = half
    def lwarm_setup():
        a("v_lshlrev_b32 v20, 4, v0")
        a("s_cmp_eq_u32 s90, 1")
        a("s_cbranch_scc1 Ll_wx")
        a("s_and_b32 s68, s2, 1")
        a("s_cmp_eq_u32 s68, 0")
        a(f"s_cselect_b32 s56, s{P_W1}, s{P_W3}")
        a(f"s_cselect_b32 s57, s{P_W1+1}, s{P_W3+1}")
        a(f"s_mov_b32 s58, {640*3456}")
        a("s_mov_b32 s60, s56")
        a("s_mov_b32 s61, s57")
        a("s_mov_b32 s62, s58")
        a("s_lshr_b32 s68, s2, 1")
        a("s_mul_i32 s68, s68, 1728")
        a("s_add_u32 s69, s68, 1008")
        a("v_min_u32 v21, 704, v20")
        a(f"s_mov_b32 s70, {64*3456}")
        a("s_branch Ll_wd")
        a.label("Ll_wx")
        a(f"s_mov_b32 s56, s{P_X}")
        a(f"s_mov_b32 s57, s{P_X+1}")
        a(f"s_mov_b32 s58, {2048*1280}")
        a("s_cmp_lt_u32 s2, 128")
        a(f"s_cselect_b32 s60, s{P_BRE}, s{P_BIM}")
        a(f"s_cselect_b32 s61, s{P_BRE+1}, s{P_BIM+1}")
        a(f"s_mov_b32 s62, {640*1280}")
        a("v_lshrrev_b32 v20, 3, v0")
        a("v_min_u32 v21, 4, v20")
        a("v_and_b32 v22, 7, v0")
        a("v_lshlrev_b32 v22, 4, v22")
        a("v_mul_u32_u24 v20, 1280, v20")
        a("v_mul_u32_u24 v21, 1280, v21")
        a("v_add_u32 v20, v20, v22")
        a("v_add_u32 v21, v21, v22")
        a(f"s_mul_i32 s68, s2, {8*1280}")
        a("s_and_b32 s69, s2, 127")
        a(f"s_mul_i32 s69, s69, {5*1280}")
        a("s_movk_i32 s70, 128")
        a.label("Ll_wd")
        a("s_mov_b32 s59, 0x20000")
        a("s_mov_b32 s63, 0x20000")
    nh = [0]
    def half(stage, h, extra=()):
        half0(stage, h, extra)
        if nh[0] == 0 and sum(lw):
            lwarm_setup()
        k = lw[nh[0]] if nh[0] < len(lw) else 0
        nh[0] += 1
        for _ in range(k):
            a("s_add_u32 s68, s68, s70")
            a("s_add_u32 s69, s69, s70")
            vm.op("buffer_load_dwordx4 v[28:31], v20, s[56:59], s68 offen", "lw")
            vm.op("buffer_load_dwordx4 v[28:31], v21, s[60:63], s69 offen", "lw")
    half(0, 0)
    warm_setup(a, o); warm_skip(a, o, 3)
    half(0, 1, wo())
    half(1, 0, wo()); bar(0)
    nw = 2
    for s in range(0, 8):
        if s < o.lead:
            half(s + 1, 1, wo() if nw < 7 else ()); nw += 1; half(s + 2, 0)
        elif s == o.lead:
            half(s + 1, 1); half(s + 2, 0, wo() if nw < 7 else ()); nw += 1; half(s + 2, 1)
        else:
            half(s + 2, 0, wo() if nw < 7 else ()); nw += 1; half(s + 2, 1)
        if s < 7:
            bar(s + 1)
    assert o.lead <= 7 and nw >= 7
    vm.wait(("st", 8))
    p2_prefetch(a, o, vm, o.cuts_l, True)
    a("s_branch L_p2l")

    a.label("L_helper")
    a(f"s_setprio {o.hprio}")
    a("s_waitcnt lgkmcnt(0)")
    vm = VM(a)
    GWF, XF, GA = 40, 120, 128
    RJ, OJ, O2 = (134, 182), (150, 198), 166
    if o.codepf:
        a("s_getpc_b64 s[56:57]")
        a.label("Lpc")
        a(f"s_sub_u32 s56, s56, Lpc-{NAME}_kernel")
        a("s_subb_u32 s57, s57, 0")
        a(f"s_mov_b32 s58, L_codeend-{NAME}_kernel")
        a("s_mov_b32 s59, 0x20000")
        a("s_lshr_b32 s66, s2, 3")
        a("s_lshl_b32 s66, s66, 1")
        a("s_add_u32 s66, s66, s90")
        a("s_sub_u32 s66, s66, 2")
        a("s_lshl_b32 s66, s66, 10")
        a("v_lshlrev_b32 v21, 4, v0")
        a("buffer_load_dwordx4 v[24:27], v21, s[56:59], s66 offen")
    srd(a, 60, P_DBG, 256)
    a("v_mov_b32 v19, 0")
    a("s_lshl_b32 s65, s2, 2")
    a("s_lshl_b32 s66, s90, 1")
    a("s_add_u32 s65, s65, s66")
    a("s_sub_u32 s65, s65, 4")
    a("s_cmp_lg_u32 s65, 0")
    a("s_cbranch_scc1 Lh_nononce")
    a("s_memrealtime s[66:67]")
    a("s_waitcnt lgkmcnt(0)")
    a("s_or_b32 s66, s66, 1")
    a("v_mov_b32 v20, s66")
    a("s_mov_b64 exec, 1")
    a("buffer_store_dword v20, v19, s[60:63], 0 offen sc1")
    a("s_mov_b64 exec, -1")
    a.label("Lh_nononce")
    warm_setup(a, o); warm_skip(a, o, 3)
    warm_stage_xb(a, o, 1)
    srd(a, 52, P_GW, 1280)
    a("v_lshlrev_b32 v21, 4, v0")
    a("v_lshrrev_b32 v6, 4, v0")
    a("v_and_b32 v7, 15, v0")
    a("v_lshlrev_b32 v5, 4, v6")
    a("s_lshl_b32 s66, s41, 4")
    a("s_add_u32 s66, s66, s40")
    a("s_cmp_eq_u32 s90, 3")
    a("s_cselect_b32 s73, s66, 16")
    a("s_cmp_ge_u32 s73, 16")
    a("s_cbranch_scc1 Lh_nogw")
    a("s_lshl_b32 s66, s3, 7")
    for k in range(20):
        a(f"buffer_load_dwordx4 {vr(GWF+4*k, 4)}, v5, s[52:55], s66 offen offset:{(k & 1)*64}")
        if k & 1:
            a("s_add_u32 s66, s66, 128")
            a("s_cmp_eq_u32 s66, 1280")
            a("s_cselect_b32 s66, 0, s66")
    a.label("Lh_nogw")
    a("v_mul_u32_u24 v8, 1280, v7")
    a("v_lshl_add_u32 v8, v6, 4, v8")
    a(f"v_mul_u32_u24 v9, {8*1280}, v6")
    a("v_and_b32 v10, 3, v0")
    a("v_lshl_add_u32 v9, v10, 5, v9")
    a("v_bfe_u32 v10, v0, 2, 2")
    a("v_lshl_add_u32 v9, v10, 3, v9")
    a("v_bfe_u32 v10, v0, 1, 3")
    a("v_xor_b32 v10, v10, v6")
    a("v_lshlrev_b32 v10, 4, v10")
    a("v_lshl_add_u32 v10, v7, 7, v10")
    a("s_and_b32 s66, s40, 15")
    a("s_lshl_b32 s66, s66, 11")
    a("v_add_u32 v10, s66, v10")
    for k in range(3):
        a(f"v_add_u32 v{12+2*k}, {k*XS}, v10")
        a(f"v_xor_b32 v{13+2*k}, 64, v{12+2*k}")
    for k in range(4):
        a(f"v_mov_b32 v{GA+k}, 0")
    a("s_lshr_b32 s65, s65, 1")
    a("s_mul_i32 s70, s65, 698")
    a("s_lshr_b32 s70, s70, 16")
    a("s_mul_i32 s69, s70, 94")
    a("s_sub_u32 s69, s65, s69")
    a("s_sub_u32 s66, s69, 54")
    a("s_and_b32 s67, s66, 1")
    a("s_lshl_b32 s68, s70, 1")
    a("s_add_u32 s67, s67, s68")
    a("s_bfe_u32 s84, s66, 0x10001")
    a("s_lshr_b32 s66, s66, 2")
    a("s_lshl_b32 s85, s66, 7")
    a(f"s_mul_i32 s68, s67, {64*1280}")
    a("s_add_u32 s85, s85, s68")
    a("s_lshl_b32 s66, s66, 2")
    a("s_add_u32 s66, s66, s84")
    a("s_lshl_b32 s67, s67, 2")
    a(f"s_mul_i32 s86, s69, {32*1280}")
    a("s_lshl_b32 s68, s70, 8")
    a("s_add_u32 s86, s86, s68")
    a("s_lshl_b32 s70, s70, 3")
    a("s_cmp_lt_u32 s69, 54")
    a("s_cselect_b32 s88, 1, 0")
    a("s_add_u32 s69, s69, 40")
    a("s_cmp_eq_u32 s88, 1")
    a("s_cselect_b32 s66, s69, s66")
    a("s_cselect_b32 s67, s70, s67")
    a("s_cselect_b32 s71, 4, 0")
    a(f"s_cselect_b32 s72, 0, {2*WK}")
    a(f"s_mul_i32 s87, s66, {WK}")
    a("s_cmp_ge_u32 s65, 470")
    a("s_cselect_b32 s87, 0x40000000, s87")
    for t in range(8):
        if t == 4:
            a("s_add_u32 s67, s67, s71")
            a("s_add_u32 s87, s87, s72")
        a(f"s_add_u32 s68, s67, {t & 3}")
        a("s_mul_i32 s69, s68, 52")
        a("s_lshr_b32 s69, s69, 8")
        a(f"s_mul_i32 s70, s69, {WT - 5120}")
        a("s_lshl_b32 s68, s68, 10")
        a("s_add_u32 s68, s68, s70")
        a(f"s_add_u32 s{76+t}, s68, s87")
    warm_stage_xb(a, o, 1)
    def gstep(s):
        sl = slot_of(s)
        a(f"ds_read_b128 {vr(XF, 4)}, v{12+2*sl}")
        a(f"ds_read_b128 {vr(XF+4, 4)}, v{13+2*sl}")
        a("s_waitcnt lgkmcnt(0)")
        a(f"v_mfma_f32_16x16x32_bf16 {vr(GA, 4)}, {vr(GWF+8*s, 4)}, {vr(XF, 4)}, {vr(GA, 4)}")
        a(f"v_mfma_f32_16x16x32_bf16 {vr(GA, 4)}, {vr(GWF+8*s+4, 4)}, {vr(XF+4, 4)}, {vr(GA, 4)}")
    def ev_load():
        a("s_cmp_eq_u32 s88, 1")
        a("s_cbranch_scc1 Lh_w2")
        a("s_cmp_eq_u32 s84, 0")
        a(f"s_cselect_b32 s56, s{P_CRE}, s{P_CIM}")
        a(f"s_cselect_b32 s57, s{P_CRE+1}, s{P_CIM+1}")
        a(f"s_mov_b32 s58, {640*1280}")
        a("s_mov_b32 s59, 0x20000")
        for t in range(4):
            for hb in range(2):
                a(f"buffer_load_dwordx4 {vr(OJ[hb]+4*t, 4)}, v8, s[56:59], s85 offen offset:{hb*64}")
            if t < 3:
                a(f"s_add_u32 s85, s85, {16*1280}")
        a("s_branch Lh_ld")
        a.label("Lh_w2")
        srd(a, 56, P_W2, 1728 * 1280)
        a(f"s_add_u32 s87, s86, {4*1280}")
        for e in range(8):
            for jb in range(2):
                a(f"buffer_load_dwordx2 {vr(RJ[jb]+2*e, 2)}, v9, s[56:59], s{86 + (e >> 2)} offen offset:{(e & 3)*1280 + jb*128}")
        a.label("Lh_ld")
    def ev_store(jb):
        if jb == 0:
            srd(a, 56, P_WS, W2_SIZE, W2_OFF)
            a("s_mov_b32 s70, 0x05040100")
            a("s_mov_b32 s71, 0x07060302")
            a("s_waitcnt vmcnt(0)")
        R, O = RJ[jb], OJ[jb]
        a("s_cmp_eq_u32 s88, 0")
        a(f"s_cbranch_scc1 Lh_st{jb}")
        for t in range(4):
            for e in range(4):
                a(f"v_perm_b32 v{O+4*t+e}, v{R+4*e+2+(t >> 1)}, v{R+4*e+(t >> 1)}, s{70+(t & 1)}")
        for (src, dst, x, qp, m) in ((O, O2, 1, "[1,0,3,2]", 0xaaaaaaaa), (O2, O, 2, "[2,3,0,1]", 0xcccccccc)):
            for hi in (1, 0):
                mm = m if hi else (~m & 0xffffffff)
                a(f"s_mov_b32 vcc_lo, {mm:#x}")
                a(f"s_mov_b32 vcc_hi, {mm:#x}")
                a("s_nop 1")
                for t in range(4):
                    if bool(t & x) != bool(hi):
                        continue
                    for e in range(4):
                        a(f"v_cndmask_b32_dpp v{dst+4*t+e}, v{src+4*(t ^ x)+e}, v{src+4*t+e}, vcc quad_perm:{qp} row_mask:0xf bank_mask:0xf")
        a.label(f"Lh_st{jb}")
        for t in range(4):
            a(f"buffer_store_dwordx4 {vr(O+4*t, 4)}, v21, s[56:59], s{76 + 4*jb + t} offen sc1")
    def ev_drain():
        a("s_mov_b32 s72, 0")
        a.label("Lh_npoll")
        a("s_waitcnt vmcnt(0)")
        a("v_readfirstlane_b32 s64, v23")
        a("s_add_u32 s72, s72, 1")
        a("s_cmp_lg_u32 s64, 0")
        a("s_cbranch_scc1 Lh_ngot")
        a("buffer_load_dword v23, v19, s[60:63], 0 offen sc1")
        a(f"s_cmp_lt_u32 s72, {SPIN_MAX:#x}")
        a("s_cbranch_scc1 Lh_npoll")
        a.label("Lh_ngot")
        a(f"v_mov_b32 v22, {NONCE_LDS}")
        a("ds_write_b32 v22, v23")
        a("s_waitcnt lgkmcnt(0)")
    def ev_flag():
        srd(a, 56, P_WS, FW_SIZE, FW_OFF)
        a("s_cmp_lg_u32 s90, 2")
        a("s_cbranch_scc1 Lh_noflag")
        a("s_lshl_b32 s66, s2, 7")
        a("s_mov_b64 exec, 1")
        a("buffer_store_dword v23, v19, s[56:59], s66 offen sc1")
        a("s_mov_b64 exec, -1")
        a.label("Lh_noflag")
    t_ld, t_s0, t_s1, t_dr = o.hsched
    assert t_ld < t_s0 <= t_s1 < t_dr <= 6
    nyoung = 0
    if o.vwarm:
        a("s_cmp_eq_u32 s90, 3")
        a("s_cbranch_scc1 Lh_wx")
        a("s_and_b32 s68, s2, 1")
        a("s_cmp_eq_u32 s68, 0")
        a(f"s_cselect_b32 s56, s{P_W1}, s{P_W3}")
        a(f"s_cselect_b32 s57, s{P_W1+1}, s{P_W3+1}")
        a(f"s_mov_b32 s58, {640*3456}")
        a("s_mov_b32 s59, 0x20000")
        a("s_lshr_b32 s68, s2, 1")
        a("s_mul_i32 s68, s68, 1728")
        a("v_min_u32 v24, 704, v21")
        for st in range(1, 10 if o.vwarm == 1 else 1):
            a(f"s_add_u32 s68, s68, {64*3456}")
            a("buffer_load_dwordx4 v[28:31], v21, s[56:59], s68 offen")
            a("buffer_load_dwordx4 v[28:31], v24, s[56:59], s68 offen offset:1008")
        a("s_branch Lh_wd")
        a.label("Lh_wx")
        srd(a, 52, P_X, 2048 * 1280)
        a("s_cmp_lt_u32 s2, 128")
        a(f"s_cselect_b32 s56, s{P_BRE}, s{P_BIM}")
        a(f"s_cselect_b32 s57, s{P_BRE+1}, s{P_BIM+1}")
        a(f"s_mov_b32 s58, {640*1280}")
        a("s_mov_b32 s59, 0x20000")
        a("v_lshrrev_b32 v24, 3, v0")
        a("v_min_u32 v25, 4, v24")
        a("v_and_b32 v26, 7, v0")
        a("v_lshlrev_b32 v26, 4, v26")
        a("v_mad_u32_u24 v24, v24, s98, v26").__class__
        a.l.pop()
        a("v_mul_u32_u24 v24, 1280, v24")
        a("v_mul_u32_u24 v25, 1280, v25")
        a("v_add_u32 v24, v24, v26")
        a("v_add_u32 v25, v25, v26")
        a(f"s_mul_i32 s68, s2, {8*1280}")
        a("s_and_b32 s69, s2, 127")
        a(f"s_mul_i32 s69, s69, {5*1280}")
        if o.vwarm == 3:
            a("s_lshl_b32 s68, s39, 5")
            a("s_lshr_b32 s69, s2, 3")
            a("s_add_u32 s68, s68, s69")
            a(f"s_mul_i32 s68, s68, {8*1280}")
        for st in range(0 if o.vwarm == 3 else 1, 10):
            a(f"buffer_load_dwordx4 v[28:31], v24, s[52:55], s68 offen offset:{st*128}")
            if o.vwarm != 3:
                a(f"buffer_load_dwordx4 v[28:31], v25, s[56:59], s69 offen offset:{st*128}")
        a.label("Lh_wd")
        nyoung = 10 if o.vwarm == 3 else 18
    if t_ld < 0:
        ev_load()
        nyoung += 8
    a(f"s_waitcnt vmcnt({nyoung})")
    for s in range(8):
        stamp(a, o, 8 + s)
        a("s_barrier")
        gstep(s)
        if s == t_dr: ev_drain()
        if s == t_dr + 1: ev_flag()
        if s < 5:
            warm_stage_xb(a, o, 1)
        if s == t_ld: ev_load()
        if s == t_s0: ev_store(0)
        if s == t_s1: ev_store(1)
        if s == t_dr - 1: a("buffer_load_dword v23, v19, s[60:63], 0 offen sc1")
        if o.hops and s == o.hopsched[0]:
            a("s_mov_b64 exec, 0")
            a("s_cmp_eq_u32 s41, 0")
            a("s_cbranch_scc1 Lhop_fe_0")
            a("s_cmp_eq_u32 s90, 2")
            a("s_cbranch_scc1 Lhop_s1_0")
            a("s_branch Lhop_s2_0")
            a.label("Lhopret_fe"); a.label("Lhopret_s1"); a.label("Lhopret_s2")
            a("s_mov_b64 exec, -1")
        if o.hops and s == o.hopsched[1]:
            a("s_mov_b64 exec, 0")
            a("s_cmp_eq_u32 s90, 2")
            a("s_cbranch_scc1 Lhop_pc_0")
            a("s_branch Lhop_pl_0")
            a.label("Lhopret_pc"); a.label("Lhopret_pl")
            a("s_mov_b64 exec, -1")
    def hook(s):
        if s < 10:
            gstep(s)
            return
        a("s_cmp_ge_u32 s73, 16")
        a("s_cbranch_scc1 Lh_nog")
        a(f"v_cvt_pk_bf16_f32 v{GA}, v{GA}, v{GA}")
        a(f"v_lshlrev_b32 v{GA}, 16, v{GA}")
        a(f"v_mul_f32 v{GA}, {NLOG2E:#x}, v{GA}")
        a(f"v_exp_f32 v{GA}, v{GA}")
        a("s_nop 0")
        a(f"v_add_f32 v{GA}, 1.0, v{GA}")
        a(f"v_rcp_f32 v{GA}, v{GA}")
        a("s_nop 0")
        a(f"v_cvt_pk_bf16_f32 v{GA}, v{GA}, v{GA}")
        a(f"v_lshlrev_b32 v{GA}, 16, v{GA}")
        a(f"v_mov_b32 v{GA+1}, s64")
        srd(a, 60, P_WS, G_SIZE, G_OFF)
        a("v_lshlrev_b32 v2, 3, v0")
        a("s_lshl_b32 s66, s39, 4")
        a("s_add_u32 s66, s66, s40")
        a("s_lshl_b32 s66, s66, 7")
        a("s_mov_b64 exec, 0xffff")
        a(f"buffer_store_dwordx2 {vr(GA, 2)}, v2, s[60:63], s66 offen sc1")
        a("s_mov_b64 exec, -1")
        a.label("Lh_nog")
    p2_prefetch(a, o, vm, o.cuts_h, False, hook)
    a.seg("pl")
    a.label("L_p2l")
    a(f"s_setprio {o.lprio}")

def lds_wait(a, name, off):
    a("s_mov_b32 s72, 0")
    a.label(f"{name}poll")
    a(f"ds_read_b32 v7, v6 offset:{off}")
    a("s_waitcnt lgkmcnt(0)")
    a("v_cmp_ne_u32 vcc, s64, v7")
    a("s_add_u32 s72, s72, 1")
    a("s_cmp_eq_u64 vcc, 0")
    a(f"s_cbranch_scc1 {name}got")
    a("s_sleep 1")
    a(f"s_cmp_lt_u32 s72, {SPIN_MAX*4:#x}")
    a(f"s_cbranch_scc1 {name}poll")
    a.label(f"{name}got")

def p2(a, o, loader):
    X = "L" if loader else "C"
    vm = VM(a)
    NS = 14 if loader else 10
    wreg = {}; hreg = {}
    if loader:
        ACC = L_ACC
        for n in range(6):
            for dt in range(5):
                wreg[n, dt] = L_W + n * 20 + dt * 4
        free = [L_H + 4 * i for i in range(12)]
        VO = 1
        lds_steps = ()
    else:
        ACC = C_ACC
        for k, n in enumerate(C_RSTEPS):
            for dt in range(5):
                wreg[n, dt] = C_WR + k * 20 + dt * 4
        lds_steps = tuple(range(2, 8))
        for n in lds_steps:
            for dt in range(5):
                wreg[n, dt] = C_WL + (((n - 2) * 5 + dt) % 6) * 4
        free = [C_H + 4 * i for i in range(12)]
        VO = 12
    acc = lambda dt, mi: ACC + (dt * 4 + mi) * 4
    srd(a, 56, P_WS, FH_SIZE, FH_OFF)
    if not loader:
        a("v_mov_b32 v3, s64")
        a("s_lshl_b32 s68, s90, 2")
        a(f"s_add_u32 s68, s68, {SFLAG_LDS}")
        a("v_mov_b32 v6, s68")
        a("s_waitcnt vmcnt(0)")
        a("s_mov_b64 exec, s[66:67]")
        a(f"buffer_store_dword v3, v2, s[56:59], s65 offen {o.hst}")
        a("s_mov_b64 exec, -1")
        a(f"s_setprio {o.cprio2}")
        stamp(a, o, 7)
        if o.use_y:
            a("s_cmp_eq_u32 s41, 0")
            a("s_cbranch_scc1 L2C_noy")
            a("s_barrier")
            a.label("L2C_noy")
        lds_wait(a, "L2C_f", 144)
        if not o.early_w:
            for k in range(4):
                c_wload(a, k)
        a(f"s_mul_i32 s68, s90, {CREG}")
        a(f"v_add_u32 v4, s68, v{VO}")
    a("s_lshl_b32 s80, s74, 12")
    a(f"s_mul_i32 s69, s42, {HT}")
    a("s_add_u32 s80, s80, s69")
    if loader:
        a("s_mul_i32 s68, s90, 7")
        a("s_add_u32 s68, s68, 22")
        a("s_cmp_eq_u32 s90, 2")
        a("s_cselect_b32 s69, 6, 7")
        a("s_cmp_eq_u32 s90, 3")
        a("s_cselect_b32 s68, 0, s68")
        a("s_cselect_b32 s69, 6, s69")
    else:
        a("s_lshl_b32 s68, s90, 2")
        a("s_add_u32 s68, s68, 5")
        a("s_mov_b32 s69, 5")
    a("s_bfm_b64 s[78:79], s69, s68")
    a("v_lshlrev_b32 v2, 7, v0")
    a("s_lshl_b32 s65, s42, 13")
    stamp(a, o, 40)
    if o.dspan and not loader:
        a("s_cmp_lg_u32 s38, 0")
        a("s_cbranch_scc1 Ld2")
        dmark(a, o, 6)
        a.label("Ld2")
    a("s_mov_b32 s72, 0")
    a.label(f"L2{X}_poll")
    a("s_mov_b64 exec, s[78:79]")
    a("buffer_load_dword v3, v2, s[56:59], s65 offen sc1")
    a("s_waitcnt vmcnt(0)")
    a("v_cmp_ne_u32 vcc, s64, v3")
    a("s_mov_b64 exec, -1")
    a("s_and_b64 s[78:79], vcc, s[78:79]")
    a(f"s_cbranch_scc0 L2{X}_go")
    a(f"s_sleep {o.poll_sleep}")
    a("s_add_u32 s72, s72, 1")
    a(f"s_cmp_lt_u32 s72, {SPIN_MAX:#x}")
    a(f"s_cbranch_scc1 L2{X}_poll")
    a.label(f"L2{X}_go")
    stamp(a, o, 41)
    needs = []
    for n in range(NS):
        if loader and n >= 6:
            needs += [("w", n, i) for i in range(5)]
        needs += [("h", n, i) for i in range(4)]
    E = {}
    cur = [0]
    look = o.look_l if loader else o.look_c
    def try_issue(force=False):
        if not needs or not free:
            return False
        if needs[0][1] > cur[0] + look and not force:
            return False
        kind, n, i = needs.pop(0)
        r = free.pop(0)
        tog = loader and o.ltog and started[0]
        if tog:
            a("s_setprio 0")
        if kind == "h":
            hreg[n, i] = r
            vm.op(f"buffer_load_dwordx4 {vr(r, 4)}, v{VO}, s[48:51], s80 offen offset:{i*1024} {o.hld}", ("h", n))
            if i == 3:
                a(f"s_add_u32 s80, s80, {HK}")
        else:
            wreg[n, i] = r
            vm.op(f"buffer_load_dwordx4 {vr(r, 4)}, v{VO}, s[52:55], s{76 + (i >> 2)} offen offset:{(i & 3)*1024} {o.hld}", ("w", n))
            if i >= 3:
                a(f"s_add_u32 s{76 + (i >> 2)}, s{76 + (i >> 2)}, {WK}")
        if tog:
            a(f"s_setprio {o.ltog}")
        return True
    started = [False]
    while try_issue():
        pass
    started[0] = True
    if loader and o.ltog:
        a(f"s_setprio {o.ltog}")
    if loader:
        a(f"s_mul_i32 s68, s90, {2*CREG}")
        a("s_add_u32 s68, s68, 20480")
        a(f"s_add_u32 s69, s68, {CREG}")
        a("s_mul_i32 s70, s90, 20480")
        a(f"s_add_u32 s70, s70, {122880 - 2*20480}")
        a("s_add_u32 s82, s70, 10240")
        a("s_cmp_ge_u32 s90, 2")
        a("s_cselect_b32 s68, s70, s68")
        a("s_cselect_b32 s69, s82, s69")
        a(f"v_add_u32 v3, s68, v{VO}")
        a(f"v_add_u32 v5, s69, v{VO}")
    def lds_w(k):
        n, dt = 2 + k // 5, k % 5
        return f"ds_read_b128 {vr(wreg[n, dt], 4)}, v4 offset:{k*1024}"
    def eloads():
        E["g"] = free.pop(0); E["x"] = [free.pop(0) for _ in range(5)]
        srd(a, 60, P_WS, G_SIZE, G_OFF)
        a("v_and_b32 v2, 15, v0")
        a("v_lshlrev_b32 v3, 3, v2")
        a("s_lshl_b32 s68, s42, 6")
        a("s_lshl_b32 s69, s90, 4")
        a("s_add_u32 s68, s68, s69")
        a("s_lshl_b32 s81, s68, 3")
        a(f"v_mov_b32 v{E['g']+2}, v3")
        vm.op(f"buffer_load_dwordx2 {vr(E['g'], 2)}, v3, s[60:63], s81 offen sc1", "e")
        srd(a, 84, P_X, 2048 * 1280)
        a("v_lshrrev_b32 v3, 4, v0")
        a("v_lshlrev_b32 v3, 3, v3")
        a("v_mul_u32_u24 v2, 1280, v2")
        a("v_add_u32 v2, v2, v3")
        a("s_mul_i32 s71, s68, 1280")
        a("s_mul_i32 s69, s43, 160")
        a("s_add_u32 s71, s71, s69")
        for dt in range(5):
            vm.op(f"buffer_load_dwordx2 {vr(E['x'][dt], 2)}, v2, s[84:87], s71 offen offset:{dt*32}", "e")
        srd(a, 84, P_DSK, 1280)
        for dt in range(5):
            vm.op(f"buffer_load_dwordx2 {vr(E['x'][dt]+2, 2)}, v3, s[84:87], s69 offen offset:{dt*32}", "e")
        a("v_lshlrev_b32 v2, 1, v2")
        a("s_lshl_b32 s71, s71, 1")
        srd(a, 84, P_OUT, 2048 * 2560)
        a("v_mov_b32 v3, v4")
        a("v_add_u32 v5, 10240, v4")
    def put(dt):
        for mi in range(4):
            a(f"ds_write_b128 v{3 if mi < 2 else 5}, {vr(acc(dt, mi), 4)} offset:{((mi & 1)*5 + dt)*1024}")
    def mfma(n, dt, mi):
        c = "0" if n == 0 else vr(acc(dt, mi), 4)
        a(f"v_mfma_f32_16x16x32_bf16 {vr(acc(dt, mi), 4)}, {vr(wreg[n, dt], 4)}, {vr(hreg[n, mi], 4)}, {c}")
    SP = (6, 8, 10, 12, 14, 16, 18, 22, 24, 26, 28, 30, 94, 100)
    def wait_step(n):
        need = [("h", n)]
        if loader and n >= 6:
            need.append(("w", n))
        vm.wait(*need)
        if o.stamps == 3:
            a(f"s_memrealtime s[{SP[n]}:{SP[n]+1}]")
        elif o.stamps and n in (0, 1, 5):
            stamp(a, o, 42 + (0, 1, 5).index(n))
    for n in range(NS - 2):
        cur[0] = n
        wait_step(n)
        if not loader and n == 1:
            a("v_and_b32 v6, 3, v0")
            a("v_lshlrev_b32 v6, 2, v6")
            a(f"v_add_u32 v6, {SFLAG_LDS}, v6")
            lds_wait(a, "L2C_s", 0)
            for k in range(5):
                a(lds_w(k))
        for dt in range(5):
            if n in lds_steps:
                f = (n - 2) * 5 + dt
                a(f"s_waitcnt lgkmcnt({min(29, f + 4) - f})")
            for mi in range(4):
                mfma(n, dt, mi)
                if mi == 0 and n in lds_steps and (n - 2) * 5 + dt + 5 < 30:
                    a(lds_w((n - 2) * 5 + dt + 5))
                if dt == 4:
                    free.append(hreg[n, mi])
                if mi % 2 == 1:
                    try_issue()
            if n not in lds_steps:
                free.append(wreg[n, dt])
        while (min(n + 2, NS - 1), 3) not in hreg:
            assert try_issue(True)
        if loader and n == o.mstep:
            a("s_barrier")
        if not loader and not needs and not E and len(free) >= 6:
            eloads()
    assert not needs and (loader or E)
    wait_step(NS - 2)
    for mi in range(4):
        mfma(NS - 2, 0, mi)
    wait_step(NS - 1)
    for dt in range(5):
        if dt < 4:
            for mi in range(4):
                mfma(NS - 2, dt + 1, mi)
        for mi in range(4):
            mfma(NS - 1, dt, mi)
        if dt >= 1:
            if dt == 4:
                a("s_nop 3")
            put(dt - 1)
    stamp(a, o, 45)
    a("s_nop 3")
    put(4)
    if loader:
        a("s_waitcnt lgkmcnt(0)")
        stamp(a, o, 46)
        a("s_barrier")
    else:
        vm.wait("e")
        T = free.pop(0)
        for dt in range(5):
            b = E["x"][dt]
            a(f"v_lshlrev_b32 v{T}, 16, v{b+2}")
            a(f"v_and_b32 v{T+1}, 0xffff0000, v{b+2}")
            a(f"v_lshlrev_b32 v{T+2}, 16, v{b+3}")
            a(f"v_and_b32 v{T+3}, 0xffff0000, v{b+3}")
            a(f"v_lshlrev_b32 v{b+2}, 16, v{b+1}")
            a(f"v_and_b32 v{b+3}, 0xffff0000, v{b+1}")
            a(f"v_and_b32 v{b+1}, 0xffff0000, v{b}")
            a(f"v_lshlrev_b32 v{b}, 16, v{b}")
            for p in range(2):
                a(f"v_pk_mul_f32 {vr(b+2*p, 2)}, {vr(b+2*p, 2)}, {vr(T+2*p, 2)}")
                a(f"v_cvt_pk_bf16_f32 v{b+2*p+1}, v{b+2*p}, v{b+2*p+1}")
                a(f"v_lshlrev_b32 v{b+2*p}, 16, v{b+2*p+1}")
                a(f"v_and_b32 v{b+2*p+1}, 0xffff0000, v{b+2*p+1}")
        G = E["g"]
        a("s_mov_b32 s72, 0")
        a.label("L2C_gpoll")
        a(f"v_cmp_ne_u32 vcc, s64, v{G+1}")
        a("s_cmp_eq_u64 vcc, 0")
        a("s_cbranch_scc1 L2C_ggot")
        a(f"buffer_load_dwordx2 {vr(G, 2)}, v{G+2}, s[60:63], s81 offen sc1")
        a("s_waitcnt vmcnt(0)")
        a("s_add_u32 s72, s72, 1")
        a(f"s_cmp_lt_u32 s72, {SPIN_MAX:#x}")
        a("s_cbranch_scc1 L2C_gpoll")
        a.label("L2C_ggot")
        a(f"v_sub_f32 v{G+1}, 1.0, v{G}")
        a(f"v_cvt_pk_bf16_f32 v{G+1}, v{G+1}, v{G+1}")
        a(f"v_lshlrev_b32 v{G+1}, 16, v{G+1}")
        a("s_mul_i32 s68, s90, 5120")
        a(f"v_add_u32 v3, s68, v{VO}")
        a(f"v_add_u32 v4, {2*CREG}, v3")
        a(f"v_add_u32 v6, {4*CREG}, v3")
        a("s_lshr_b32 s69, s90, 1")
        a(f"s_mul_i32 s69, s69, {CREG - 10240}")
        a("s_add_u32 s69, s69, 20480")
        a("v_add_u32 v5, s69, v3")
        a(f"v_add_u32 v7, {2*CREG}, v5")
        a("s_waitcnt lgkmcnt(0)")
        a("s_barrier")
        RD = ACC
        SUM = [free.pop(0) for _ in range(5)]
        src = {0: (3, 0), 1: (3, CREG), 2: (4, 0), 3: (4, CREG), 4: (5, 0), 5: (7, 0), 6: (6, 0), 7: (6, 20480)}
        def rd(dt, lo):
            for s in range(4):
                v, off = src[lo + s]
                a(f"ds_read_b128 {vr(RD + dt*16 + s*4, 4)}, v{v} offset:{off + dt*1024}")
        def sweep(lo, fn):
            for dt in range(3):
                rd(dt, lo)
            for dt in range(5):
                a(f"s_waitcnt lgkmcnt({4*min(2, 4-dt)})")
                fn(dt)
                if dt + 3 < 5:
                    rd(dt + 3, lo)
        def csum(dt):
            for p in range(2):
                r = lambda s: vr(RD + dt*16 + 4*s + 2*p, 2)
                a(f"v_pk_add_f32 {r(0)}, {r(0)}, {r(1)}")
                a(f"v_pk_add_f32 {r(2)}, {r(2)}, {r(3)}")
                a(f"v_pk_add_f32 {vr(SUM[dt]+2*p, 2)}, {r(0)}, {r(2)}")
        sweep(0, csum)
        stamp(a, o, 46)
        a("s_barrier")
        stamp(a, o, 47)
        def fin(dt):
            sk = E["x"][dt]
            for p in range(2):
                r = lambda s: vr(RD + dt*16 + 4*s + 2*p, 2)
                B = SUM[dt] + 2*p
                a(f"v_pk_add_f32 {vr(B, 2)}, {vr(B, 2)}, {r(3)}")
                a(f"v_pk_add_f32 {r(0)}, {r(0)}, {r(1)}")
                a(f"v_pk_add_f32 {r(2)}, {r(2)}, {vr(sk+2*p, 2)}")
                a(f"v_cvt_pk_bf16_f32 v{B+1}, v{B}, v{B+1}")
                a(f"v_pk_add_f32 {r(0)}, {r(0)}, {r(2)}")
                a(f"v_lshlrev_b32 v{B}, 16, v{B+1}")
                a(f"v_and_b32 v{B+1}, 0xffff0000, v{B+1}")
                a(f"v_pk_mul_f32 {vr(B, 2)}, {vr(G, 2)}, {vr(B, 2)} op_sel:[1,0] op_sel_hi:[1,1]")
                a(f"v_cvt_pk_bf16_f32 v{B+1}, v{B}, v{B+1}")
                a(f"v_lshlrev_b32 v{B}, 16, v{B+1}")
                a(f"v_and_b32 v{B+1}, 0xffff0000, v{B+1}")
                a(f"v_pk_fma_f32 {vr(sk+2*p, 2)}, {vr(G, 2)}, {r(0)}, {vr(B, 2)} op_sel_hi:[0,1,1]")
            a(f"buffer_store_dwordx4 {vr(sk, 4)}, v2, s[84:87], s71 offen offset:{dt*64} {o.out_store}")
        sweep(4, fin)
    stamp(a, o, 48)
    if o.stamps == 3:
        for n in range(NS):
            a(f"v_writelane_b32 v254, s{SP[n]}, {8+n}")
        for n in range(22, 32):
            a(f"v_writelane_b32 v254, 0, {n}")
    stamp_flush(a, o)
    a("s_endpgm")

import subprocess, re, os
VOP_WIDEN = re.compile(r"^\s+(v_(?:exp|rcp|mov|lshlrev|and|add|sub|mul|xor|or|cvt|sin|cos|rndne|lshrrev|min|max|subrev)_\w+?)(_e32)?\s")
def sizes_of(lines, o):
    src = wrap("\n".join(lines) + "\n", o)
    open("_al.s", "w").write(src)
    subprocess.run(["clang", "-x", "assembler", "-target", "amdgcn-amd-amdhsa", "-mcpu=gfx950", "-c", "_al.s", "-o", "_al.o"], check=True)
    d = subprocess.run(["llvm-objdump", "-d", "--mcpu=gfx950", "_al.o"], capture_output=True, text=True).stdout
    return [len(m.group(1).split()) * 4 for m in re.finditer(r"// [0-9A-F]{12}: ([0-9A-F ]+)", d)]
def is_ins(l):
    t = l.strip()
    return l.startswith("    ") and t and not t.startswith(";") and not t.startswith(".")
def finalize(a, o):
    out = []; cur = None; cnt = 0; nh = 0
    for l in a.l:
        if isinstance(l, tuple):
            if cur and o.hops:
                out.append(f"Lhop_{cur}_{nh}:")
                out.append(f"    s_cbranch_execz Lhopret_{cur}")
            cur = l[1]; cnt = 10**9; nh = 0
            continue
        for x in l.split("\n"):
            if cur and o.hops and is_ins(x):
                if cnt >= o.hops and not (out and re.match(r"\s+s_(add_u32|mov_b32) m0", out[-1])):
                    out.append(f"Lhop_{cur}_{nh}:")
                    out.append(f"    s_cbranch_execz Lhop_{cur}_{nh+1}")
                    nh += 1; cnt = 0
                cnt += 1
            out.append(x)
    if not o.align:
        return out
    sz = sizes_of(out, o)
    idx = [i for i, l in enumerate(out) if is_ins(l)]
    assert len(idx) == len(sz), (len(idx), len(sz))
    off = 0; ins_before = {}; last_widen = None
    k = 0
    while k < len(idx):
        if sz[k] % 8 == 0:
            run = 0
            while k + run < len(idx) and sz[k + run] % 8 == 0:
                run += 1
            if off % 8 and run >= o.align:
                if last_widen is not None:
                    m = VOP_WIDEN.match(out[idx[last_widen]])
                    out[idx[last_widen]] = out[idx[last_widen]].replace(m.group(1) + (m.group(2) or ""), m.group(1) + "_e64", 1)
                else:
                    ins_before[idx[k]] = "    s_nop 0"
                off += 4
            off += sum(sz[k:k + run]); k += run
            if run >= 2:
                last_widen = None
            continue
        if sz[k] == 4 and VOP_WIDEN.match(out[idx[k]]) and "dpp" not in out[idx[k]]:
            last_widen = k
        off += sz[k]; k += 1
    res = []
    for i, l in enumerate(out):
        if i in ins_before:
            res.append(ins_before[i])
        res.append(l)
    return res

def wrap(body, o):
    ref = open(f"cdna_kernels/{NAME}.s.ref").read().splitlines()
    head = [l for l in ref if l.startswith(";") and "@launch" not in l]
    out = "\n".join(head) + "\n"
    out += f"; @launch grid=(256,1,1) block=(512,1,1) lds={LDS_BYTES}\n"
    out += f'.amdgcn_target "amdgcn-amd-amdhsa--gfx950"\n.text\n.globl {NAME}_kernel\n'
    out += body
    out += f""".section .rodata,"a"
.p2align 6
.amdhsa_kernel {NAME}_kernel
  .amdhsa_next_free_vgpr 256
  .amdhsa_next_free_sgpr 102
  .amdhsa_accum_offset 256
  .amdhsa_group_segment_fixed_size 0
  .amdhsa_kernarg_size 136
  .amdhsa_user_sgpr_count 2
  .amdhsa_user_sgpr_kernarg_segment_ptr 1
  .amdhsa_system_sgpr_workgroup_id_x 1
.end_amdhsa_kernel
"""
    return out

def generate(o):
    return wrap("\n".join(finalize(kernel(o), o)) + "\n", o)

if __name__ == "__main__":
    o = Opt()
    path = f"cdna_kernels/{NAME}.s"
    for arg in sys.argv[1:]:
        k, v = arg.split("=", 1)
        if k == "out":
            path = v
        else:
            cur = getattr(o, k)
            setattr(o, k, type(cur)(int(v)) if isinstance(cur, (bool, int)) else tuple(int(x) for x in v.split(",")) if isinstance(cur, tuple) else v)
    open(path, "w").write(generate(o))
    print("wrote", path)
```

```python
import sys

NAME = "gated_mix__ssm_conv_s5__glu_gated_swiglu__prompt"

class Opt:
    stamps = 0
    map1 = "2x4"
    map2 = "4x2"
    out_store = ""
    poll_sleep = 4
    warm = False
    vwarm = 0
    lwarm = (0,)
    hprio = 2
    look_l = 3
    look_c = 9
    mstep = 11
    ltog = 0
    peel = 0
    cwait = 1
    tlb = 0
    look = 8
    lfirst = 1
    rot2 = 0
    rot = 10
    rotm = 0
    rots = 1
    rotq = 0
    rotx = 6
    barpos = 2
    b9_back = 2
    epi_pk = 0
    fill_max = 12
    hops = 0
    align = 3
    hopsched = (3, 4, 5)
    ab = 1
    lead = 3
    cwarm = 2
    codepf = 1
    dspan = 0
    hst = "sc1"
    hld = "sc1"
    throttle = 0
    early_w = False
    cuts_l = (16, 34)
    cuts_h = (16, 34)
    hsched = (0, 1, 1, 3)
    thr_e = 6
    thr_t = 4
    pre_y = 0
    thr_y = 2
    lprio = 0
    agg_sleep = 2
    use_y = 0
    ssm_early = 1
    cprio = 3
    cprio2 = 0

HP_OFF  = 0
HP_SIZE = 94 * 128 * 1024
W2_OFF  = 0xC00000
W2_SIZE = 94 * 40 * 1024
HK = 4096
HT = 94 * HK
WK = 5120
WT = 94 * WK
G_OFF   = 0x1000000
G_SIZE  = 2048 * 8
AGG_OFF = 0x1010000
AGG_SIZE = 80 * 1024
FH_OFF  = 0x1040000
FH_SIZE = 32 * 8192
FW_OFF  = 0x1080000
FW_SIZE = 256 * 128
ST_OFF  = 0x1100000
ST_SIZE = 0x100000

LOG2E = 0x3fb8aa3b
NLOG2E = 0xbfb8aa3b
SPIN_MAX = 0x40000

class Asm:
    def __init__(self):
        self.l = []
    def __call__(self, s):
        self.l.append("    " + s)
    def label(self, s):
        self.l.append(s + ":")
    def c(self, s):
        self.l.append("    ; " + s)
    def raw(self, s):
        self.l.append(s)
    def text(self):
        return "\n".join(self.l) + "\n"
    def seg(self, name):
        self.l.append(("SEG", name))
    _uid = 0
    def uid(self):
        self._uid += 1
        return self._uid

class VM:
    def __init__(self, a):
        self.a = a; self.q = []
    def op(self, ins, tag=None):
        self.a(ins); self.q.append(tag)
    def wait(self, *tags):
        last = max(i for i, t in enumerate(self.q) if t in tags)
        n = len(self.q) - 1 - last
        assert n <= 63, n
        self.a(f"s_waitcnt vmcnt({n})")
    def drain(self):
        self.a("s_waitcnt vmcnt(0)"); self.q = []

def vr(b, n=1, p="v"):
    return f"{p}{b}" if n == 1 else f"{p}[{b}:{b+n-1}]"

def srd(a, d, base, size, off=0):
    if off:
        a(f"s_add_u32 s{d}, s{base}, {off:#x}")
        a(f"s_addc_u32 s{d+1}, s{base+1}, 0")
    else:
        a(f"s_mov_b32 s{d}, s{base}")
        a(f"s_mov_b32 s{d+1}, s{base+1}")
    a(f"s_mov_b32 s{d+2}, {size:#x}")
    a(f"s_mov_b32 s{d+3}, 0x20000")

P_X, P_LRE, P_LIM, P_BRE, P_BIM, P_CRE, P_CIM, P_LDT = 4, 6, 8, 10, 12, 14, 16, 18
P_DSK, P_BX, P_W1, P_W3, P_W2, P_GW, P_OUT, P_DBG, P_WS = 20, 22, 24, 26, 28, 30, 32, 34, 36

def stamp(a, o, slot):
    if not o.stamps or (8 <= slot < 32 and o.stamps != 2):
        return
    a("s_memrealtime s[92:93]")
    a("s_waitcnt lgkmcnt(0)")
    a(f"v_writelane_b32 v254, s92, {slot}")
def stamp_dyn(a, o, slot, sreg, mul):
    if not o.stamps:
        return
    a("s_memrealtime s[92:93]")
    a("s_waitcnt lgkmcnt(0)")
    a(f"s_mul_i32 s93, s{sreg}, {mul}")
    a(f"s_add_u32 s93, s93, {slot}")
    a("s_mov_b32 m0, s93")
    a("v_writelane_b32 v254, s92, m0")
def stamp_clk(a, o, slot):
    if not o.stamps:
        return
    a("s_memtime s[92:93]")
    a("s_waitcnt lgkmcnt(0)")
    a(f"v_writelane_b32 v254, s92, {slot}")
def dmark(a, o, slot, inv=False, tv=252):
    if not o.dspan:
        return
    srd(a, 96, P_DBG, 256)
    a("s_memrealtime s[92:93]")
    a("s_waitcnt lgkmcnt(0)")
    if inv:
        a("s_not_b32 s92, s92")
    a("v_mov_b32 v254, s92")
    a("v_mov_b32 v255, 0")
    a("s_mov_b64 exec, 1")
    a(f"buffer_atomic_umax v254, v255, s[96:99], 0 offen offset:{slot*4} sc1")
    a("s_mov_b64 exec, -1")

def stamp_setup(a, o):
    if not o.stamps:
        return
    a("v_mov_b32 v254, 0")
    a("s_lshl_b32 s91, s2, 3")
    a("s_add_u32 s91, s91, s38")
    a("s_lshl_b32 s91, s91, 8")
    a("v_lshlrev_b32 v255, 2, v0")
    stamp_clk(a, o, 62)
def stamp_flush(a, o):
    if not o.stamps:
        return
    a("s_waitcnt vmcnt(0)")
    stamp(a, o, 61)
    stamp_clk(a, o, 63)
    srd(a, 96, P_WS, ST_SIZE, ST_OFF)
    a("buffer_store_dword v254, v255, s[96:99], s91 offen")

LDS_BYTES = 163840
F_UP = 10368
XS = 32768
WB = 3 * XS
F_WS = 20736
S_WS = 16384
S_DUMMY = WB + 3 * S_WS
NONCE_LDS = 163832
CREG = 30720
S_TR = 122880
S_AGG = 159744
SFLAG_LDS = S_TR + 128
slot_of = lambda stage: (stage + 2) % 3

def kernel(o):
    a = Asm()
    a.raw(".p2align 8")
    a.raw(f".type {NAME}_kernel,@function")
    a.label(f"{NAME}_kernel")
    a("s_cmp_ge_u32 s2, 256")
    a("s_cbranch_scc1 L_end")
    a("s_load_dwordx16 s[4:19], s[0:1], 0")
    a("s_load_dwordx16 s[20:35], s[0:1], 64")
    a("s_load_dwordx2 s[36:37], s[0:1], 128")
    a("v_lshrrev_b32 v1, 6, v0")
    a("v_and_b32 v0, 63, v0")
    a("v_readfirstlane_b32 s38, v1")
    a("s_and_b32 s42, s2, 7")
    a("s_lshr_b32 s43, s2, 3")
    if o.map1 == "2x4":
        a("s_and_b32 s39, s42, 1")
        a("s_lshl_b32 s39, s39, 2")
        a("s_and_b32 s44, s43, 3")
        a("s_add_u32 s39, s39, s44")
        a("s_lshr_b32 s48, s42, 1")
        a("s_lshr_b32 s49, s43, 2")
        a("s_lshr_b32 s44, s48, 1")
        a("s_sub_u32 s44, 6, s44")
        a("s_max_u32 s45, s48, 2")
        a("s_sub_u32 s45, s45, 2")
        a("s_mul_i32 s46, s48, 6")
        a("s_sub_u32 s46, s46, s45")
        a("s_add_u32 s46, s46, s49")
        a("s_lshl_b32 s47, s48, 1")
        a("s_add_u32 s47, s47, s45")
        a("s_add_u32 s47, s47, s49")
        a("s_sub_u32 s47, s47, s44")
        a("s_cmp_ge_u32 s49, s44")
        a("s_cselect_b32 s40, s47, s46")
        a("s_cselect_b32 s41, 1, 0")
    elif o.map1 == "8x1":
        a("s_mov_b32 s39, s42")
        a("s_sub_u32 s47, s43, 22")
        a("s_cmp_ge_u32 s43, 22")
        a("s_cselect_b32 s40, s47, s43")
        a("s_cselect_b32 s41, 1, 0")
    if o.map2 == "4x2":
        a("s_lshr_b32 s44, s42, 1")
        a("s_lshl_b32 s44, s44, 3")
        a("s_and_b32 s45, s43, 7")
        a("s_and_b32 s46, s42, 1")
        a("s_lshl_b32 s46, s46, 2")
        a("s_lshr_b32 s47, s43, 3")
        a("s_add_u32 s42, s44, s45")
        a("s_add_u32 s43, s46, s47")
    elif o.map2 == "8x1":
        a("s_lshl_b32 s42, s42, 2")
        a("s_and_b32 s44, s43, 3")
        a("s_add_u32 s42, s42, s44")
        a("s_lshr_b32 s43, s43, 2")
    a("s_and_b32 s90, s38, 3")
    a("s_add_u32 s101, s42, s43")
    a(f"s_and_b32 s101, s101, {o.rot2}")
    if o.rot:
        a("s_mul_i32 s44, s41, 22")
        a("s_add_u32 s44, s44, s40")
        a(f"s_mul_i32 s44, s44, {o.rots}")
        if o.rotx:
            a("s_and_b32 s44, s2, 7")
            a(f"s_mul_i32 s44, s44, {o.rotx}")
        a(f"s_mul_i32 s45, s41, {o.rotq}")
        a("s_add_u32 s44, s44, s45")
        a(f"s_mul_i32 s45, s39, {o.rotm}")
        a("s_add_u32 s44, s44, s45")
        a(f"s_mul_i32 s45, s44, {65536 // o.rot + 1}")
        a("s_lshr_b32 s45, s45, 16")
        a(f"s_mul_i32 s45, s45, {o.rot}")
        a("s_sub_u32 s44, s44, s45")
        a(f"s_mul_i32 s3, s44, {10 // o.rot}")
    else:
        a("s_mov_b32 s3, 0")
    stamp_setup(a, o)
    stamp(a, o, 0)
    def compute_part():
        a("s_waitcnt lgkmcnt(0)")
        a("s_cmp_eq_u32 s41, 1")
        a("s_cbranch_scc1 L_ssm")
        p1_ffn(a, o)
        a.seg("pc")
        a.label("L_p2c")
        p2(a, o, False)
        a.seg(None)
        a.label("L_ssm")
        p1_ssm(a, o)
        a.seg(None)
    def loader_part():
        a.label("L_loader")
        p1_loader(a, o)
        p2(a, o, True)
        a.seg(None)
    if o.lfirst:
        a("s_cmp_lt_u32 s38, 4")
        a("s_cbranch_scc1 L_compute")
        loader_part()
        a.label("L_compute")
        compute_part()
    else:
        a("s_cmp_ge_u32 s38, 4")
        a("s_cbranch_scc1 L_loader")
        compute_part()
        loader_part()
    a.label("L_end")
    a("s_endpgm")
    a.label("L_codeend")
    return a

def warm_setup(a, o):
    if not o.warm:
        return
    a("s_cmp_ge_u32 s90, 2")
    a(f"s_cbranch_scc1 Lw_xb{a.uid()}")
    u = a._uid
    a("s_and_b32 s44, s2, 1")
    a("s_cmp_eq_u32 s44, 0")
    a(f"s_cselect_b32 s94, s{P_W1}, s{P_W3}")
    a(f"s_cselect_b32 s95, s{P_W1+1}, s{P_W3+1}")
    a("s_lshr_b32 s44, s2, 1")
    a("s_mul_i32 s44, s44, 1728")
    a(f"s_mul_i32 s45, s90, {13*64}")
    a("s_add_u32 s44, s44, s45")
    a(f"s_mov_b32 s88, {64*3456}")
    a(f"s_branch Lw_set{u}")
    a.label(f"Lw_xb{u}")
    a("s_cmp_lt_u32 s2, 128")
    a(f"s_cselect_b32 s94, s{P_BRE}, s{P_BIM}")
    a(f"s_cselect_b32 s95, s{P_BRE+1}, s{P_BIM+1}")
    a("s_and_b32 s44, s2, 127")
    a(f"s_mul_i32 s44, s44, {5*1280}")
    a(f"s_mul_i32 s45, s2, {8*1280}")
    a("s_cmp_eq_u32 s90, 2")
    a(f"s_cselect_b32 s94, s{P_X}, s94")
    a(f"s_cselect_b32 s95, s{P_X+1}, s95")
    a("s_cselect_b32 s44, s45, s44")
    a("s_movk_i32 s88, 128")
    a.label(f"Lw_set{u}")
    a("s_add_u32 s94, s94, s44")
    a("s_addc_u32 s95, s95, 0")

def warm_skip(a, o, n):
    if not o.warm:
        return
    a(f"s_mul_i32 s44, s88, {n}")
    a("s_add_u32 s94, s94, s44")
    a("s_addc_u32 s95, s95, 0")

def warm_ops(o, kind):
    if not o.warm:
        return []
    if kind == "w":
        offs = [i * 64 for i in range(14)]
    else:
        offs = [r * 1280 + h * 64 for r in range(8 if kind == "x" else 5) for h in range(2)]
    return [f"s_load_dword s89, s[94:95], {x}" for x in offs] + ["s_add_u32 s94, s94, s88", "s_addc_u32 s95, s95, 0"]

def warm_stage_any(a, o, nst):
    if not o.warm:
        return
    u = a.uid()
    a("s_cmp_ge_u32 s90, 2")
    a(f"s_cbranch_scc1 Lv_xb{u}")
    for _ in range(nst):
        for i in warm_ops(o, "w"): a(i)
    a(f"s_branch Lv_e{u}")
    a.label(f"Lv_xb{u}")
    warm_stage_xb(a, o, nst)
    a.label(f"Lv_e{u}")

def warm_stage_xb(a, o, nst):
    if not o.warm:
        return
    for _ in range(nst):
        u = a.uid()
        ops = warm_ops(o, "x")
        for i in ops[:10]: a(i)
        a("s_cmp_eq_u32 s90, 3")
        a(f"s_cbranch_scc1 Lv_b{u}")
        for i in ops[10:16]: a(i)
        a.label(f"Lv_b{u}")
        for i in ops[16:]: a(i)

def loop_stamp_flush(a, o):
    if o.stamps in (1, 2):
        a("s_add_u32 m0, s52, 8")
        a("v_writelane_b32 v254, s94, m0")
        a("s_add_u32 m0, s52, 20")
        a("v_writelane_b32 v254, s92, m0")

def ring_advance(a, o, ws, xregs, wregs):
    a("s_add_u32 s52, s52, 1")
    a("s_add_u32 s53, s53, 1")
    a("s_cmp_eq_u32 s53, 3")
    a(f"s_cselect_b32 s54, {-2*XS & 0xffffffff:#x}, s55")
    a(f"s_cselect_b32 s56, {-2*ws & 0xffffffff:#x}, s57")
    a("s_cselect_b32 s53, 0, s53")
    for v in xregs:
        a(f"v_add_u32 v{v}, s54, v{v}")
    for v in wregs:
        a(f"v_add_u32 v{v}, s56, v{v}")
    if o.stamps:
        a("s_memrealtime s[94:95]")
    a("s_barrier")
    if o.stamps:
        a("s_memrealtime s[92:93]")

def fw_setup(a):
    srd(a, 60, P_WS, FW_SIZE, FW_OFF)
    a("s_mul_i32 s44, s43, 80")
    a("s_add_u32 s45, s44, 79")
    a("s_lshr_b32 s44, s44, 7")
    a("s_lshr_b32 s45, s45, 7")
    a("s_mul_i32 s44, s44, 47")
    a("s_mul_i32 s45, s45, 47")
    a("s_add_u32 s45, s45, 46")
    a("v_add_u32 v26, s44, v0")
    a("v_add_u32 v27, 64, v26")
    a("v_min_u32 v26, s45, v26")
    a("v_min_u32 v27, s45, v27")
    a("v_lshlrev_b32 v26, 7, v26")
    a("v_lshlrev_b32 v27, 7, v27")
def fw_load(a):
    a("buffer_load_dword v24, v26, s[60:63], 0 offen sc1")
    a("buffer_load_dword v25, v27, s[60:63], 0 offen sc1")
def fw_test(a):
    a("s_waitcnt vmcnt(0)")
    a("v_xor_b32 v24, s64, v24")
    a("v_xor_b32 v25, s64, v25")
    a("v_or_b32 v24, v24, v25")
    a("v_cmp_ne_u32 vcc, 0, v24")
    a("s_cmp_eq_u64 vcc, 0")
def fw_check(a):
    u = a.uid()
    a("s_mov_b32 s72, 0")
    a.label(f"Lfw_poll{u}")
    fw_load(a)
    fw_test(a)
    a(f"s_cbranch_scc1 Lfw_got{u}")
    a("s_sleep 12")
    a("s_add_u32 s72, s72, 1")
    a(f"s_cmp_lt_u32 s72, {SPIN_MAX:#x}")
    a(f"s_cbranch_scc1 Lfw_poll{u}")
    a.label(f"Lfw_got{u}")

C_WR = 16; C_ACC = 96; C_H = 176; C_WL = 224
C_RSTEPS = (0, 1, 8, 9)
def c_wsetup(a):
    srd(a, 52, P_WS, W2_SIZE, W2_OFF)
    a("s_mul_i32 s74, s90, 10")
    a("s_add_u32 s74, s74, 54")
    a(f"s_mul_i32 s76, s74, {WK}")
    a(f"s_mul_i32 s77, s43, {WT}")
    a("s_add_u32 s76, s76, s77")
    a(f"s_mul_i32 s77, s101, {5*WK}")
    a("s_add_u32 s76, s76, s77")
    a(f"s_mul_i32 s75, s101, {-10*WK}")
    a(f"s_add_u32 s75, s75, {7*WK}")
    a("s_add_u32 s77, s76, 4096")
    a("v_lshlrev_b32 v12, 4, v0")
def c_wload(a, k):
    for i in range(5):
        a(f"buffer_load_dwordx4 {vr(C_WR + k*20 + i*4, 4)}, v12, s[52:55], s{76 + (i >> 2)} offen offset:{(i & 3)*1024} sc1")
    if k < 3:
        d = (C_RSTEPS[k+1] - C_RSTEPS[k]) * WK if k != 1 else "s75"
        a(f"s_add_u32 s76, s76, {d}")
        a(f"s_add_u32 s77, s77, {d}")

class Lds:
    def __init__(self, a):
        self.a = a; self.q = []; self.done = 0
    def op(self, ins, tag):
        self.a(ins); self.q.append(tag)
    def pending(self):
        return len(self.q) - self.done
    def wait(self, *tags):
        last = max(i for i, t in enumerate(self.q) if t in tags)
        if last + 1 > self.done:
            n = len(self.q) - 1 - last
            assert n <= 15
            self.a(f"s_waitcnt lgkmcnt({n})")
            self.done = last + 1

def k_loop(a, o, label, reads, needs_of, mfma_of, nm, adv, nonce, cnt):
    a.label(label)
    lds = Lds(a)
    lds.q = [(0, t) for _, t in reads(0, 0)]
    for sub in range(4):
        buf = sub & 1
        nxt = list(reads(buf ^ 1, (sub + 1) & 3))
        if sub == 0 and (o.stamps in (1, 2)):
            a("s_waitcnt lgkmcnt(0)")
            loop_stamp_flush(a, o)
        extra = list(adv) if sub == 3 else []
        go = sub != 3
        for n in range(nm):
            if o.cwait:
                lds.wait(*[(sub, t) for t in needs_of(n)])
            elif n == 0:
                a("s_waitcnt lgkmcnt(0)"); lds.done = len(lds.q)
            a(mfma_of(buf, n))
            if sub == 3 and not go:
                k = -(-len(extra) // max(1, o.barpos + 1 - n))
                for _ in range(min(k, len(extra))):
                    a(extra.pop(0))
                if n == o.barpos:
                    if lds.pending():
                        a("s_waitcnt lgkmcnt(0)"); lds.done = len(lds.q)
                    if (o.stamps in (1, 2)):
                        a("s_memrealtime s[94:95]")
                    a("s_barrier")
                    if (o.stamps in (1, 2)):
                        a("s_memrealtime s[92:93]")
                    go = True
            if go:
                for _ in range(2):
                    if nxt and lds.pending() < 13:
                        ins, t = nxt.pop(0)
                        lds.op(ins, (sub + 1, t))
            if sub == 0 and n == nm - 1:
                lds.op(nonce, "n")
        assert not nxt, (label, sub, len(nxt))
    a(f"s_cmp_lt_u32 s52, {cnt}")
    a(f"s_cbranch_scc1 {label}")

def ring_ops(ws, xregs, wregs):
    return ["s_add_u32 s52, s52, 1", "s_add_u32 s53, s53, 1",
            f"s_cmp_eq_u32 s53, 3\n    s_cselect_b32 s54, {-2*XS & 0xffffffff:#x}, s55\n    s_cselect_b32 s56, {-2*ws & 0xffffffff:#x}, s57\n    s_cselect_b32 s53, 0, s53"] + \
           [f"v_add_u32 v{v}, s54, v{v}" for v in xregs] + [f"v_add_u32 v{v}, s56, v{v}" for v in wregs]

def ffn_peel(a, o, acc, fa, fb, VX, VW, VN):
    a.seg("fe")
    lds = Lds(a)
    reg = {}
    for mi in range(2):
        reg["x", 0, mi] = fb(0, mi); lds.q.append(("x", 0, mi))
    for j in range(5):
        reg["w", j, 0] = fa(0, j); lds.q += [("w", j, 0)] * 2
    if o.stamps:
        a("s_waitcnt lgkmcnt(0)")
        loop_stamp_flush(a, o)
    free = [fb(1, 0), fb(1, 1)] + [fa(1, j) for j in range(5)] + [232 + 4 * i for i in range(5)]
    mf = [(j, 0) for j in range(5)] + [(j, kk) for kk in (1, 2, 3) for j in (0, 1)]
    n1 = len(mf)
    mf += [(j, kk) for j in (0, 1) for kk in range(4, 8)] + [(j, kk) for j in (2, 3, 4) for kk in range(1, 8)]
    needs = []
    for j, kk in mf:
        for t in (("x", kk, 0), ("x", kk, 1), ("w", j, kk)):
            if t not in reg and t not in needs:
                needs.append(t)
    last_use = {}
    for n, (j, kk) in enumerate(mf):
        last_use["x", kk, 0] = last_use["x", kk, 1] = last_use["w", j, kk] = n
    passed9 = [False]
    def try_read():
        if not needs or not free or lds.pending() > 11:
            return False
        t = needs[0]
        kk = t[1] if t[0] == "x" else t[2]
        if kk >= 4 and not passed9[0]:
            return False
        needs.pop(0)
        r = reg[t] = free.pop(0)
        if t[0] == "x":
            lds.op(f"ds_read_b128 {vr(r, 4)}, v{VX + (kk & 3)} offset:{(kk >> 2)*XS + t[2]*4096}", t)
        else:
            for half in range(2):
                lds.op(f"ds_read_b64_tr_b16 {vr(r + 2*half, 2)}, v{VW} offset:{(kk >> 2)*F_WS + (kk & 3)*2560 + half*640 + t[1]*32}", t)
        return True
    pre = [f"v_readfirstlane_b32 s64, v{VN}", f"s_mov_b32 s56, {NLOG2E:#x}", f"s_mov_b32 s57, {NLOG2E:#x}", "s_mul_i32 s58, s40, 5",
           "s_lshl_b32 s59, s39, 2", "s_add_u32 s59, s59, s38", f"s_mul_i32 s59, s59, {HT}", f"s_add_u32 s59, s59, {40*HK}"]
    for j in range(5):
        pre += [f"s_add_u32 s60, s58, {j}", "s_lshr_b32 s61, s60, 1", "s_lshl_b32 s61, s61, 12", "s_and_b32 s60, s60, 1",
                "s_lshl_b32 s60, s60, 9", "s_add_u32 s61, s61, s60", f"s_add_u32 s{68+j}, s61, s59"]
    pre += ["s_cmp_eq_u32 s40, 21\n    s_cselect_b32 s71, 0x40000000, s71\n    s_cselect_b32 s72, 0x40000000, s72"]
    def epi(j, pk):
        r = []
        for mi in range(2):
            g = acc(j, mi); u = g + 8
            if pk:
                r += [f"v_pk_mul_f32 {vr(u+2*p, 2)}, {vr(g+2*p, 2)}, {vr(u+2*p, 2)}" for p in range(4)]
                r += [f"v_pk_mul_f32 {vr(g+2*p, 2)}, {vr(g+2*p, 2)}, s[56:57]" for p in range(4)]
            else:
                r += [f"v_mul_f32 v{u+p}, v{g+p}, v{u+p}" for p in range(8)]
                r += [f"v_mul_f32 v{g+p}, s56, v{g+p}" for p in range(8)]
            r += [f"v_exp_f32 v{g+p}, v{g+p}" for p in range(8)]
            if pk:
                r += ["s_nop 0"] + [f"v_pk_add_f32 {vr(g+2*p, 2)}, {vr(g+2*p, 2)}, 1.0 op_sel_hi:[1,0]" for p in range(4)]
            else:
                r += [f"v_add_f32 v{g+p}, 1.0, v{g+p}" for p in range(8)]
            r += [f"v_rcp_f32 v{g+p}, v{g+p}" for p in range(8)]
            if pk:
                r += ["s_nop 0"] + [f"v_pk_mul_f32 {vr(u+2*p, 2)}, {vr(u+2*p, 2)}, {vr(g+2*p, 2)}" for p in range(4)]
            else:
                r += [f"v_mul_f32 v{u+p}, v{u+p}, v{g+p}" for p in range(8)]
            r += [f"v_cvt_pk_bf16_f32 v{g+p}, v{u+2*p}, v{u+2*p+1}" for p in range(4)]
            r += [f"buffer_store_dwordx4 {vr(g, 4)}, v9, s[48:51], s{68+j} offen offset:{mi*2048} {o.hst}"]
        return r
    fill = list(pre)
    done_at = {j: max(n for n, (jj, kk) in enumerate(mf) if jj == j) for j in range(5)}
    pend = []
    barred10 = False
    for n, (j, kk) in enumerate(mf):
        for mi in range(2):
            while any(t not in reg for t in (("x", kk, mi), ("w", j, kk))):
                assert try_read(), (n, j, kk, free, needs[:3])
            lds.wait(("x", kk, mi), ("w", j, kk))
            a(f"v_mfma_f32_32x32x16_bf16 {vr(acc(j, mi), 16)}, {vr(reg['w', j, kk], 4)}, {vr(reg['x', kk, mi], 4)}, {vr(acc(j, mi), 16)}")
            if last_use["x", kk, mi] == n:
                free.append(reg["x", kk, mi])
            if mi == 1:
                free.append(reg["w", j, kk])
            if n == n1 - o.b9_back and mi == 0:
                lds.wait(*[("x", k2, m2) for k2 in range(4) for m2 in range(2)])
                a("s_barrier")
                passed9[0] = True
            try_read()
            if n < n1 + 4:
                try_read()
            if not needs and not barred10 and lds.pending() == 0:
                a("s_barrier")
                barred10 = True
            while pend and len(a.l) >= pend[0][0] and not fill:
                fill = epi(pend.pop(0)[1], o.epi_pk)
            nxt = min(d for d in done_at.values() if d >= n)
            left = (nxt - n) * 2 + (1 - mi) + 1
            k = min(-(-len(fill) // left), o.fill_max)
            for _ in range(min(k, len(fill))):
                a(fill.pop(0))
        if done_at[j] == n:
            pend.append((len(a.l) + 14, j))
        if n == n1:
            a(f"s_setprio {o.cprio}")
    assert barred10 and passed9[0]
    stamp(a, o, 2); stamp_clk(a, o, 59)
    for x in fill:
        a(x)
    c_wsetup(a)
    a("s_nop 7")
    for _, j in pend:
        for x in epi(j, True):
            a(x)

def p1_ffn(a, o):
    ACC = 16; FA = 176; FB = 216; VX = 4; VW = 8; VN = 10
    acc = lambda j, mi: ACC + (j * 2 + mi) * 16
    fa = lambda b, j: FA + b * 20 + j * 4
    fb = lambda b, mi: FB + b * 8 + mi * 4
    s0 = WB + slot_of(0) * F_WS
    a.c("FFN compute wave: D[f][m] = W^T X^T")
    a("v_and_b32 v1, 31, v0")
    a("v_lshrrev_b32 v2, 5, v0")
    a("v_bfe_u32 v3, v0, 1, 3")
    a("v_xor_b32 v3, v3, v2")
    a("v_lshlrev_b32 v3, 4, v3")
    a("v_lshl_add_u32 v3, v1, 7, v3")
    a("s_lshl_b32 s44, s38, 13")
    a(f"s_add_u32 s44, s44, {slot_of(0) * XS}")
    a(f"v_add_u32 v{VX}, s44, v3")
    for sub in range(1, 4):
        a(f"v_xor_b32 v{VX+sub}, {sub*32}, v{VX}")
    a("v_bfe_u32 v1, v0, 4, 1")
    a(f"v_mul_u32_u24 v1, {F_UP}, v1")
    a("v_lshlrev_b32 v2, 3, v2")
    a("v_bfe_u32 v3, v0, 2, 2")
    a("v_add_u32 v2, v2, v3")
    a("v_mul_u32_u24 v2, 160, v2")
    a("v_add_u32 v1, v1, v2")
    a("v_and_b32 v2, 1, v0")
    a("v_lshlrev_b32 v2, 4, v2")
    a("v_add_u32 v1, v1, v2")
    a("v_bfe_u32 v2, v0, 1, 1")
    a("v_lshlrev_b32 v2, 3, v2")
    a("v_add_u32 v1, v1, v2")
    a(f"v_add_u32 v{VW}, {s0}, v1")
    a(f"v_mov_b32 v{VN+1}, {NONCE_LDS}")
    for r in range(ACC, ACC + 160):
        a(f"v_mov_b32 v{r}, 0")
    warm_stage_any(a, o, 1)
    srd(a, 48, P_WS, HP_SIZE, HP_OFF)
    a("v_bfe_u32 v1, v0, 4, 1")
    a("v_lshlrev_b32 v1, 10, v1")
    a("v_lshrrev_b32 v2, 5, v0")
    a("v_lshlrev_b32 v2, 8, v2")
    a("v_and_b32 v3, 15, v0")
    a("v_lshlrev_b32 v3, 4, v3")
    a("v_add3_u32 v9, v1, v2, v3")
    a("s_mov_b32 s52, 0")
    a(f"s_mov_b32 s53, {slot_of(0)}")
    a(f"s_mov_b32 s55, {XS}")
    a(f"s_mov_b32 s57, {F_WS}")

    def reads(buf, sub):
        r = []
        for mi in range(2):
            r.append(f"ds_read_b128 {vr(fb(buf, mi), 4)}, v{VX+sub} offset:{mi*4096}")
        for j in range(5):
            for half in range(2):
                r.append(f"ds_read_b64_tr_b16 {vr(fa(buf, j)+2*half, 2)}, v{VW} offset:{sub*2560 + half*640 + j*32}")
        return r
    a("s_barrier")
    stamp_clk(a, o, 58); stamp(a, o, 1)
    if o.stamps:
        a("s_mov_b32 s94, s92")
    for r in reads(0, 0):
        a(r)
    tags = [("b", 0), ("b", 1)] + [("a", j) for j in range(5) for _ in range(2)]
    k_loop(a, o, "Lf_loop", lambda b, sb: list(zip(reads(b, sb), tags)), lambda n: [("a", n >> 1), ("b", n & 1)],
           lambda buf, n: f"v_mfma_f32_32x32x16_bf16 {vr(acc(n >> 1, n & 1), 16)}, {vr(fa(buf, n >> 1), 4)}, {vr(fb(buf, n & 1), 4)}, {vr(acc(n >> 1, n & 1), 16)}",
           10, ring_ops(F_WS, range(VX, VX + 4), [VW]), f"ds_read_b32 v{VN}, v{VN+1}", 8 if o.peel else 10)
    if o.peel:
        ffn_peel(a, o, acc, fa, fb, VX, VW, VN)
    else:
        a.seg("fe")
        a("s_waitcnt lgkmcnt(0)")
        loop_stamp_flush(a, o)
        stamp(a, o, 2); stamp_clk(a, o, 59)
        a(f"s_setprio {o.cprio}")
        a(f"v_readfirstlane_b32 s64, v{VN}")
        a(f"s_mov_b32 s56, {NLOG2E:#x}")
        a(f"s_mov_b32 s57, {NLOG2E:#x}")
        a("s_mul_i32 s58, s40, 5")
        a("s_lshl_b32 s59, s39, 2")
        a("s_add_u32 s59, s59, s38")
        a(f"s_mul_i32 s59, s59, {HT}")
        a(f"s_add_u32 s59, s59, {40*HK}")
        c_wsetup(a)
        T = FA
        for j in range(5):
            for k in {1: (0,), 2: (1, 2), 3: (3,)}.get(j, ()) if o.early_w else ():
                c_wload(a, k)
            if j == 3:
                a("s_cmp_eq_u32 s40, 21")
                a("s_cbranch_scc1 Lf_done")
            a(f"s_add_u32 s60, s58, {j}")
            a("s_lshr_b32 s61, s60, 1")
            a("s_lshl_b32 s61, s61, 12")
            a("s_and_b32 s60, s60, 1")
            a("s_lshl_b32 s60, s60, 9")
            a("s_add_u32 s61, s61, s60")
            a("s_add_u32 s62, s61, s59")
            for mi in range(2):
                g = acc(j, mi); u = g + 8
                t = T + ((j * 2 + mi) & 1) * 12
                for p in range(4):
                    a(f"v_pk_mul_f32 {vr(t+2*p, 2)}, {vr(g+2*p, 2)}, s[56:57]")
                for p in range(8):
                    a(f"v_exp_f32 v{t+p}, v{t+p}")
                for p in range(4):
                    a(f"v_pk_mul_f32 {vr(g+2*p, 2)}, {vr(g+2*p, 2)}, {vr(u+2*p, 2)}")
                for p in range(4):
                    a(f"v_pk_add_f32 {vr(t+2*p, 2)}, {vr(t+2*p, 2)}, 1.0 op_sel_hi:[1,0]")
                for p in range(8):
                    a(f"v_rcp_f32 v{t+p}, v{t+p}")
                a("s_nop 0")
                for p in range(4):
                    a(f"v_pk_mul_f32 {vr(g+2*p, 2)}, {vr(g+2*p, 2)}, {vr(t+2*p, 2)}")
                for p in range(4):
                    a(f"v_cvt_pk_bf16_f32 v{t+8+p}, v{g+2*p}, v{g+2*p+1}")
                a(f"buffer_store_dwordx4 {vr(t+8, 4)}, v9, s[48:51], s62 offen offset:{mi*2048} {o.hst}")
    a.label("Lf_done")
    stamp(a, o, 3)
    a("s_lshl_b32 s65, s39, 2")
    a("s_add_u32 s65, s65, s38")
    a("s_lshl_b32 s65, s65, 13")
    a("s_lshl_b32 s66, s40, 7")
    a("s_add_u32 s65, s65, s66")
    a("s_mov_b64 s[66:67], 1")
    a("v_mov_b32 v2, 0")

def cmul(a, dr, di, ar, ai, br, bi, t):
    a(f"v_mul_f32 v{t}, v{ar}, v{br}")
    a(f"v_mul_f32 v{t+1}, v{ar}, v{bi}")
    a(f"v_fma_f32 v{t}, -v{ai}, v{bi}, v{t}")
    a(f"v_fma_f32 v{di}, v{ai}, v{br}, v{t+1}")
    a(f"v_mov_b32 v{dr}, v{t}")

def cfma(a, dr, di, ar, ai, br, bi, cr, ci):
    a(f"v_fma_f32 v{dr}, v{ar}, v{br}, v{cr}")
    a(f"v_fma_f32 v{di}, v{ar}, v{bi}, v{ci}")
    a(f"v_fma_f32 v{dr}, -v{ai}, v{bi}, v{dr}")
    a(f"v_fma_f32 v{di}, v{ai}, v{br}, v{di}")

def p1_ssm(a, o):
    ACC = 16; FA = 176; FB = 208; VX = 4; VB = 8
    LAM = 144; L32 = 146; L256 = 148; C2 = 150; TMP = 152; VN = 14
    PW = 224
    acc = lambda j, c: ACC + (j * 2 + c) * 16
    fa = lambda b, j: FA + b * 16 + j * 4
    fb = lambda b, c: FB + b * 8 + c * 4
    s0 = WB + slot_of(0) * S_WS
    a.c("SSM compute wave: D[t][p] = X B^T")
    a("s_lshr_b32 s44, s38, 1")
    a("s_and_b32 s45, s38, 1")
    srd(a, 48, P_LRE, 1280)
    srd(a, 52, P_LIM, 1280)
    srd(a, 56, P_LDT, 1280)
    a("s_lshl_b32 s46, s40, 6")
    a("s_lshl_b32 s47, s45, 5")
    a("s_add_u32 s46, s46, s47")
    a("v_and_b32 v1, 31, v0")
    a("v_add_u32 v2, s46, v1")
    a("v_lshlrev_b32 v2, 1, v2")
    a(f"buffer_load_ushort v{TMP}, v2, s[48:51], 0 offen")
    a(f"buffer_load_ushort v{TMP+1}, v2, s[52:55], 0 offen")
    a(f"buffer_load_ushort v{TMP+2}, v2, s[56:59], 0 offen")
    a("v_bfe_u32 v2, v0, 2, 1")
    a("v_lshlrev_b32 v2, 6, v2")
    a("v_and_b32 v3, 1, v0")
    a("v_lshl_add_u32 v2, v3, 5, v2")
    a(f"v_bfe_u32 v{VX}, v0, 1, 1")
    a(f"v_add_u32 v2, v2, v{VX}")
    a(f"v_bfe_u32 v{VX}, v0, 3, 2")
    a(f"v_lshl_add_u32 v2, v{VX}, 1, v2")
    a(f"v_lshl_or_b32 v3, v3, 2, v{VX}")
    a(f"v_lshrrev_b32 v{VX}, 5, v0")
    a(f"v_xor_b32 v3, v3, v{VX}")
    a("v_lshlrev_b32 v3, 4, v3")
    a("v_lshl_add_u32 v3, v2, 7, v3")
    a("s_lshl_b32 s47, s44, 14")
    a(f"s_add_u32 s47, s47, {slot_of(0) * XS}")
    a(f"v_add_u32 v{VX}, s47, v3")
    for sub in range(1, 4):
        a(f"v_xor_b32 v{VX+sub}, {sub*32}, v{VX}")
    a("v_lshrrev_b32 v2, 5, v0")
    a("v_bfe_u32 v3, v0, 1, 3")
    a("v_xor_b32 v3, v3, v2")
    a("v_lshlrev_b32 v3, 4, v3")
    a("v_lshl_add_u32 v3, v1, 7, v3")
    a("s_lshl_b32 s47, s45, 12")
    a(f"s_add_u32 s47, s47, {s0}")
    a(f"v_add_u32 v{VB}, s47, v3")
    for sub in range(1, 4):
        a(f"v_xor_b32 v{VB+sub}, {sub*32}, v{VB}")
    a(f"v_mov_b32 v{VN+1}, {NONCE_LDS}")
    for r in range(ACC, ACC + 128):
        a(f"v_mov_b32 v{r}, 0")
    warm_stage_any(a, o, 1)
    a("s_waitcnt vmcnt(0)")
    t = TMP
    a(f"v_lshlrev_b32 v{t}, 16, v{t}")
    a(f"v_lshlrev_b32 v{t+1}, 16, v{t+1}")
    a(f"v_lshlrev_b32 v{t+2}, 16, v{t+2}")
    a(f"v_mul_f32 v{t+2}, {LOG2E:#x}, v{t+2}")
    a(f"v_exp_f32 v{t+2}, v{t+2}")
    a("s_nop 0")
    a(f"v_cvt_pk_bf16_f32 v{t+2}, v{t+2}, v{t+2}")
    a(f"v_lshlrev_b32 v{t+2}, 16, v{t+2}")
    a(f"v_mul_f32 v{t+3}, v{t+2}, v{t}")
    a(f"v_mul_f32 v{t+4}, v{t+2}, v{t+1}")
    a(f"v_mul_f32 v{t+3}, {LOG2E:#x}, v{t+3}")
    a(f"v_exp_f32 v{t+3}, v{t+3}")
    a(f"v_mul_f32 v{t+4}, 0.15915494, v{t+4}")
    a(f"v_rndne_f32 v{t+5}, v{t+4}")
    a(f"v_sub_f32 v{t+4}, v{t+4}, v{t+5}")
    a(f"v_cos_f32 v{t+5}, v{t+4}")
    a(f"v_sin_f32 v{t+6}, v{t+4}")
    a("s_nop 0")
    a(f"v_mul_f32 v{LAM}, v{t+3}, v{t+5}")
    a(f"v_mul_f32 v{LAM+1}, v{t+3}, v{t+6}")
    a(f"v_mul_f32 v{t+3}, v{t}, v{t}")
    a(f"v_fma_f32 v{t+3}, v{t+1}, v{t+1}, v{t+3}")
    a(f"v_rcp_f32 v{t+3}, v{t+3}")
    a(f"v_add_f32 v{t+4}, -1.0, v{LAM}")
    a(f"v_mul_f32 v{t+5}, v{t+4}, v{t}")
    a(f"v_fma_f32 v{t+5}, v{LAM+1}, v{t+1}, v{t+5}")
    a(f"v_mul_f32 v{t+6}, v{LAM+1}, v{t}")
    a(f"v_fma_f32 v{t+6}, -v{t+4}, v{t+1}, v{t+6}")
    a(f"v_add_f32 v{t+3}, v{t+3}, v{t+3}")
    a(f"v_mul_f32 v{C2}, v{t+5}, v{t+3}")
    a(f"v_mul_f32 v{C2+1}, v{t+6}, v{t+3}")
    cmul(a, L32, L32 + 1, LAM, LAM + 1, LAM, LAM + 1, t)
    for _ in range(4):
        cmul(a, L32, L32 + 1, L32, L32 + 1, L32, L32 + 1, t)
    cmul(a, L256, L256 + 1, L32, L32 + 1, L32, L32 + 1, t)
    for _ in range(2):
        cmul(a, L256, L256 + 1, L256, L256 + 1, L256, L256 + 1, t)
    SEL = TMP + 8
    a(f"v_mov_b32 v{PW}, v{C2}"); a(f"v_mov_b32 v{PW+1}, v{C2+1}")
    for s in range(1, 8):
        a(f"v_mul_f32 v{PW+2*s}, v{PW+2*s-2}, v{L32}")
        a(f"v_mul_f32 v{PW+2*s+1}, v{PW+2*s-2}, v{L32+1}")
        a(f"v_fma_f32 v{PW+2*s}, -v{PW+2*s-1}, v{L32+1}, v{PW+2*s}")
        a(f"v_fma_f32 v{PW+2*s+1}, v{PW+2*s-1}, v{L32}, v{PW+2*s+1}")
    a("s_cmp_eq_u32 s44, 0")
    a("s_cselect_b64 s[68:69], 0, -1")
    a("s_mov_b32 s70, 0")
    a("s_mov_b32 s71, -1")
    def select(src, dst):
        for par in range(2):
            for c in range(2):
                r = lambda s: src + 2 * s + c
                a(f"v_cndmask_b32 v{TMP+16}, v{r(par)}, v{r(2+par)}, s[70:71]")
                a(f"v_cndmask_b32 v{TMP+17}, v{r(4+par)}, v{r(6+par)}, s[70:71]")
                a(f"v_cndmask_b32 v{dst+2*c+par}, v{TMP+16}, v{TMP+17}, s[68:69]")
    select(PW, SEL + 4)
    a("s_mov_b32 s52, 0")
    a(f"s_mov_b32 s53, {slot_of(0)}")
    a(f"s_mov_b32 s55, {XS}")
    a(f"s_mov_b32 s57, {S_WS}")

    def reads(buf, sub):
        r = []
        r.append(f"ds_read_b128 {vr(fb(buf, 0), 4)}, v{VB+sub}")
        r.append(f"ds_read_b128 {vr(fa(buf, 0), 4)}, v{VX+sub}")
        r.append(f"ds_read_b128 {vr(fb(buf, 1), 4)}, v{VB+sub} offset:8192")
        for j in range(1, 4):
            r.append(f"ds_read_b128 {vr(fa(buf, j), 4)}, v{VX+(sub ^ ((j & 1) << 1))} offset:{j*1024}")
        return r
    a("s_barrier")
    stamp_clk(a, o, 58); stamp(a, o, 1)
    if o.stamps:
        a("s_mov_b32 s94, s92")
    for r in reads(0, 0):
        a(r)
    tags = [("b", 0), ("a", 0), ("b", 1), ("a", 1), ("a", 2), ("a", 3)]
    k_loop(a, o, "Ls_loop", lambda b, sb: list(zip(reads(b, sb), tags)), lambda n: [("a", n >> 1), ("b", n & 1)],
           lambda buf, n: f"v_mfma_f32_32x32x16_bf16 {vr(acc(n >> 1, n & 1), 16)}, {vr(fa(buf, n >> 1), 4)}, {vr(fb(buf, n & 1), 4)}, {vr(acc(n >> 1, n & 1), 16)}",
           8, ring_ops(S_WS, range(VX, VX + 4), range(VB, VB + 4)), f"ds_read_b32 v{VN}, v{VN+1}", 10)
    a.seg("s1")
    a("s_waitcnt lgkmcnt(0)")
    loop_stamp_flush(a, o)
    stamp(a, o, 2); stamp_clk(a, o, 59)
    a(f"s_setprio {o.cprio}")
    a(f"v_readfirstlane_b32 s64, v{VN}")
    a("v_and_b32 v1, 31, v0")
    a("s_lshl_b32 s47, s45, 5")
    a("v_add_u32 v1, s47, v1")
    a("v_lshlrev_b32 v2, 6, v1")
    a(f"v_add_u32 v2, {S_AGG}, v2")
    a("v_lshrrev_b32 v3, 5, v0")
    a("v_lshl_add_u32 v3, v3, 4, v2")
    a("s_lshl_b32 s47, s44, 5")
    a("v_add_u32 v3, s47, v3")
    srd(a, 48, P_WS, AGG_SIZE, AGG_OFF)
    LR = vr(LAM, 2)
    def pk_lr(d, x, y):
        a(f"v_pk_fma_f32 {vr(d, 2)}, {LR}, {vr(x, 2)}, {vr(y, 2)} op_sel_hi:[0,1,1]")
    def pk_li(d, x, y, neg):
        n = " neg_lo:[1,0,0] neg_hi:[1,0,0]" if neg else ""
        a(f"v_pk_fma_f32 {vr(d, 2)}, {LR}, {vr(x, 2)}, {vr(y, 2)} op_sel:[1,0,0] op_sel_hi:[1,1,1]{n}")
    ure = lambda n: acc(n >> 3, 0) + 2 * (n & 7)
    uim = lambda n: acc(n >> 3, 1) + 2 * (n & 7)
    S = [TMP, TMP + 4]
    pr, pi = ure(0), uim(0)
    for n in range(1, 32):
        d = S[n & 1]
        pk_lr(d, pr, ure(n)); pk_lr(d + 2, pi, uim(n))
        pk_li(d, pi, d, True); pk_li(d + 2, pr, d + 2, False)
        pr, pi = d, d + 2
    Sf = S[31 & 1]
    a(f"ds_write_b128 v3, {vr(Sf, 4)}")
    a("s_waitcnt lgkmcnt(0)")
    a("s_barrier")
    AG = FA
    for q in range(4):
        a(f"ds_read_b128 {vr(AG+4*q, 4)}, v2 offset:{q*16}")
    are = lambda s: AG + 4 * (s >> 1) + (s & 1)
    aim = lambda s: AG + 4 * (s >> 1) + 2 + (s & 1)
    PF = FA + 16
    a("v_lshlrev_b32 v3, 4, v1")
    a("s_lshl_b32 s46, s40, 13")
    a("s_lshl_b32 s47, s39, 10")
    a("s_add_u32 s47, s47, s46")
    a(f"v_mov_b32 v{PF}, 0"); a(f"v_mov_b32 v{PF+1}, 0")
    a(f"v_mov_b32 v{TMP+1}, s64"); a(f"v_mov_b32 v{TMP+3}, s64")
    a("s_waitcnt lgkmcnt(0)")
    a(f"v_mov_b32 v{PF+2}, v{are(0)}"); a(f"v_mov_b32 v{PF+3}, v{aim(0)}")
    for s in range(1, 7):
        cfma(a, PF + 2 * (s + 1), PF + 2 * (s + 1) + 1, L32, L32 + 1, PF + 2 * s, PF + 2 * s + 1, are(s), aim(s))
    cfma(a, TMP, TMP + 2, L32, L32 + 1, PF + 14, PF + 15, are(7), aim(7))
    a("s_cmp_lg_u32 s44, 0")
    a("s_cbranch_scc1 Ls_nopub")
    a("s_mov_b32 exec_hi, 0")
    a(f"buffer_store_dwordx4 {vr(TMP, 4)}, v3, s[48:51], s47 offen sc1")
    a("s_mov_b64 exec, -1")
    a.label("Ls_nopub")
    stamp(a, o, 3)
    select(PF, SEL)
    CC = vr(C2, 2)
    def scale(re, im):
        a(f"v_pk_mul_f32 {vr(TMP+4, 2)}, {CC}, {vr(re, 2)} op_sel:[1,0] op_sel_hi:[1,1]")
        a(f"v_pk_mul_f32 {vr(re, 2)}, {CC}, {vr(re, 2)} op_sel_hi:[0,1]")
        a(f"v_pk_fma_f32 {vr(re, 2)}, {CC}, {vr(im, 2)}, {vr(re, 2)} op_sel:[1,0,0] op_sel_hi:[1,1,1] neg_lo:[1,0,0] neg_hi:[1,0,0]")
        a(f"v_pk_fma_f32 {vr(im, 2)}, {CC}, {vr(im, 2)}, {vr(TMP+4, 2)} op_sel_hi:[0,1,1]")
    scale(SEL, SEL + 2)
    for n in range(32):
        scale(ure(n), uim(n))
    stamp(a, o, 4)
    CR = TMP + 16
    a("s_cmp_eq_u32 s39, 0")
    a("s_cbranch_scc1 Ls_nocarry")
    GL = FA
    a("s_mov_b32 s72, 0")
    a("s_mov_b32 s50, s47")
    a("s_add_u32 s47, s46, 4096")
    a.label("Ls_poll")
    for i in range(7):
        a(f"buffer_load_dwordx4 {vr(GL+4*i, 4)}, v3, s[48:51], s{46 + (i >> 2)} offen offset:{(i & 3)*1024} sc1")
    a("s_waitcnt vmcnt(0)")
    a(f"v_mov_b32 v{CR+2}, 0"); a(f"v_mov_b32 v{CR+3}, 0")
    for i in range(7):
        a(f"v_cmp_ne_u32 vcc, s64, v{GL+4*i+1}")
        a(f"v_cmp_ne_u32 s[66:67], s64, v{GL+4*i+3}")
        a(f"v_mov_b32 v{CR}, v{CR+2}"); a(f"v_mov_b32 v{CR+1}, v{CR+3}")
        a("s_or_b64 vcc, vcc, s[66:67]")
        a("s_cbranch_scc1 Ls_retry")
        cfma(a, CR + 2, CR + 3, L256, L256 + 1, CR, CR + 1, GL + 4 * i, GL + 4 * i + 2)
        if i < 6:
            a(f"s_cmp_eq_u32 s39, {i+1}")
            a("s_cbranch_scc1 Ls_gotcarry")
    a("s_branch Ls_gotcarry")
    a.label("Ls_retry")
    a(f"s_sleep {o.agg_sleep}")
    a("s_add_u32 s72, s72, 1")
    a(f"s_cmp_lt_u32 s72, {SPIN_MAX:#x}")
    a("s_cbranch_scc1 Ls_poll")
    a.label("Ls_gotcarry")
    CY = vr(CR + 2, 2)
    a(f"v_pk_fma_f32 {vr(SEL, 2)}, {CY}, {vr(SEL+4, 2)}, {vr(SEL, 2)} op_sel_hi:[0,1,1]")
    a(f"v_pk_fma_f32 {vr(SEL+2, 2)}, {CY}, {vr(SEL+6, 2)}, {vr(SEL+2, 2)} op_sel_hi:[0,1,1]")
    a(f"v_pk_fma_f32 {vr(SEL, 2)}, {CY}, {vr(SEL+6, 2)}, {vr(SEL, 2)} op_sel:[1,0,0] op_sel_hi:[1,1,1] neg_lo:[1,0,0] neg_hi:[1,0,0]")
    a(f"v_pk_fma_f32 {vr(SEL+2, 2)}, {CY}, {vr(SEL+4, 2)}, {vr(SEL+2, 2)} op_sel:[1,0,0] op_sel_hi:[1,1,1]")
    a.seg("s2")
    a.label("Ls_nocarry")
    stamp(a, o, 5)
    TS = 144
    a(f"s_mul_i32 s47, s38, {64*TS}")
    a(f"s_add_u32 s47, s47, {S_TR}")
    a("v_and_b32 v1, 31, v0")
    a(f"v_mul_u32_u24 v1, {TS}, v1")
    a("v_lshrrev_b32 v2, 5, v0")
    a("v_lshl_add_u32 v1, v2, 6, v1")
    a("v_add_u32 v1, s47, v1")
    a("v_lshrrev_b32 v2, 4, v0")
    a("v_lshlrev_b32 v2, 3, v2")
    a("v_bfe_u32 v3, v0, 2, 2")
    a("v_add_u32 v2, v2, v3")
    a(f"v_mul_u32_u24 v2, {TS}, v2")
    a("v_and_b32 v3, 3, v0")
    a("v_lshl_add_u32 v2, v3, 3, v2")
    a("v_add_u32 v2, s47, v2")
    a("v_lshlrev_b32 v3, 4, v0")
    srd(a, 48, P_WS, HP_SIZE, HP_OFF)
    a("s_lshl_b32 s46, s40, 1")
    a("s_add_u32 s73, s46, s45")
    a("s_lshl_b32 s46, s73, 13")
    a("s_lshl_b32 s47, s39, 2")
    a("s_lshl_b32 s56, s44, 1")
    a("s_add_u32 s47, s47, s56")
    a(f"s_mul_i32 s47, s47, {HT}")
    a("s_add_u32 s46, s46, s47")
    a(f"s_add_u32 s47, s46, {HT}")
    a(f"s_add_u32 s56, s46, {HK}")
    a(f"s_add_u32 s57, s47, {HK}")
    c_wsetup(a)
    pr, pi = SEL, SEL + 2
    PKD = FA; OUT = FA + 32
    def flush_round(rd):
        a("s_waitcnt lgkmcnt(0)")
        for c in range(2):
            for sg in range(4):
                d = OUT + (c * 4 + sg) * 4
                a(f"ds_read_b64_tr_b16 {vr(d, 2)}, v2 offset:{c*32*TS + sg*32}")
                a(f"ds_read_b64_tr_b16 {vr(d+2, 2)}, v2 offset:{c*32*TS + 4*TS + sg*32}")
    def store_round(rd):
        a("s_waitcnt lgkmcnt(0)")
        for c in range(2):
            for sg in range(4):
                d = OUT + (c * 4 + sg) * 4
                mi = 2 * sg + rd
                so = (46, 47, 56, 57)[c * 2 + (mi >> 2)]
                a(f"buffer_store_dwordx4 {vr(d, 4)}, v3, s[48:51], s{so} offen offset:{(mi & 3)*1024} {o.hst}")
    for n in range(32):
        r, i = ure(n), uim(n)
        pk_lr(r, pr, r); pk_lr(i, pi, i)
        pk_li(r, pi, r, True); pk_li(i, pr, i, False)
        pr, pi = r, i
        if n == 17:
            flush_round(0)
        if n == 21:
            store_round(0)
        if n in (10, 25, 28) and o.early_w:
            c_wload(a, (10, 25, 28).index(n))
        if (n & 7) == 7:
            j = n >> 3
            st = PKD + (j & 1) * 16
            for c in range(2):
                sg = "-" if c else ""
                for par in range(2):
                    for e in range(4):
                        b = acc(j, c) + par
                        a(f"v_cvt_pk_bf16_f32 v{st+c*8+par*4+e}, {sg}v{b+4*e}, {sg}v{b+4*e+2}")
                    a(f"ds_write_b128 v1, {vr(st+c*8+par*4, 4)} offset:{c*32*TS + par*32 + (j & 1)*16}")
    flush_round(1)
    if o.early_w:
        c_wload(a, 3)
    store_round(1)
    stamp(a, o, 6)
    a("s_lshl_b32 s65, s39, 2")
    a("s_lshl_b32 s66, s44, 1")
    a("s_add_u32 s65, s65, s66")
    a("s_lshl_b32 s65, s65, 13")
    a("s_lshl_b32 s66, s73, 7")
    a("s_add_u32 s65, s65, s66")
    a(f"s_add_u32 s65, s65, {22*128}")
    a("s_mov_b64 s[66:67], 3")
    a("v_lshlrev_b32 v2, 13, v0")
    a("s_branch L_p2c")

L_ACC = 6; L_H = 86; L_W = 134
def p2_prefetch(a, o, vm, cuts, wait9, hook=None):
    if wait9:
        a(f"v_mov_b32 v2, {NONCE_LDS}")
        a("ds_read_b32 v2, v2")
    srd(a, 48, P_WS, HP_SIZE, HP_OFF)
    srd(a, 52, P_WS, W2_SIZE, W2_OFF)
    a("s_mul_i32 s74, s90, 14")
    a("s_min_u32 s74, s74, 40")
    a(f"s_mul_i32 s66, s42, {HT}")
    a(f"s_add_u32 s66, s66, {40*HK}")
    a(f"s_mul_i32 s67, s43, {WT}")
    a(f"s_add_u32 s67, s67, {40*WK}")
    a("s_cmp_lt_u32 s90, 3")
    a("s_cselect_b32 s50, s66, s50")
    a("s_cselect_b32 s54, s67, s54")
    srd(a, 56, P_WS, W2_SIZE, W2_OFF)
    if wait9:
        a("s_waitcnt lgkmcnt(0)")
        a("v_readfirstlane_b32 s64, v2")
    a("v_lshlrev_b32 v1, 4, v0")
    a(f"s_mul_i32 s76, s74, {WK}")
    a(f"s_mul_i32 s66, s43, {WT}")
    a("s_add_u32 s76, s76, s66")
    a(f"s_mul_i32 s77, s101, {7*WK}")
    a("s_add_u32 s76, s76, s77")
    a("s_add_u32 s77, s76, 4096")
    a("s_mul_i32 s75, s101, 5")
    ops = []
    for n in range(6):
        for i in range(5):
            post = [f"s_add_u32 s76, s76, {WK}", f"s_add_u32 s77, s77, {WK}"] if i == 4 else []
            ops.append(([], f"buffer_load_dwordx4 {vr(L_W + n*20 + i*4, 4)}, v1, s[52:55], s{76 + (i >> 2)} offen offset:{(i & 3)*1024} sc1", post, 0))
    for n in range(6):
        for i in range(5):
            pre = []
            if i == 0:
                pre = [f"s_add_u32 s69, s90, {4*n}", "s_mul_i32 s68, s69, 43", "s_lshr_b32 s68, s68, 8", "s_mul_i32 s70, s68, 6",
                       "s_sub_u32 s70, s69, s70", "s_add_u32 s70, s70, s75", "s_cmp_ge_u32 s70, 8", "s_cselect_b32 s71, 46, 56",
                       "s_add_u32 s70, s70, s71", "s_mul_i32 s68, s68, 10", "s_add_u32 s68, s68, s70", f"s_mul_i32 s68, s68, {WK}",
                       "s_add_u32 s68, s68, s66", "s_mul_i32 m0, s69, 5120", "s_add_u32 s70, s68, 4096"]
            if i == 4:
                pre = ["s_add_u32 m0, m0, 4096", "s_nop 0"]
            ops.append((pre, f"buffer_load_dwordx4 v1, s[56:59], s{68 + 2*(i >> 2)} offen offset:{(i & 3)*1024} sc1 lds", [], 8 if n < 1 else 9 if n < 3 else 10))
    tag = int(wait9)
    def run(lo, hi, passed, thr=0):
        for pre, ins, post, need in ops[lo:hi]:
            assert need <= passed
            for p in pre: a(p)
            if thr:
                a(f"s_waitcnt vmcnt({thr - 1})")
            vm.op(ins, "pf")
            for p in post: a(p)
    def bar(s):
        stamp(a, o, 8 + s)
        a("s_barrier")
        stamp(a, o, 20 + s)
        if hook and s < 10: hook(s)
    def fwok():
        a("s_setprio 0")
        a("s_lshl_b32 s67, s90, 2")
        a(f"s_add_u32 s67, s67, {SFLAG_LDS}")
        a("v_mov_b32 v2, s67")
        a("v_mov_b32 v3, s64")
        a("ds_write_b32 v2, v3 offset:144")
    fw_setup(a)
    a(f"v_mov_b32 v28, {NONCE_LDS - 8}")
    if o.look == 9:
        bar(8)
        if wait9:
            a("s_waitcnt vmcnt(0)")
    if not wait9:
        a("s_cmp_lg_u32 s90, 2")
        a("s_cbranch_scc1 Lp_nolook")
        fw_load(a)
        fw_test(a)
        a("s_cselect_b32 s44, s64, 0")
        a("v_mov_b32 v29, s44")
        a("ds_write_b32 v28, v29")
        a("s_waitcnt lgkmcnt(0)")
        a.label("Lp_nolook")
    bar(o.look)
    a("ds_read_b32 v29, v28")
    a("s_waitcnt vmcnt(0) lgkmcnt(0)")
    a("v_readfirstlane_b32 s44, v29")
    a("s_nop 3")
    a("s_cmp_eq_u32 s44, s64")
    a(f"s_cbranch_scc0 Lp_late{tag}")
    stamp(a, o, 5)
    vm.q = []
    if o.look == 8:
        run(0, cuts[0], 8)
        bar(9)
    run(cuts[0] if o.look == 8 else 0, cuts[1], 9)
    bar(10)
    if o.ssm_early:
        assert not o.use_y
        a("s_cmp_eq_u32 s41, 0")
        a(f"s_cbranch_scc1 Ll_noxe{tag}")
        a("s_barrier")
        a.label(f"Ll_noxe{tag}")
    fwok()
    run(cuts[1], 60, 10, o.thr_e)
    a(f"s_branch Lp_done{tag}")
    a.label(f"Lp_late{tag}")
    if o.look == 8:
        bar(9)
    bar(10)
    a("s_cmp_eq_u32 s41, 0")
    a(f"s_cbranch_scc1 Ll_nox{tag}")
    a("s_barrier")
    a.label(f"Ll_nox{tag}")
    fw_check(a)
    fwok()
    stamp(a, o, 4)
    vm.q = []
    run(0, o.pre_y, 10, o.thr_y)
    if o.use_y:
        a("s_cmp_eq_u32 s41, 0")
        a(f"s_cbranch_scc1 Ll_noy{tag}")
        a("s_barrier")
        a.label(f"Ll_noy{tag}")
    run(o.pre_y, 60, 10, o.thr_t)
    a.label(f"Lp_done{tag}")
    if hook: hook(10)
    vm.drain()
    a("s_lshl_b32 s66, s90, 2")
    a(f"s_add_u32 s66, s66, {SFLAG_LDS}")
    a("v_mov_b32 v2, s66")
    a("v_mov_b32 v3, s64")
    a("ds_write_b32 v2, v3")
    stamp(a, o, 6)

def p1_loader(a, o):
    a("s_cmp_ge_u32 s90, 2")
    a("s_cbranch_scc1 L_helper")
    VXO = 4; VWO = 12; VE = 18
    vm = VM(a)
    a("v_lshrrev_b32 v1, 3, v0")
    a("v_and_b32 v2, 7, v0")
    a("v_mul_u32_u24 v3, 1280, v1")
    a(f"v_lshrrev_b32 v{VE}, 1, v1")
    a(f"v_xor_b32 v{VE}, v{VE}, v2")
    a(f"v_lshlrev_b32 v{VE}, 4, v{VE}")
    a(f"v_xor_b32 v{VE+1}, 64, v{VE}")
    a(f"v_add_u32 v{VE}, v{VE}, v3")
    a(f"v_add_u32 v{VE+1}, v{VE+1}, v3")
    a(f"s_and_b32 s44, s40, {o.ab}")
    a(f"s_and_b32 s45, s39, {o.ab}")
    a("s_lshl_b32 s46, s39, 8")
    a("s_lshl_b32 s47, s90, 7")
    a("s_add_u32 s46, s46, s47")
    a("s_lshl_b32 s47, s44, 6")
    a("s_add_u32 s85, s46, s47")
    a("s_xor_b32 s47, s47, 64")
    a("s_add_u32 s86, s46, s47")
    a("s_mul_i32 s85, s85, 1280")
    a("s_mul_i32 s86, s86, 1280")
    a("s_lshl_b32 s75, s90, 14")
    a("s_lshl_b32 s47, s44, 13")
    a("s_add_u32 s75, s75, s47")
    a("s_xor_b32 s76, s75, 8192")
    a("s_cmp_eq_u32 s41, 1")
    a("s_cbranch_scc1 Ll_ssm")
    for ssm in (0, 1):
        if ssm:
            a.label("Ll_ssm")
        for i in range(8):
            bit = (i & 1) ^ ((i >> 2) & 1 if ssm else 0)
            a(f"v_add_u32 v{VXO+i}, {i*8*1280 - (i & 3)*1024}, v{VE+bit}")
        slot = S_WS if ssm else F_WS
        a(f"s_mov_b32 s81, {slot}")
        a(f"s_mov_b32 s82, {2*slot}")
        a("s_xor_b32 s47, s45, 1")
        if not ssm:
            for i in range(5):
                a(f"v_add_u32 v2, {64*i}, v0")
                a("v_mul_u32_u24 v3, 6554, v2")
                a("v_lshrrev_b32 v3, 16, v3")
                a("v_mul_u32_u24 v1, 10, v3")
                a("v_sub_u32 v2, v2, v1")
                a("v_mul_u32_u24 v3, 3456, v3")
                a("v_lshl_add_u32 v3, v2, 4, v3")
                a(f"v_subrev_u32 v{VWO+i}, {(i & 3)*1024}, v3")
            a("s_mul_i32 s46, s40, 160")
            a(f"s_mul_i32 s66, s45, {32*3456}")
            a(f"s_mul_i32 s67, s47, {32*3456}")
            a("s_add_u32 s66, s66, s46")
            a("s_add_u32 s67, s67, s46")
            a(f"s_mul_i32 s46, s90, {F_UP}")
            a(f"s_add_u32 s46, s46, {WB}")
            a("s_mul_i32 s77, s45, 5120")
            a("s_mul_i32 s78, s47, 5120")
            a("s_add_u32 s77, s77, s46")
            a("s_add_u32 s78, s78, s46")
            a("s_add_u32 s79, s77, 4096")
            a("s_add_u32 s80, s78, 4096")
            a("s_mov_b32 s83, s81")
            a("s_mov_b32 s87, s82")
            a(f"s_mov_b32 s84, {64*3456}")
            a("s_waitcnt lgkmcnt(0)")
            a("s_cmp_eq_u32 s90, 0")
            a(f"s_cselect_b32 s52, s{P_W1}, s{P_W3}")
            a(f"s_cselect_b32 s53, s{P_W1+1}, s{P_W3+1}")
            a(f"s_mov_b32 s54, {640*3456}")
            a("s_branch Ll_go")
        else:
            for i in range(4):
                a(f"v_add_u32 v{VWO+i}, {i*8*1280 - i*1024}, v{VE+(i & 1)}")
            a(f"v_mov_b32 v{VWO+4}, 0x40000000")
            a(f"s_mul_i32 s46, s40, {64*1280}")
            a(f"s_mul_i32 s66, s45, {32*1280}")
            a(f"s_mul_i32 s67, s47, {32*1280}")
            a("s_add_u32 s66, s66, s46")
            a("s_add_u32 s67, s67, s46")
            a("s_lshl_b32 s46, s90, 13")
            a("s_lshl_b32 s77, s45, 12")
            a("s_add_u32 s77, s77, s46")
            a("s_xor_b32 s78, s77, 4096")
            a(f"s_add_u32 s77, s77, {WB}")
            a(f"s_add_u32 s78, s78, {WB}")
            a("s_lshl_b32 s79, s90, 10")
            a(f"s_add_u32 s79, s79, {S_DUMMY}")
            a("s_mov_b32 s80, s79")
            a("s_mov_b32 s83, 0")
            a("s_mov_b32 s87, 0")
            a("s_movk_i32 s84, 128")
            a("s_waitcnt lgkmcnt(0)")
            a("s_cmp_eq_u32 s90, 0")
            a(f"s_cselect_b32 s52, s{P_BRE}, s{P_BIM}")
            a(f"s_cselect_b32 s53, s{P_BRE+1}, s{P_BIM+1}")
            a(f"s_mov_b32 s54, {640*1280}")
    a.label("Ll_go")
    a("s_mov_b32 s55, 0x20000")
    srd(a, 48, P_X, 2048 * 1280)
    a("s_lshl_b32 s44, s3, 7")
    a("s_add_u32 s85, s85, s44")
    a("s_add_u32 s86, s86, s44")
    a("s_mul_i32 s44, s3, s84")
    a("s_add_u32 s66, s66, s44")
    a("s_add_u32 s67, s67, s44")
    a("s_mul_i32 s73, s84, -9")
    a("s_mov_b32 s71, s3")
    a("s_mov_b32 s72, s3")
    a("s_movk_i32 s74, 128")
    def setm0(base, sl, five=False):
        if sl == 0:
            return f"s_mov_b32 m0, s{base}"
        return f"s_add_u32 m0, s{base}, s{((83, 87) if five else (81, 82))[sl-1]}"
    def half(stage, h, extra=()):
        extra = list(extra)
        sl = slot_of(stage)
        def dma(ins):
            vm.op(ins, ("st", stage))
            for _ in range(2 if len(extra) > 14 else 1):
                if extra:
                    a(extra.pop(0))
                    if extra and extra[0].startswith("s_addc"):
                        a(extra.pop(0))
        a(f"s_add_u32 m0, s{75 + h}, {sl*XS}"); a("s_nop 0")
        for i in range(8):
            if i == 4:
                a("s_add_u32 m0, m0, 4096"); a("s_nop 0")
            dma(f"buffer_load_dwordx4 v{VXO+i}, s[48:51], s{85+h} offen offset:{(i & 3)*1024} lds")
        a(setm0(77 + h, sl))
        a(f"s_add_u32 s{71+h}, s{71+h}, 1")
        for i in range(4):
            dma(f"buffer_load_dwordx4 v{VWO+i}, s[52:55], s{66+h} offen offset:{i*1024} lds")
        a(setm0(79 + h, sl, True)); a("s_nop 0")
        dma(f"buffer_load_dwordx4 v{VWO+4}, s[52:55], s{66+h} offen lds")
        a(f"s_cmp_eq_u32 s{71+h}, 10")
        a(f"s_cselect_b32 s44, {-9*128 & 0xffffffff:#x}, s74")
        a("s_cselect_b32 s45, s73, s84")
        a(f"s_add_u32 s{85+h}, s{85+h}, s44")
        a(f"s_add_u32 s{66+h}, s{66+h}, s45")
        for x in extra:
            a(x)
    def bar(s):
        vm.wait(("st", s))
        stamp(a, o, 8 + s)
        a("s_barrier")
        stamp(a, o, 20 + s)
    wo = lambda: warm_ops(o, "w")
    lw = list(o.lwarm)
    assert sum(lw) in (0, 9)
    half0 = half
    def lwarm_setup():
        a("v_lshlrev_b32 v20, 4, v0")
        a("s_cmp_eq_u32 s90, 1")
        a("s_cbranch_scc1 Ll_wx")
        a("s_and_b32 s68, s2, 1")
        a("s_cmp_eq_u32 s68, 0")
        a(f"s_cselect_b32 s56, s{P_W1}, s{P_W3}")
        a(f"s_cselect_b32 s57, s{P_W1+1}, s{P_W3+1}")
        a(f"s_mov_b32 s58, {640*3456}")
        a("s_mov_b32 s60, s56")
        a("s_mov_b32 s61, s57")
        a("s_mov_b32 s62, s58")
        a("s_lshr_b32 s68, s2, 1")
        a("s_mul_i32 s68, s68, 1728")
        a("s_add_u32 s69, s68, 1008")
        a("v_min_u32 v21, 704, v20")
        a(f"s_mov_b32 s70, {64*3456}")
        a("s_branch Ll_wd")
        a.label("Ll_wx")
        a(f"s_mov_b32 s56, s{P_X}")
        a(f"s_mov_b32 s57, s{P_X+1}")
        a(f"s_mov_b32 s58, {2048*1280}")
        a("s_cmp_lt_u32 s2, 128")
        a(f"s_cselect_b32 s60, s{P_BRE}, s{P_BIM}")
        a(f"s_cselect_b32 s61, s{P_BRE+1}, s{P_BIM+1}")
        a(f"s_mov_b32 s62, {640*1280}")
        a("v_lshrrev_b32 v20, 3, v0")
        a("v_min_u32 v21, 4, v20")
        a("v_and_b32 v22, 7, v0")
        a("v_lshlrev_b32 v22, 4, v22")
        a("v_mul_u32_u24 v20, 1280, v20")
        a("v_mul_u32_u24 v21, 1280, v21")
        a("v_add_u32 v20, v20, v22")
        a("v_add_u32 v21, v21, v22")
        a(f"s_mul_i32 s68, s2, {8*1280}")
        a("s_and_b32 s69, s2, 127")
        a(f"s_mul_i32 s69, s69, {5*1280}")
        a("s_movk_i32 s70, 128")
        a.label("Ll_wd")
        a("s_mov_b32 s59, 0x20000")
        a("s_mov_b32 s63, 0x20000")
    nh = [0]
    def half(stage, h, extra=()):
        half0(stage, h, extra)
        if nh[0] == 0 and sum(lw):
            lwarm_setup()
        k = lw[nh[0]] if nh[0] < len(lw) else 0
        nh[0] += 1
        for _ in range(k):
            a("s_add_u32 s68, s68, s70")
            a("s_add_u32 s69, s69, s70")
            vm.op("buffer_load_dwordx4 v[28:31], v20, s[56:59], s68 offen", "lw")
            vm.op("buffer_load_dwordx4 v[28:31], v21, s[60:63], s69 offen", "lw")
    half(0, 0)
    warm_setup(a, o); warm_skip(a, o, 3)
    half(0, 1, wo())
    half(1, 0, wo()); bar(0)
    nw = 2
    for s in range(0, 8):
        if s < o.lead:
            half(s + 1, 1, wo() if nw < 7 else ()); nw += 1; half(s + 2, 0)
        elif s == o.lead:
            half(s + 1, 1); half(s + 2, 0, wo() if nw < 7 else ()); nw += 1; half(s + 2, 1)
        else:
            half(s + 2, 0, wo() if nw < 7 else ()); nw += 1; half(s + 2, 1)
        if s < 7:
            bar(s + 1)
    assert o.lead <= 7 and nw >= 7
    vm.wait(("st", 8))
    p2_prefetch(a, o, vm, o.cuts_l, True)
    a("s_branch L_p2l")

    a.label("L_helper")
    a(f"s_setprio {o.hprio}")
    a("s_waitcnt lgkmcnt(0)")
    vm = VM(a)
    GWF, XF, GA = 40, 120, 128
    RJ, OJ, O2, VA = 134, 166, 198, 32
    if o.codepf:
        a("s_getpc_b64 s[56:57]")
        a.label("Lpc")
        a(f"s_sub_u32 s56, s56, Lpc-{NAME}_kernel")
        a("s_subb_u32 s57, s57, 0")
        a(f"s_mov_b32 s58, L_codeend-{NAME}_kernel")
        a("s_mov_b32 s59, 0x20000")
        a("s_lshr_b32 s66, s2, 3")
        a("s_lshl_b32 s66, s66, 1")
        a("s_add_u32 s66, s66, s90")
        a("s_sub_u32 s66, s66, 2")
        a("s_lshl_b32 s66, s66, 10")
        a("v_lshlrev_b32 v21, 4, v0")
        a("buffer_load_dwordx4 v[24:27], v21, s[56:59], s66 offen")
    srd(a, 60, P_DBG, 256)
    a("v_mov_b32 v19, 0")
    a("s_lshl_b32 s65, s2, 2")
    a("s_lshl_b32 s66, s90, 1")
    a("s_add_u32 s65, s65, s66")
    a("s_sub_u32 s65, s65, 4")
    a("s_cmp_lg_u32 s65, 0")
    a("s_cbranch_scc1 Lh_nononce")
    a("s_memrealtime s[66:67]")
    a("s_waitcnt lgkmcnt(0)")
    a("s_or_b32 s66, s66, 1")
    a("v_mov_b32 v20, s66")
    a("s_mov_b64 exec, 1")
    a("buffer_store_dword v20, v19, s[60:63], 0 offen sc1")
    a("s_mov_b64 exec, -1")
    a.label("Lh_nononce")
    warm_setup(a, o); warm_skip(a, o, 3)
    warm_stage_xb(a, o, 1)
    srd(a, 52, P_GW, 1280)
    a("v_lshlrev_b32 v21, 4, v0")
    a("v_lshrrev_b32 v6, 4, v0")
    a("v_and_b32 v7, 15, v0")
    a("v_lshlrev_b32 v5, 4, v6")
    a("s_lshl_b32 s66, s41, 4")
    a("s_add_u32 s66, s66, s40")
    a("s_cmp_eq_u32 s90, 3")
    a("s_cselect_b32 s73, s66, 16")
    a("s_cmp_ge_u32 s73, 16")
    a("s_cbranch_scc1 Lh_nogw")
    a("s_lshl_b32 s66, s3, 7")
    for k in range(20):
        a(f"buffer_load_dwordx4 {vr(GWF+4*k, 4)}, v5, s[52:55], s66 offen offset:{(k & 1)*64}")
        if k & 1:
            a("s_add_u32 s66, s66, 128")
            a("s_cmp_eq_u32 s66, 1280")
            a("s_cselect_b32 s66, 0, s66")
    a.label("Lh_nogw")
    a("v_lshrrev_b32 v8, 3, v0")
    a(f"v_mul_u32_u24 v8, {8*1280}, v8")
    a("v_and_b32 v10, 7, v0")
    a("v_lshl_add_u32 v8, v10, 4, v8")
    a(f"v_mul_u32_u24 v9, {8*1280}, v6")
    a("v_lshl_add_u32 v9, v7, 4, v9")
    a("v_bfe_u32 v10, v0, 1, 3")
    a("v_xor_b32 v10, v10, v6")
    a("v_lshlrev_b32 v10, 4, v10")
    a("v_lshl_add_u32 v10, v7, 7, v10")
    a("s_and_b32 s66, s40, 15")
    a("s_lshl_b32 s66, s66, 11")
    a("v_add_u32 v10, s66, v10")
    for k in range(3):
        a(f"v_add_u32 v{12+2*k}, {k*XS}, v10")
        a(f"v_xor_b32 v{13+2*k}, 64, v{12+2*k}")
    for k in range(4):
        a(f"v_mov_b32 v{GA+k}, 0")
    a("s_lshr_b32 s65, s65, 1")
    a("s_mul_i32 s70, s65, 698")
    a("s_lshr_b32 s70, s70, 16")
    a("s_mul_i32 s69, s70, 94")
    a("s_sub_u32 s69, s65, s69")
    a("s_sub_u32 s66, s69, 54")
    a("s_and_b32 s67, s66, 1")
    a("s_lshl_b32 s68, s70, 1")
    a("s_add_u32 s67, s67, s68")
    a("s_bfe_u32 s84, s66, 0x10001")
    a("s_lshr_b32 s66, s66, 2")
    a("s_lshl_b32 s85, s66, 7")
    a(f"s_mul_i32 s68, s67, {64*1280}")
    a("s_add_u32 s85, s85, s68")
    a("s_lshl_b32 s66, s66, 2")
    a("s_add_u32 s66, s66, s84")
    a("s_lshl_b32 s67, s67, 2")
    a(f"s_mul_i32 s86, s69, {32*1280}")
    a("s_lshl_b32 s68, s70, 8")
    a("s_add_u32 s86, s86, s68")
    a("s_lshl_b32 s70, s70, 3")
    a("s_cmp_lt_u32 s69, 54")
    a("s_cselect_b32 s88, 1, 0")
    a("s_add_u32 s69, s69, 40")
    a("s_cmp_eq_u32 s88, 1")
    a("s_cselect_b32 s66, s69, s66")
    a("s_cselect_b32 s67, s70, s67")
    a("s_cselect_b32 s85, s86, s85")
    a("s_cselect_b64 vcc, -1, 0")
    a(f"s_add_u32 s86, s85, {4*1280}")
    a("v_cndmask_b32 v8, v8, v9, vcc")
    a(f"s_mul_i32 s87, s66, {WK}")
    a("s_cmp_ge_u32 s65, 470")
    a("s_cselect_b32 s87, 0x40000000, s87")
    a("s_cmp_eq_u32 s88, 1")
    for t in range(8):
        a(f"s_movk_i32 s68, {(t >> 2)*2*WK + (t & 3)*256}")
        a(f"s_cselect_b32 s68, {(t & 1)*128}, s68")
        a(f"s_lshl1_add_u32 s69, 0, s68" if False else f"s_or_b32 s69, s68, 0")
        a(f"s_add_u32 s{76+t}, s69, s87")
        a("s_cmp_eq_u32 s88, 1")
    a("v_bfe_u32 v9, v0, 3, 1")
    a("v_lshlrev_b32 v9, 2, v9")
    a("v_lshlrev_b32 v18, 8, v6")
    a("v_and_b32 v20, 7, v0")
    a("v_lshl_add_u32 v18, v20, 4, v18")
    a("v_lshlrev_b32 v20, 4, v7")
    a("v_cndmask_b32 v18, v20, v18, vcc")
    for j in range(4):
        a(f"v_add_u32 v20, {j}, v9")
        a("v_cndmask_b32 v20, v6, v20, vcc")
        a("v_add_u32 v20, s67, v20")
        a("v_mul_u32_u24 v22, 52, v20")
        a("v_lshrrev_b32 v22, 8, v22")
        a(f"v_mul_u32_u24 v22, {WT - 5120}, v22")
        a("v_lshl_add_u32 v22, v20, 10, v22")
        a(f"v_add_u32 v{VA+j}, v22, v18")
    warm_stage_xb(a, o, 1)
    def gstep(s):
        sl = slot_of(s)
        a(f"ds_read_b128 {vr(XF, 4)}, v{12+2*sl}")
        a(f"ds_read_b128 {vr(XF+4, 4)}, v{13+2*sl}")
        a("s_waitcnt lgkmcnt(0)")
        a(f"v_mfma_f32_16x16x32_bf16 {vr(GA, 4)}, {vr(GWF+8*s, 4)}, {vr(XF, 4)}, {vr(GA, 4)}")
        a(f"v_mfma_f32_16x16x32_bf16 {vr(GA, 4)}, {vr(GWF+8*s+4, 4)}, {vr(XF+4, 4)}, {vr(GA, 4)}")
    def ev_load():
        a("s_cmp_eq_u32 s84, 0")
        a(f"s_cselect_b32 s56, s{P_CRE}, s{P_CIM}")
        a(f"s_cselect_b32 s57, s{P_CRE+1}, s{P_CIM+1}")
        a(f"s_mov_b32 s58, {640*1280}")
        a("s_cmp_eq_u32 s88, 1")
        a(f"s_cselect_b32 s56, s{P_W2}, s56")
        a(f"s_cselect_b32 s57, s{P_W2+1}, s57")
        a(f"s_cselect_b32 s58, {1728*1280}, s58")
        a("s_mov_b32 s59, 0x20000")
        for e in range(8):
            a(f"buffer_load_dwordx4 {vr(RJ+4*e, 4)}, v8, s[56:59], s{85 + (e >> 2)} offen offset:{(e & 3)*1280}")
    def ev_store(jb):
        if jb == 0:
            srd(a, 56, P_WS, W2_SIZE, W2_OFF)
            a("s_mov_b32 s70, 0x05040100")
            a("s_mov_b32 s71, 0x07060302")
            a("s_waitcnt vmcnt(0)")
            a("s_cmp_eq_u32 s88, 0")
            a("s_cbranch_scc1 Lh_noperm")
            for t in range(8):
                for e in range(4):
                    a(f"v_perm_b32 v{OJ+4*t+e}, v{RJ+8*e+4+(t >> 1)}, v{RJ+8*e+(t >> 1)}, s{70+(t & 1)}")
            a("s_branch Lh_tr")
            a.label("Lh_noperm")
            for k in range(0, 32, 2):
                a(f"v_pk_mov_b32 {vr(OJ+k, 2)}, {vr(RJ+k, 2)}, {vr(RJ+k, 2)} op_sel:[0,1]")
            a.label("Lh_tr")
            for (src, dst, x, dp, m) in ((OJ, O2, 1, ("quad_perm:[1,0,3,2]",)*2, 0xaaaaaaaa), (O2, OJ, 2, ("quad_perm:[2,3,0,1]",)*2, 0xcccccccc),
                                         (OJ, O2, 4, ("row_shr:4", "row_shl:4"), 0xf0f0f0f0)):
                for hi in (1, 0):
                    mm = m if hi else (~m & 0xffffffff)
                    a(f"s_mov_b32 vcc_lo, {mm:#x}")
                    a(f"s_mov_b32 vcc_hi, {mm:#x}")
                    a("s_nop 1")
                    for t in range(8):
                        if bool(t & x) != bool(hi):
                            continue
                        for e in range(4):
                            a(f"v_cndmask_b32_dpp v{dst+4*t+e}, v{src+4*(t ^ x)+e}, v{src+4*t+e}, vcc {dp[hi]} row_mask:0xf bank_mask:0xf bound_ctrl:0")
        for t in range(4*jb, 4*jb + 4):
            a(f"buffer_store_dwordx4 {vr(O2+4*t, 4)}, v{VA + (t >> 1)}, s[56:59], s{76 + t} offen sc1")
    def ev_drain():
        a("s_mov_b32 s72, 0")
        a.label("Lh_npoll")
        a("s_waitcnt vmcnt(0)")
        a("v_readfirstlane_b32 s64, v23")
        a("s_add_u32 s72, s72, 1")
        a("s_cmp_lg_u32 s64, 0")
        a("s_cbranch_scc1 Lh_ngot")
        a("buffer_load_dword v23, v19, s[60:63], 0 offen sc1")
        a(f"s_cmp_lt_u32 s72, {SPIN_MAX:#x}")
        a("s_cbranch_scc1 Lh_npoll")
        a.label("Lh_ngot")
        a(f"v_mov_b32 v22, {NONCE_LDS}")
        a("ds_write_b32 v22, v23")
        a("s_waitcnt lgkmcnt(0)")
    def ev_flag():
        srd(a, 56, P_WS, FW_SIZE, FW_OFF)
        a("s_cmp_lg_u32 s90, 2")
        a("s_cbranch_scc1 Lh_noflag")
        a("s_lshl_b32 s66, s2, 7")
        a("s_mov_b64 exec, 1")
        a("buffer_store_dword v23, v19, s[56:59], s66 offen sc1")
        a("s_mov_b64 exec, -1")
        a.label("Lh_noflag")
    t_ld, t_s0, t_s1, t_dr = o.hsched
    assert t_ld < t_s0 <= t_s1 < t_dr <= 6
    nyoung = 0
    if o.vwarm:
        a("s_cmp_eq_u32 s90, 3")
        a("s_cbranch_scc1 Lh_wx")
        a("s_and_b32 s68, s2, 1")
        a("s_cmp_eq_u32 s68, 0")
        a(f"s_cselect_b32 s56, s{P_W1}, s{P_W3}")
        a(f"s_cselect_b32 s57, s{P_W1+1}, s{P_W3+1}")
        a(f"s_mov_b32 s58, {640*3456}")
        a("s_mov_b32 s59, 0x20000")
        a("s_lshr_b32 s68, s2, 1")
        a("s_mul_i32 s68, s68, 1728")
        a("v_min_u32 v24, 704, v21")
        for st in range(1, 10 if o.vwarm == 1 else 1):
            a(f"s_add_u32 s68, s68, {64*3456}")
            a("buffer_load_dwordx4 v[28:31], v21, s[56:59], s68 offen")
            a("buffer_load_dwordx4 v[28:31], v24, s[56:59], s68 offen offset:1008")
        a("s_branch Lh_wd")
        a.label("Lh_wx")
        srd(a, 52, P_X, 2048 * 1280)
        a("s_cmp_lt_u32 s2, 128")
        a(f"s_cselect_b32 s56, s{P_BRE}, s{P_BIM}")
        a(f"s_cselect_b32 s57, s{P_BRE+1}, s{P_BIM+1}")
        a(f"s_mov_b32 s58, {640*1280}")
        a("s_mov_b32 s59, 0x20000")
        a("v_lshrrev_b32 v24, 3, v0")
        a("v_min_u32 v25, 4, v24")
        a("v_and_b32 v26, 7, v0")
        a("v_lshlrev_b32 v26, 4, v26")
        a("v_mad_u32_u24 v24, v24, s98, v26").__class__
        a.l.pop()
        a("v_mul_u32_u24 v24, 1280, v24")
        a("v_mul_u32_u24 v25, 1280, v25")
        a("v_add_u32 v24, v24, v26")
        a("v_add_u32 v25, v25, v26")
        a(f"s_mul_i32 s68, s2, {8*1280}")
        a("s_and_b32 s69, s2, 127")
        a(f"s_mul_i32 s69, s69, {5*1280}")
        if o.vwarm == 3:
            a("s_lshl_b32 s68, s39, 5")
            a("s_lshr_b32 s69, s2, 3")
            a("s_add_u32 s68, s68, s69")
            a(f"s_mul_i32 s68, s68, {8*1280}")
        if o.vwarm == 4:
            for k in range(7):
                a(f"buffer_load_dwordx4 v[28:31], v21, s[56:59], s69 offen")
                a(f"s_add_u32 s69, s69, {1024 if k < 5 else 256}")
        else:
            for st in range(0 if o.vwarm == 3 else 1, 10):
                a(f"buffer_load_dwordx4 v[28:31], v24, s[52:55], s68 offen offset:{st*128}")
                if o.vwarm != 3:
                    a(f"buffer_load_dwordx4 v[28:31], v25, s[56:59], s69 offen offset:{st*128}")
        a.label("Lh_wd")
        nyoung = {3: 10, 4: 7}.get(o.vwarm, 18)
    if t_ld < 0:
        ev_load()
        nyoung += 8
    a(f"s_waitcnt vmcnt({nyoung})")
    for s in range(8):
        stamp(a, o, 8 + s)
        a("s_barrier")
        gstep(s)
        if s == t_dr: ev_drain()
        if s == t_dr + 1: ev_flag()
        if s < 5:
            warm_stage_xb(a, o, 1)
        if s == t_ld: ev_load()
        if s == t_s0: ev_store(0)
        if s == t_s1: ev_store(1)
        if s == t_dr - 1: a("buffer_load_dword v23, v19, s[60:63], 0 offen sc1")
        if o.tlb and s == o.tlb:
            a("s_cmp_eq_u32 s90, 2")
            a(f"s_cselect_b32 s52, s{P_WS}, s{P_OUT}")
            a(f"s_cselect_b32 s53, s{P_WS+1}, s{P_OUT+1}")
            a(f"s_mov_b32 s54, {2048*2560}")
            a(f"s_cselect_b32 s54, {FW_OFF + FW_SIZE}, s54")
            a("s_mov_b32 s55, 0x20000")
            a("v_lshlrev_b32 v30, 20, v0")
            a("buffer_load_dword v31, v30, s[52:55], 0 offen sc1")
        if o.hops and s == o.hopsched[0]:
            a("s_mov_b64 exec, 0")
            a("s_cmp_eq_u32 s41, 0")
            a("s_cbranch_scc1 Lhop_fe_0")
            a("s_cmp_eq_u32 s90, 2")
            a("s_cbranch_scc1 Lhop_s1_0")
            a("s_branch Lhop_s2_0")
            a.label("Lhopret_fe"); a.label("Lhopret_s1"); a.label("Lhopret_s2")
            a("s_mov_b64 exec, -1")
        if o.hops and s == o.hopsched[1]:
            a("s_mov_b64 exec, 0")
            a("s_cmp_eq_u32 s90, 2")
            a("s_cbranch_scc1 Lhop_pc_0")
            a("s_branch Lhop_pl_0")
            a.label("Lhopret_pc"); a.label("Lhopret_pl")
            a("s_mov_b64 exec, -1")
    def hook(s):
        if s < 10:
            gstep(s)
            return
        a("s_cmp_ge_u32 s73, 16")
        a("s_cbranch_scc1 Lh_nog")
        a(f"v_cvt_pk_bf16_f32 v{GA}, v{GA}, v{GA}")
        a(f"v_lshlrev_b32 v{GA}, 16, v{GA}")
        a(f"v_mul_f32 v{GA}, {NLOG2E:#x}, v{GA}")
        a(f"v_exp_f32 v{GA}, v{GA}")
        a("s_nop 0")
        a(f"v_add_f32 v{GA}, 1.0, v{GA}")
        a(f"v_rcp_f32 v{GA}, v{GA}")
        a("s_nop 0")
        a(f"v_cvt_pk_bf16_f32 v{GA}, v{GA}, v{GA}")
        a(f"v_lshlrev_b32 v{GA}, 16, v{GA}")
        a(f"v_mov_b32 v{GA+1}, s64")
        srd(a, 60, P_WS, G_SIZE, G_OFF)
        a("v_lshlrev_b32 v2, 3, v0")
        a("s_lshl_b32 s66, s39, 4")
        a("s_add_u32 s66, s66, s40")
        a("s_lshl_b32 s66, s66, 7")
        a("s_mov_b64 exec, 0xffff")
        a(f"buffer_store_dwordx2 {vr(GA, 2)}, v2, s[60:63], s66 offen sc1")
        a("s_mov_b64 exec, -1")
        a.label("Lh_nog")
    p2_prefetch(a, o, vm, o.cuts_h, False, hook)
    a.seg("pl")
    a.label("L_p2l")
    a(f"s_setprio {o.lprio}")

def lds_wait(a, name, off):
    a("s_mov_b32 s72, 0")
    a.label(f"{name}poll")
    a(f"ds_read_b32 v7, v6 offset:{off}")
    a("s_waitcnt lgkmcnt(0)")
    a("v_cmp_ne_u32 vcc, s64, v7")
    a("s_add_u32 s72, s72, 1")
    a("s_cmp_eq_u64 vcc, 0")
    a(f"s_cbranch_scc1 {name}got")
    a("s_sleep 1")
    a(f"s_cmp_lt_u32 s72, {SPIN_MAX*4:#x}")
    a(f"s_cbranch_scc1 {name}poll")
    a.label(f"{name}got")

def p2(a, o, loader):
    X = "L" if loader else "C"
    vm = VM(a)
    NS = 14 if loader else 10
    wreg = {}; hreg = {}
    if loader:
        ACC = L_ACC
        for n in range(6):
            for dt in range(5):
                wreg[n, dt] = L_W + n * 20 + dt * 4
        free = [L_H + 4 * i for i in range(12)]
        VO = 1
        lds_steps = ()
    else:
        ACC = C_ACC
        for k, n in enumerate(C_RSTEPS):
            for dt in range(5):
                wreg[n, dt] = C_WR + k * 20 + dt * 4
        lds_steps = tuple(range(2, 8))
        for n in lds_steps:
            for dt in range(5):
                wreg[n, dt] = C_WL + (((n - 2) * 5 + dt) % 6) * 4
        free = [C_H + 4 * i for i in range(12)]
        VO = 12
    acc = lambda dt, mi: ACC + (dt * 4 + mi) * 4
    srd(a, 56, P_WS, FH_SIZE, FH_OFF)
    if not loader:
        a("v_mov_b32 v3, s64")
        a("s_lshl_b32 s68, s90, 2")
        a(f"s_add_u32 s68, s68, {SFLAG_LDS}")
        a("v_mov_b32 v6, s68")
        a("s_waitcnt vmcnt(0)")
        a("s_mov_b64 exec, s[66:67]")
        a(f"buffer_store_dword v3, v2, s[56:59], s65 offen {o.hst}")
        a("s_mov_b64 exec, -1")
        a(f"s_setprio {o.cprio2}")
        stamp(a, o, 7)
        if o.use_y:
            a("s_cmp_eq_u32 s41, 0")
            a("s_cbranch_scc1 L2C_noy")
            a("s_barrier")
            a.label("L2C_noy")
        lds_wait(a, "L2C_f", 144)
        if not o.early_w:
            for k in range(4):
                c_wload(a, k)
        a(f"s_mul_i32 s68, s90, {CREG}")
        a(f"v_add_u32 v4, s68, v{VO}")
    a("s_lshl_b32 s80, s74, 12")
    a(f"s_mul_i32 s69, s42, {HT}")
    a("s_add_u32 s80, s80, s69")
    a(f"s_mul_i32 s69, s101, {NS//2*HK}")
    a("s_add_u32 s80, s80, s69")
    a(f"s_mul_i32 s83, s101, {-NS*HK}")
    a(f"s_add_u32 s83, s83, {HK}")
    a(f"s_mul_i32 s75, s101, {-NS*WK}")
    a(f"s_add_u32 s75, s75, {WK}")
    if loader:
        a("s_mul_i32 s68, s90, 7")
        a("s_add_u32 s68, s68, 22")
        a("s_cmp_eq_u32 s90, 2")
        a("s_cselect_b32 s69, 6, 7")
        a("s_cmp_eq_u32 s90, 3")
        a("s_cselect_b32 s68, 0, s68")
        a("s_cselect_b32 s69, 6, s69")
    else:
        a("s_lshl_b32 s68, s90, 2")
        a("s_add_u32 s68, s68, 5")
        a("s_mov_b32 s69, 5")
    a("s_bfm_b64 s[78:79], s69, s68")
    a("v_lshlrev_b32 v2, 7, v0")
    a("s_lshl_b32 s65, s42, 13")
    stamp(a, o, 40)
    if o.dspan and not loader:
        a("s_cmp_lg_u32 s38, 0")
        a("s_cbranch_scc1 Ld2")
        dmark(a, o, 6)
        a.label("Ld2")
    a("s_mov_b32 s72, 0")
    a.label(f"L2{X}_poll")
    a("s_mov_b64 exec, s[78:79]")
    a("buffer_load_dword v3, v2, s[56:59], s65 offen sc1")
    a("s_waitcnt vmcnt(0)")
    a("v_cmp_ne_u32 vcc, s64, v3")
    a("s_mov_b64 exec, -1")
    a("s_and_b64 s[78:79], vcc, s[78:79]")
    a(f"s_cbranch_scc0 L2{X}_go")
    a(f"s_sleep {o.poll_sleep}")
    a("s_add_u32 s72, s72, 1")
    a(f"s_cmp_lt_u32 s72, {SPIN_MAX:#x}")
    a(f"s_cbranch_scc1 L2{X}_poll")
    a.label(f"L2{X}_go")
    stamp(a, o, 41)
    needs = []
    for n in range(NS):
        if loader and n >= 6:
            needs += [("w", n, i) for i in range(5)]
        needs += [("h", n, i) for i in range(4)]
    E = {}
    cur = [0]
    look = o.look_l if loader else o.look_c
    def try_issue(force=False):
        if not needs or not free:
            return False
        if needs[0][1] > cur[0] + look and not force:
            return False
        kind, n, i = needs.pop(0)
        r = free.pop(0)
        tog = loader and o.ltog and started[0]
        if tog:
            a("s_setprio 0")
        if kind == "h":
            hreg[n, i] = r
            vm.op(f"buffer_load_dwordx4 {vr(r, 4)}, v{VO}, s[48:51], s80 offen offset:{i*1024} {o.hld}", ("h", n))
            if i == 3:
                a(f"s_add_u32 s80, s80, {HK if n != NS//2 - 1 else 's83'}")
        else:
            wreg[n, i] = r
            vm.op(f"buffer_load_dwordx4 {vr(r, 4)}, v{VO}, s[52:55], s{76 + (i >> 2)} offen offset:{(i & 3)*1024} {o.hld}", ("w", n))
            if i >= 3:
                a(f"s_add_u32 s{76 + (i >> 2)}, s{76 + (i >> 2)}, {WK if n != NS//2 - 1 else 's75'}")
        if tog:
            a(f"s_setprio {o.ltog}")
        return True
    started = [False]
    while try_issue():
        pass
    started[0] = True
    if loader and o.ltog:
        a(f"s_setprio {o.ltog}")
    VS = 4 if loader else 8
    a(f"v_lshrrev_b32 v{VS}, 4, v0")
    a("v_bfe_u32 v3, v0, 1, 2")
    a(f"v_xor_b32 v{VS}, v{VS}, v3")
    a("v_and_b32 v3, 15, v0")
    a(f"v_lshl_or_b32 v{VS}, v3, 2, v{VS}")
    a(f"v_lshlrev_b32 v{VS}, 4, v{VS}")
    if not loader:
        a("v_bfe_u32 v9, v0, 3, 2")
        a("v_xor_b32 v9, v9, v0")
        a("v_lshlrev_b32 v9, 4, v9")
    if loader:
        a(f"s_mul_i32 s68, s90, {2*CREG}")
        a("s_add_u32 s68, s68, 20480")
        a(f"s_add_u32 s69, s68, {CREG}")
        a("s_mul_i32 s70, s90, 20480")
        a(f"s_add_u32 s70, s70, {122880 - 2*20480}")
        a("s_add_u32 s82, s70, 10240")
        a("s_cmp_ge_u32 s90, 2")
        a("s_cselect_b32 s68, s70, s68")
        a("s_cselect_b32 s69, s82, s69")
        a("v_add_u32 v3, s68, v4")
        a("v_add_u32 v5, s69, v4")
    def lds_w(k):
        n, dt = 2 + k // 5, k % 5
        return f"ds_read_b128 {vr(wreg[n, dt], 4)}, v4 offset:{k*1024}"
    def eloads():
        E["g"] = free.pop(0); E["x"] = [free.pop(0) for _ in range(5)]
        srd(a, 60, P_WS, G_SIZE, G_OFF)
        a("v_lshrrev_b32 v2, 2, v0")
        a("v_lshlrev_b32 v3, 3, v2")
        a("s_lshl_b32 s68, s42, 6")
        a("s_lshl_b32 s69, s90, 4")
        a("s_add_u32 s68, s68, s69")
        a("s_lshl_b32 s81, s68, 3")
        a(f"v_mov_b32 v{E['g']+2}, v3")
        vm.op(f"buffer_load_dwordx2 {vr(E['g'], 2)}, v3, s[60:63], s81 offen sc1", "e")
        srd(a, 84, P_X, 2048 * 1280)
        a("v_and_b32 v3, 3, v0")
        a("v_lshlrev_b32 v3, 3, v3")
        a("v_mul_u32_u24 v2, 1280, v2")
        a("v_add_u32 v2, v2, v3")
        a("s_mul_i32 s71, s68, 1280")
        a("s_mul_i32 s69, s43, 160")
        a("s_add_u32 s71, s71, s69")
        for dt in range(5):
            vm.op(f"buffer_load_dwordx2 {vr(E['x'][dt], 2)}, v2, s[84:87], s71 offen offset:{dt*32}", "e")
        srd(a, 84, P_DSK, 1280)
        for dt in range(5):
            vm.op(f"buffer_load_dwordx2 {vr(E['x'][dt]+2, 2)}, v3, s[84:87], s69 offen offset:{dt*32}", "e")
        a("v_lshlrev_b32 v2, 1, v2")
        a("s_lshl_b32 s71, s71, 1")
        srd(a, 84, P_OUT, 2048 * 2560)
        a(f"s_mul_i32 s68, s90, {CREG}")
        a("v_add_u32 v3, s68, v8")
        a("v_add_u32 v5, 10240, v3")
    def put(dt):
        for mi in range(4):
            a(f"ds_write_b128 v{3 if mi < 2 else 5}, {vr(acc(dt, mi), 4)} offset:{((mi & 1)*5 + dt)*1024}")
    def mfma(n, dt, mi):
        c = "0" if n == 0 else vr(acc(dt, mi), 4)
        a(f"v_mfma_f32_16x16x32_bf16 {vr(acc(dt, mi), 4)}, {vr(wreg[n, dt], 4)}, {vr(hreg[n, mi], 4)}, {c}")
    SP = (6, 8, 10, 12, 14, 16, 18, 22, 24, 26, 28, 30, 94, 98)
    def wait_step(n):
        need = [("h", n)]
        if loader and n >= 6:
            need.append(("w", n))
        vm.wait(*need)
        if o.stamps == 3:
            a(f"s_memrealtime s[{SP[n]}:{SP[n]+1}]")
        elif o.stamps and n in (0, 1, 5):
            stamp(a, o, 42 + (0, 1, 5).index(n))
    for n in range(NS - 2):
        cur[0] = n
        wait_step(n)
        if not loader and n == 1:
            a("v_and_b32 v6, 3, v0")
            a("v_lshlrev_b32 v6, 2, v6")
            a(f"v_add_u32 v6, {SFLAG_LDS}, v6")
            lds_wait(a, "L2C_s", 0)
            for k in range(5):
                a(lds_w(k))
        for dt in range(5):
            if n in lds_steps:
                f = (n - 2) * 5 + dt
                a(f"s_waitcnt lgkmcnt({min(29, f + 4) - f})")
            for mi in range(4):
                mfma(n, dt, mi)
                if mi == 0 and n in lds_steps and (n - 2) * 5 + dt + 5 < 30:
                    a(lds_w((n - 2) * 5 + dt + 5))
                if dt == 4:
                    free.append(hreg[n, mi])
                if mi % 2 == 1:
                    try_issue()
            if n not in lds_steps:
                free.append(wreg[n, dt])
        while (min(n + 2, NS - 1), 3) not in hreg:
            assert try_issue(True)
        if loader and n == o.mstep:
            a("s_barrier")
        if not loader and not needs and not E and len(free) >= 6:
            eloads()
    assert not needs and (loader or E)
    wait_step(NS - 2)
    for mi in range(4):
        mfma(NS - 2, 0, mi)
    wait_step(NS - 1)
    for dt in range(5):
        if dt < 4:
            for mi in range(4):
                mfma(NS - 2, dt + 1, mi)
        for mi in range(4):
            mfma(NS - 1, dt, mi)
        if dt >= 1:
            if dt == 4:
                a("s_nop 3")
            put(dt - 1)
    stamp(a, o, 45)
    a("s_nop 3")
    put(4)
    if loader:
        a("s_waitcnt lgkmcnt(0)")
        stamp(a, o, 46)
        a("s_barrier")
    else:
        vm.wait("e")
        T = free.pop(0)
        for dt in range(5):
            b = E["x"][dt]
            a(f"v_lshlrev_b32 v{T}, 16, v{b+2}")
            a(f"v_and_b32 v{T+1}, 0xffff0000, v{b+2}")
            a(f"v_lshlrev_b32 v{T+2}, 16, v{b+3}")
            a(f"v_and_b32 v{T+3}, 0xffff0000, v{b+3}")
            a(f"v_lshlrev_b32 v{b+2}, 16, v{b+1}")
            a(f"v_and_b32 v{b+3}, 0xffff0000, v{b+1}")
            a(f"v_and_b32 v{b+1}, 0xffff0000, v{b}")
            a(f"v_lshlrev_b32 v{b}, 16, v{b}")
            for p in range(2):
                a(f"v_pk_mul_f32 {vr(b+2*p, 2)}, {vr(b+2*p, 2)}, {vr(T+2*p, 2)}")
                a(f"v_cvt_pk_bf16_f32 v{b+2*p+1}, v{b+2*p}, v{b+2*p+1}")
                a(f"v_lshlrev_b32 v{b+2*p}, 16, v{b+2*p+1}")
                a(f"v_and_b32 v{b+2*p+1}, 0xffff0000, v{b+2*p+1}")
        G = E["g"]
        a("s_mov_b32 s72, 0")
        a.label("L2C_gpoll")
        a(f"v_cmp_ne_u32 vcc, s64, v{G+1}")
        a("s_cmp_eq_u64 vcc, 0")
        a("s_cbranch_scc1 L2C_ggot")
        a(f"buffer_load_dwordx2 {vr(G, 2)}, v{G+2}, s[60:63], s81 offen sc1")
        a("s_waitcnt vmcnt(0)")
        a("s_add_u32 s72, s72, 1")
        a(f"s_cmp_lt_u32 s72, {SPIN_MAX:#x}")
        a("s_cbranch_scc1 L2C_gpoll")
        a.label("L2C_ggot")
        a(f"v_sub_f32 v{G+1}, 1.0, v{G}")
        a(f"v_cvt_pk_bf16_f32 v{G+1}, v{G+1}, v{G+1}")
        a(f"v_lshlrev_b32 v{G+1}, 16, v{G+1}")
        a("s_mul_i32 s68, s90, 5120")
        a("v_add_u32 v3, s68, v9")
        a(f"v_add_u32 v4, {2*CREG}, v3")
        a(f"v_add_u32 v6, {4*CREG}, v3")
        a("s_lshr_b32 s69, s90, 1")
        a(f"s_mul_i32 s69, s69, {CREG - 10240}")
        a("s_add_u32 s69, s69, 20480")
        a("v_add_u32 v5, s69, v3")
        a(f"v_add_u32 v7, {2*CREG}, v5")
        a("s_waitcnt lgkmcnt(0)")
        a("s_barrier")
        RD = ACC
        SUM = [free.pop(0) for _ in range(5)]
        src = {0: (3, 0), 1: (3, CREG), 2: (4, 0), 3: (4, CREG), 4: (5, 0), 5: (7, 0), 6: (6, 0), 7: (6, 20480)}
        def rd(dt, lo):
            for s in range(4):
                v, off = src[lo + s]
                a(f"ds_read_b128 {vr(RD + dt*16 + s*4, 4)}, v{v} offset:{off + dt*1024}")
        def sweep(lo, fn):
            for dt in range(3):
                rd(dt, lo)
            for dt in range(5):
                a(f"s_waitcnt lgkmcnt({4*min(2, 4-dt)})")
                fn(dt)
                if dt + 3 < 5:
                    rd(dt + 3, lo)
        def csum(dt):
            for p in range(2):
                r = lambda s: vr(RD + dt*16 + 4*s + 2*p, 2)
                a(f"v_pk_add_f32 {r(0)}, {r(0)}, {r(1)}")
                a(f"v_pk_add_f32 {r(2)}, {r(2)}, {r(3)}")
                a(f"v_pk_add_f32 {vr(SUM[dt]+2*p, 2)}, {r(0)}, {r(2)}")
        sweep(0, csum)
        stamp(a, o, 46)
        a("s_barrier")
        stamp(a, o, 47)
        def fin(dt):
            sk = E["x"][dt]
            for p in range(2):
                r = lambda s: vr(RD + dt*16 + 4*s + 2*p, 2)
                B = SUM[dt] + 2*p
                a(f"v_pk_add_f32 {vr(B, 2)}, {vr(B, 2)}, {r(3)}")
                a(f"v_pk_add_f32 {r(0)}, {r(0)}, {r(1)}")
                a(f"v_pk_add_f32 {r(2)}, {r(2)}, {vr(sk+2*p, 2)}")
                a(f"v_cvt_pk_bf16_f32 v{B+1}, v{B}, v{B+1}")
                a(f"v_pk_add_f32 {r(0)}, {r(0)}, {r(2)}")
                a(f"v_lshlrev_b32 v{B}, 16, v{B+1}")
                a(f"v_and_b32 v{B+1}, 0xffff0000, v{B+1}")
                a(f"v_pk_mul_f32 {vr(B, 2)}, {vr(G, 2)}, {vr(B, 2)} op_sel:[1,0] op_sel_hi:[1,1]")
                a(f"v_cvt_pk_bf16_f32 v{B+1}, v{B}, v{B+1}")
                a(f"v_lshlrev_b32 v{B}, 16, v{B+1}")
                a(f"v_and_b32 v{B+1}, 0xffff0000, v{B+1}")
                a(f"v_pk_fma_f32 {vr(sk+2*p, 2)}, {vr(G, 2)}, {r(0)}, {vr(B, 2)} op_sel_hi:[0,1,1]")
            a(f"buffer_store_dwordx4 {vr(sk, 4)}, v2, s[84:87], s71 offen offset:{dt*64} {o.out_store}")
        sweep(4, fin)
    stamp(a, o, 48)
    if o.stamps == 3:
        for n in range(NS):
            a(f"v_writelane_b32 v254, s{SP[n]}, {8+n}")
        for n in range(22, 32):
            a(f"v_writelane_b32 v254, 0, {n}")
    stamp_flush(a, o)
    a("s_endpgm")

import subprocess, re, os
VOP_WIDEN = re.compile(r"^\s+(v_(?:exp|rcp|mov|lshlrev|and|add|sub|mul|xor|or|cvt|sin|cos|rndne|lshrrev|min|max|subrev)_\w+?)(_e32)?\s")
def sizes_of(lines, o):
    src = wrap("\n".join(lines) + "\n", o)
    open("_al.s", "w").write(src)
    subprocess.run(["clang", "-x", "assembler", "-target", "amdgcn-amd-amdhsa", "-mcpu=gfx950", "-c", "_al.s", "-o", "_al.o"], check=True)
    d = subprocess.run(["llvm-objdump", "-d", "--mcpu=gfx950", "_al.o"], capture_output=True, text=True).stdout
    return [len(m.group(1).split()) * 4 for m in re.finditer(r"// [0-9A-F]{12}: ([0-9A-F ]+)", d)]
def is_ins(l):
    t = l.strip()
    return l.startswith("    ") and t and not t.startswith(";") and not t.startswith(".")
def finalize(a, o):
    out = []; cur = None; cnt = 0; nh = 0
    for l in a.l:
        if isinstance(l, tuple):
            if cur and o.hops:
                out.append(f"Lhop_{cur}_{nh}:")
                out.append(f"    s_cbranch_execz Lhopret_{cur}")
            cur = l[1]; cnt = 10**9; nh = 0
            continue
        for x in l.split("\n"):
            if cur and o.hops and is_ins(x):
                if cnt >= o.hops and not (out and re.match(r"\s+s_(add_u32|mov_b32) m0", out[-1])):
                    out.append(f"Lhop_{cur}_{nh}:")
                    out.append(f"    s_cbranch_execz Lhop_{cur}_{nh+1}")
                    nh += 1; cnt = 0
                cnt += 1
            out.append(x)
    if not o.align:
        return out
    sz = sizes_of(out, o)
    idx = [i for i, l in enumerate(out) if is_ins(l)]
    assert len(idx) == len(sz), (len(idx), len(sz))
    off = 0; ins_before = {}; last_widen = None
    k = 0
    while k < len(idx):
        if sz[k] % 8 == 0:
            run = 0
            while k + run < len(idx) and sz[k + run] % 8 == 0:
                run += 1
            if off % 8 and run >= o.align:
                if last_widen is not None:
                    m = VOP_WIDEN.match(out[idx[last_widen]])
                    out[idx[last_widen]] = out[idx[last_widen]].replace(m.group(1) + (m.group(2) or ""), m.group(1) + "_e64", 1)
                else:
                    ins_before[idx[k]] = "    s_nop 0"
                off += 4
            off += sum(sz[k:k + run]); k += run
            if run >= 2:
                last_widen = None
            continue
        if sz[k] == 4 and VOP_WIDEN.match(out[idx[k]]) and "dpp" not in out[idx[k]]:
            last_widen = k
        off += sz[k]; k += 1
    res = []
    for i, l in enumerate(out):
        if i in ins_before:
            res.append(ins_before[i])
        res.append(l)
    return res

def wrap(body, o):
    ref = open(f"cdna_kernels/{NAME}.s.ref").read().splitlines()
    head = [l for l in ref if l.startswith(";") and "@launch" not in l]
    out = "\n".join(head) + "\n"
    out += f"; @launch grid=(256,1,1) block=(512,1,1) lds={LDS_BYTES}\n"
    out += f'.amdgcn_target "amdgcn-amd-amdhsa--gfx950"\n.text\n.globl {NAME}_kernel\n'
    out += body
    out += f""".section .rodata,"a"
.p2align 6
.amdhsa_kernel {NAME}_kernel
  .amdhsa_next_free_vgpr 256
  .amdhsa_next_free_sgpr 102
  .amdhsa_accum_offset 256
  .amdhsa_group_segment_fixed_size 0
  .amdhsa_kernarg_size 136
  .amdhsa_user_sgpr_count 2
  .amdhsa_user_sgpr_kernarg_segment_ptr 1
  .amdhsa_system_sgpr_workgroup_id_x 1
.end_amdhsa_kernel
"""
    return out

def generate(o):
    return wrap("\n".join(finalize(kernel(o), o)) + "\n", o)

if __name__ == "__main__":
    o = Opt()
    path = f"cdna_kernels/{NAME}.s"
    for arg in sys.argv[1:]:
        k, v = arg.split("=", 1)
        if k == "out":
            path = v
        else:
            cur = getattr(o, k)
            setattr(o, k, type(cur)(int(v)) if isinstance(cur, (bool, int)) else tuple(int(x) for x in v.split(",")) if isinstance(cur, tuple) else v)
    open(path, "w").write(generate(o))
    print("wrote", path)
```

```python
import sys

NAME = "gated_mix__ssm_conv_s5__glu_gated_swiglu__prompt"

class Opt:
    stamps = 0
    map1 = "2x4"
    map2 = "4x2"
    out_store = "nt"
    poll_sleep = 4
    warm = False
    vwarm = 0
    lwarm = (0,)
    hprio = 2
    look_l = 3
    look_c = 4
    mstep = 11
    ltog = 0
    peel = 1
    cuts_f = (12, 22, 42)
    thr_f = 0
    b9b = 7
    speel = 0
    apos = 20
    sfill = 8
    sb10 = 11
    spad = 0
    cwait = 1
    spoll = 1
    apoll = 0
    tlb = 0
    vlook = 8
    gate = 1
    xstage = 0
    dbg_nomfma = 0
    dbg_sameh = 0
    opoll = 2
    fullflag = 1
    cuts_v = (12, 24, 35, 45)
    thr_v = 4
    lfirst = 1
    rot2 = 0
    rot = 10
    rotm = 0
    rots = 1
    rotq = 8
    rotx = 6
    barpos = 2
    b9_back = 2
    epi_pk = 0
    fill_max = 10
    hops = 0
    align = 3
    hopsched = (3, 4, 5)
    ab = 1
    lead = 3
    cwarm = 2
    codepf = 1
    dspan = 0
    hst = "sc1"
    hld = "sc1"
    throttle = 0
    early_w = False
    cuts_l = (16, 34)
    cuts_h = (16, 34)
    hsched = (0, 1, 1, 3)
    thr_e = 6
    thr_t = 4
    pre_y = 0
    thr_y = 2
    lprio = 0
    agg_sleep = 1
    use_y = 0
    ssm_early = 1
    cprio = 3
    cprio2 = 0

HP_OFF  = 0
HP_SIZE = 94 * 128 * 1024
W2_OFF  = 0xC00000
W2_SIZE = 94 * 40 * 1024
HK = 4096
HT = 94 * HK
WK = 5120
WT = 94 * WK
G_OFF   = 0x1000000
G_SIZE  = 2048 * 8
AGG_OFF = 0x1010000
AGG_SIZE = 160 * 1024
FH_OFF  = 0x1040000
FH_SIZE = 32 * 8192
FW_OFF  = 0x1080000
FW_SIZE = 256 * 128
ST_OFF  = 0x1100000
ST_SIZE = 0x100000

LOG2E = 0x3fb8aa3b
NLOG2E = 0xbfb8aa3b
SPIN_MAX = 0x40000

class Asm:
    def __init__(self):
        self.l = []
    def __call__(self, s):
        self.l.append("    " + s)
    def label(self, s):
        self.l.append(s + ":")
    def c(self, s):
        self.l.append("    ; " + s)
    def raw(self, s):
        self.l.append(s)
    def text(self):
        return "\n".join(self.l) + "\n"
    def seg(self, name):
        self.l.append(("SEG", name))
    _uid = 0
    def uid(self):
        self._uid += 1
        return self._uid

class VM:
    def __init__(self, a):
        self.a = a; self.q = []
    def op(self, ins, tag=None):
        self.a(ins); self.q.append(tag)
    def wait(self, *tags):
        last = max(i for i, t in enumerate(self.q) if t in tags)
        n = len(self.q) - 1 - last
        assert n <= 63, n
        self.a(f"s_waitcnt vmcnt({n})")
    def drain(self):
        self.a("s_waitcnt vmcnt(0)"); self.q = []

def vr(b, n=1, p="v"):
    return f"{p}{b}" if n == 1 else f"{p}[{b}:{b+n-1}]"

def srd(a, d, base, size, off=0):
    if off:
        a(f"s_add_u32 s{d}, s{base}, {off:#x}")
        a(f"s_addc_u32 s{d+1}, s{base+1}, 0")
    else:
        a(f"s_mov_b32 s{d}, s{base}")
        a(f"s_mov_b32 s{d+1}, s{base+1}")
    a(f"s_mov_b32 s{d+2}, {size:#x}")
    a(f"s_mov_b32 s{d+3}, 0x20000")

P_X, P_LRE, P_LIM, P_BRE, P_BIM, P_CRE, P_CIM, P_LDT = 4, 6, 8, 10, 12, 14, 16, 18
P_DSK, P_BX, P_W1, P_W3, P_W2, P_GW, P_OUT, P_DBG, P_WS = 20, 22, 24, 26, 28, 30, 32, 34, 36

def stamp(a, o, slot):
    if not o.stamps or (8 <= slot < 32 and o.stamps != 2):
        return
    a("s_memrealtime s[92:93]")
    a("s_waitcnt lgkmcnt(0)")
    a(f"v_writelane_b32 v254, s92, {slot}")
def stamp_dyn(a, o, slot, sreg, mul):
    if not o.stamps:
        return
    a("s_memrealtime s[92:93]")
    a("s_waitcnt lgkmcnt(0)")
    a(f"s_mul_i32 s93, s{sreg}, {mul}")
    a(f"s_add_u32 s93, s93, {slot}")
    a("s_mov_b32 m0, s93")
    a("v_writelane_b32 v254, s92, m0")
def stamp_clk(a, o, slot):
    if not o.stamps:
        return
    a("s_memtime s[92:93]")
    a("s_waitcnt lgkmcnt(0)")
    a(f"v_writelane_b32 v254, s92, {slot}")
def dmark(a, o, slot, inv=False, tv=252):
    if not o.dspan:
        return
    srd(a, 96, P_DBG, 256)
    a("s_memrealtime s[92:93]")
    a("s_waitcnt lgkmcnt(0)")
    if inv:
        a("s_not_b32 s92, s92")
    a("v_mov_b32 v254, s92")
    a("v_mov_b32 v255, 0")
    a("s_mov_b64 exec, 1")
    a(f"buffer_atomic_umax v254, v255, s[96:99], 0 offen offset:{slot*4} sc1")
    a("s_mov_b64 exec, -1")

def stamp_setup(a, o):
    if not o.stamps:
        return
    a("v_mov_b32 v254, 0")
    a("s_lshl_b32 s91, s2, 3")
    a("s_add_u32 s91, s91, s38")
    a("s_lshl_b32 s91, s91, 8")
    a("v_lshlrev_b32 v255, 2, v0")
    stamp_clk(a, o, 62)
def stamp_flush(a, o):
    if not o.stamps:
        return
    a("s_waitcnt vmcnt(0)")
    stamp(a, o, 61)
    stamp_clk(a, o, 63)
    srd(a, 96, P_WS, ST_SIZE, ST_OFF)
    a("buffer_store_dword v254, v255, s[96:99], s91 offen")

LDS_BYTES = 163840
F_UP = 10368
XS = 32768
WB = 3 * XS
F_WS = 20736
S_WS = 16384
S_DUMMY = WB + 3 * S_WS
NONCE_LDS = 163832
CREG = 30720
S_TR = 122880
S_AGG = 159744
SFLAG_LDS = 160512
slot_of = lambda stage: (stage + 2) % 3

def kernel(o):
    a = Asm()
    a.raw(".p2align 8")
    a.raw(f".type {NAME}_kernel,@function")
    a.label(f"{NAME}_kernel")
    a("s_cmp_ge_u32 s2, 256")
    a("s_cbranch_scc1 L_end")
    a("s_load_dwordx16 s[4:19], s[0:1], 0")
    a("s_load_dwordx16 s[20:35], s[0:1], 64")
    a("s_load_dwordx2 s[36:37], s[0:1], 128")
    a("v_lshrrev_b32 v1, 6, v0")
    a("v_and_b32 v0, 63, v0")
    a("v_readfirstlane_b32 s38, v1")
    a("s_and_b32 s42, s2, 7")
    a("s_lshr_b32 s43, s2, 3")
    if o.map1 == "2x4":
        a("s_and_b32 s39, s42, 1")
        a("s_lshl_b32 s39, s39, 2")
        a("s_and_b32 s44, s43, 3")
        a("s_add_u32 s39, s39, s44")
        a("s_lshr_b32 s48, s42, 1")
        a("s_lshr_b32 s49, s43, 2")
        a("s_lshr_b32 s44, s48, 1")
        a("s_sub_u32 s44, 6, s44")
        a("s_max_u32 s45, s48, 2")
        a("s_sub_u32 s45, s45, 2")
        a("s_mul_i32 s46, s48, 6")
        a("s_sub_u32 s46, s46, s45")
        a("s_add_u32 s46, s46, s49")
        a("s_lshl_b32 s47, s48, 1")
        a("s_add_u32 s47, s47, s45")
        a("s_add_u32 s47, s47, s49")
        a("s_sub_u32 s47, s47, s44")
        a("s_cmp_ge_u32 s49, s44")
        a("s_cselect_b32 s40, s47, s46")
        a("s_cselect_b32 s41, 1, 0")
    elif o.map1 == "4x2":
        a("s_and_b32 s39, s42, 3")
        a("s_lshl_b32 s39, s39, 1")
        a("s_and_b32 s44, s43, 1")
        a("s_add_u32 s39, s39, s44")
        a("s_lshr_b32 s48, s42, 2")
        a("s_lshr_b32 s49, s43, 1")
        a("s_mul_i32 s46, s48, 11")
        a("s_add_u32 s46, s46, s49")
        a("s_mul_i32 s47, s48, 5")
        a("s_add_u32 s47, s47, s49")
        a("s_sub_u32 s47, s47, 11")
        a("s_cmp_ge_u32 s49, 11")
        a("s_cselect_b32 s40, s47, s46")
        a("s_cselect_b32 s41, 1, 0")
    elif o.map1 == "8x1":
        a("s_mov_b32 s39, s42")
        a("s_sub_u32 s47, s43, 22")
        a("s_cmp_ge_u32 s43, 22")
        a("s_cselect_b32 s40, s47, s43")
        a("s_cselect_b32 s41, 1, 0")
    if o.map2 == "4x2":
        a("s_lshr_b32 s44, s42, 1")
        a("s_lshl_b32 s44, s44, 3")
        a("s_and_b32 s45, s43, 7")
        a("s_and_b32 s46, s42, 1")
        a("s_lshl_b32 s46, s46, 2")
        a("s_lshr_b32 s47, s43, 3")
        a("s_add_u32 s42, s44, s45")
        a("s_add_u32 s43, s46, s47")
    elif o.map2 == "8x1":
        a("s_lshl_b32 s42, s42, 2")
        a("s_and_b32 s44, s43, 3")
        a("s_add_u32 s42, s42, s44")
        a("s_lshr_b32 s43, s43, 2")
    a("s_and_b32 s90, s38, 3")
    a("s_add_u32 s101, s42, s43")
    a(f"s_and_b32 s101, s101, {o.rot2}")
    if o.rot:
        a("s_mul_i32 s44, s41, 22")
        a("s_add_u32 s44, s44, s40")
        a(f"s_mul_i32 s44, s44, {o.rots}")
        if o.rotx:
            a("s_and_b32 s44, s2, 7")
            if o.rotx == 99:
                a("s_lshr_b32 s45, s44, 2")
                a("s_and_b32 s44, s44, 3")
                a("s_mul_i32 s44, s44, 5")
                a("s_lshr_b32 s44, s44, 1")
                a("s_mul_i32 s45, s45, 5")
                a("s_add_u32 s44, s44, s45")
            else:
                a(f"s_mul_i32 s44, s44, {o.rotx}")
        a(f"s_mul_i32 s45, s41, {o.rotq}")
        a("s_add_u32 s44, s44, s45")
        a(f"s_mul_i32 s45, s39, {o.rotm}")
        a("s_add_u32 s44, s44, s45")
        a(f"s_mul_i32 s45, s44, {65536 // o.rot + 1}")
        a("s_lshr_b32 s45, s45, 16")
        a(f"s_mul_i32 s45, s45, {o.rot}")
        a("s_sub_u32 s44, s44, s45")
        a(f"s_mul_i32 s3, s44, {10 // o.rot}")
    else:
        a("s_mov_b32 s3, 0")
    stamp_setup(a, o)
    stamp(a, o, 0)
    def compute_part():
        a("s_waitcnt lgkmcnt(0)")
        a("s_cmp_eq_u32 s41, 1")
        a("s_cbranch_scc1 L_ssm")
        p1_ffn(a, o)
        a.seg("pc")
        a.label("L_p2c")
        p2(a, o, False)
        a.seg(None)
        a.label("L_ssm")
        p1_ssm(a, o)
        a.seg(None)
    def loader_part():
        a.label("L_loader")
        p1_loader(a, o)
        p2(a, o, True)
        a.seg(None)
    if o.lfirst:
        a("s_cmp_lt_u32 s38, 4")
        a("s_cbranch_scc1 L_compute")
        loader_part()
        a.label("L_compute")
        compute_part()
    else:
        a("s_cmp_ge_u32 s38, 4")
        a("s_cbranch_scc1 L_loader")
        compute_part()
        loader_part()
    a.label("L_end")
    a("s_endpgm")
    a.label("L_codeend")
    return a

def warm_setup(a, o):
    if not o.warm:
        return
    a("s_cmp_ge_u32 s90, 2")
    a(f"s_cbranch_scc1 Lw_xb{a.uid()}")
    u = a._uid
    a("s_and_b32 s44, s2, 1")
    a("s_cmp_eq_u32 s44, 0")
    a(f"s_cselect_b32 s94, s{P_W1}, s{P_W3}")
    a(f"s_cselect_b32 s95, s{P_W1+1}, s{P_W3+1}")
    a("s_lshr_b32 s44, s2, 1")
    a("s_mul_i32 s44, s44, 1728")
    a(f"s_mul_i32 s45, s90, {13*64}")
    a("s_add_u32 s44, s44, s45")
    a(f"s_mov_b32 s88, {64*3456}")
    a(f"s_branch Lw_set{u}")
    a.label(f"Lw_xb{u}")
    a("s_cmp_lt_u32 s2, 128")
    a(f"s_cselect_b32 s94, s{P_BRE}, s{P_BIM}")
    a(f"s_cselect_b32 s95, s{P_BRE+1}, s{P_BIM+1}")
    a("s_and_b32 s44, s2, 127")
    a(f"s_mul_i32 s44, s44, {5*1280}")
    a(f"s_mul_i32 s45, s2, {8*1280}")
    a("s_cmp_eq_u32 s90, 2")
    a(f"s_cselect_b32 s94, s{P_X}, s94")
    a(f"s_cselect_b32 s95, s{P_X+1}, s95")
    a("s_cselect_b32 s44, s45, s44")
    a("s_movk_i32 s88, 128")
    a.label(f"Lw_set{u}")
    a("s_add_u32 s94, s94, s44")
    a("s_addc_u32 s95, s95, 0")

def warm_skip(a, o, n):
    if not o.warm:
        return
    a(f"s_mul_i32 s44, s88, {n}")
    a("s_add_u32 s94, s94, s44")
    a("s_addc_u32 s95, s95, 0")

def warm_ops(o, kind):
    if not o.warm:
        return []
    if kind == "w":
        offs = [i * 64 for i in range(14)]
    else:
        offs = [r * 1280 + h * 64 for r in range(8 if kind == "x" else 5) for h in range(2)]
    return [f"s_load_dword s89, s[94:95], {x}" for x in offs] + ["s_add_u32 s94, s94, s88", "s_addc_u32 s95, s95, 0"]

def warm_stage_any(a, o, nst):
    if not o.warm:
        return
    u = a.uid()
    a("s_cmp_ge_u32 s90, 2")
    a(f"s_cbranch_scc1 Lv_xb{u}")
    for _ in range(nst):
        for i in warm_ops(o, "w"): a(i)
    a(f"s_branch Lv_e{u}")
    a.label(f"Lv_xb{u}")
    warm_stage_xb(a, o, nst)
    a.label(f"Lv_e{u}")

def warm_stage_xb(a, o, nst):
    if not o.warm:
        return
    for _ in range(nst):
        u = a.uid()
        ops = warm_ops(o, "x")
        for i in ops[:10]: a(i)
        a("s_cmp_eq_u32 s90, 3")
        a(f"s_cbranch_scc1 Lv_b{u}")
        for i in ops[10:16]: a(i)
        a.label(f"Lv_b{u}")
        for i in ops[16:]: a(i)

def loop_stamp_flush(a, o):
    if o.stamps in (1, 2):
        a("s_add_u32 m0, s52, 8")
        a("v_writelane_b32 v254, s94, m0")
        a("s_add_u32 m0, s52, 20")
        a("v_writelane_b32 v254, s92, m0")

def ring_advance(a, o, ws, xregs, wregs):
    a("s_add_u32 s52, s52, 1")
    a("s_add_u32 s53, s53, 1")
    a("s_cmp_eq_u32 s53, 3")
    a(f"s_cselect_b32 s54, {-2*XS & 0xffffffff:#x}, s55")
    a(f"s_cselect_b32 s56, {-2*ws & 0xffffffff:#x}, s57")
    a("s_cselect_b32 s53, 0, s53")
    for v in xregs:
        a(f"v_add_u32 v{v}, s54, v{v}")
    for v in wregs:
        a(f"v_add_u32 v{v}, s56, v{v}")
    if o.stamps:
        a("s_memrealtime s[94:95]")
    a("s_barrier")
    if o.stamps:
        a("s_memrealtime s[92:93]")

def fw_setup(a):
    srd(a, 60, P_WS, FW_SIZE, FW_OFF)
    a("s_mul_i32 s44, s43, 80")
    a("s_add_u32 s45, s44, 79")
    a("s_lshr_b32 s44, s44, 7")
    a("s_lshr_b32 s45, s45, 7")
    a("s_mul_i32 s44, s44, 47")
    a("s_mul_i32 s45, s45, 47")
    a("s_add_u32 s45, s45, 46")
    a("v_add_u32 v26, s44, v0")
    a("v_add_u32 v27, 64, v26")
    a("v_min_u32 v26, s45, v26")
    a("v_min_u32 v27, s45, v27")
    a("v_lshlrev_b32 v26, 7, v26")
    a("v_lshlrev_b32 v27, 7, v27")
def fw_load(a):
    a("buffer_load_dword v24, v26, s[60:63], 0 offen sc1")
    a("buffer_load_dword v25, v27, s[60:63], 0 offen sc1")
def fw_test(a):
    a("s_waitcnt vmcnt(0)")
    a("v_xor_b32 v24, s64, v24")
    a("v_xor_b32 v25, s64, v25")
    a("v_or_b32 v24, v24, v25")
    a("v_cmp_ne_u32 vcc, 0, v24")
    a("s_cmp_eq_u64 vcc, 0")
def fw_check(a):
    u = a.uid()
    a("s_mov_b32 s72, 0")
    a.label(f"Lfw_poll{u}")
    fw_load(a)
    fw_test(a)
    a(f"s_cbranch_scc1 Lfw_got{u}")
    a("s_sleep 12")
    a("s_add_u32 s72, s72, 1")
    a(f"s_cmp_lt_u32 s72, {SPIN_MAX:#x}")
    a(f"s_cbranch_scc1 Lfw_poll{u}")
    a.label(f"Lfw_got{u}")

C_WR = 16; C_ACC = 96; C_H = 176; C_WL = 224
C_RSTEPS = (0, 1, 8, 9)
def c_wsetup(a):
    srd(a, 52, P_WS, W2_SIZE, W2_OFF)
    a("s_mul_i32 s74, s90, 10")
    a("s_add_u32 s74, s74, 54")
    a(f"s_mul_i32 s76, s74, {WK}")
    a(f"s_mul_i32 s77, s43, {WT}")
    a("s_add_u32 s76, s76, s77")
    a(f"s_mul_i32 s77, s101, {5*WK}")
    a("s_add_u32 s76, s76, s77")
    a(f"s_mul_i32 s75, s101, {-10*WK}")
    a(f"s_add_u32 s75, s75, {7*WK}")
    a("s_add_u32 s77, s76, 4096")
    a("v_lshlrev_b32 v12, 4, v0")
def c_wload(a, k):
    for i in range(5):
        a(f"buffer_load_dwordx4 {vr(C_WR + k*20 + i*4, 4)}, v12, s[52:55], s{76 + (i >> 2)} offen offset:{(i & 3)*1024} sc1")
    if k < 3:
        d = (C_RSTEPS[k+1] - C_RSTEPS[k]) * WK if k != 1 else "s75"
        a(f"s_add_u32 s76, s76, {d}")
        a(f"s_add_u32 s77, s77, {d}")

class Lds:
    def __init__(self, a):
        self.a = a; self.q = []; self.done = 0
    def op(self, ins, tag):
        self.a(ins); self.q.append(tag)
    def pending(self):
        return len(self.q) - self.done
    def wait(self, *tags):
        last = max(i for i, t in enumerate(self.q) if t in tags)
        if last + 1 > self.done:
            n = len(self.q) - 1 - last
            assert n <= 15
            self.a(f"s_waitcnt lgkmcnt({n})")
            self.done = last + 1

def k_loop(a, o, label, reads, needs_of, mfma_of, nm, adv, nonce, cnt):
    a.label(label)
    lds = Lds(a)
    lds.q = [(0, t) for _, t in reads(0, 0)]
    for sub in range(4):
        buf = sub & 1
        nxt = list(reads(buf ^ 1, (sub + 1) & 3))
        if sub == 0 and (o.stamps in (1, 2)):
            a("s_waitcnt lgkmcnt(0)")
            loop_stamp_flush(a, o)
        extra = list(adv) if sub == 3 else []
        go = sub != 3
        for n in range(nm):
            if o.cwait:
                lds.wait(*[(sub, t) for t in needs_of(n)])
            elif n == 0:
                a("s_waitcnt lgkmcnt(0)"); lds.done = len(lds.q)
            a(mfma_of(buf, n))
            if sub == 3 and not go:
                k = -(-len(extra) // max(1, o.barpos + 1 - n))
                for _ in range(min(k, len(extra))):
                    a(extra.pop(0))
                if n == o.barpos:
                    if lds.pending():
                        a("s_waitcnt lgkmcnt(0)"); lds.done = len(lds.q)
                    if (o.stamps in (1, 2)):
                        a("s_memrealtime s[94:95]")
                    a("s_barrier")
                    if (o.stamps in (1, 2)):
                        a("s_memrealtime s[92:93]")
                    go = True
            if go:
                for _ in range(2):
                    if nxt and lds.pending() < 13:
                        ins, t = nxt.pop(0)
                        lds.op(ins, (sub + 1, t))
            if sub == 0 and n == nm - 1:
                lds.op(nonce, "n")
        assert not nxt, (label, sub, len(nxt))
    a(f"s_cmp_lt_u32 s52, {cnt}")
    a(f"s_cbranch_scc1 {label}")

def ring_ops(ws, xregs, wregs):
    return ["s_add_u32 s52, s52, 1", "s_add_u32 s53, s53, 1",
            f"s_cmp_eq_u32 s53, 3\n    s_cselect_b32 s54, {-2*XS & 0xffffffff:#x}, s55\n    s_cselect_b32 s56, {-2*ws & 0xffffffff:#x}, s57\n    s_cselect_b32 s53, 0, s53"] + \
           [f"v_add_u32 v{v}, s54, v{v}" for v in xregs] + [f"v_add_u32 v{v}, s56, v{v}" for v in wregs]

def ffn_peel(a, o, acc, fa, fb, VX, VW, VN):
    a.seg("fe")
    lds = Lds(a)
    reg = {}
    for mi in range(2):
        reg["x", 0, mi] = fb(0, mi); lds.q.append(("x", 0, mi))
    for j in range(5):
        reg["w", j, 0] = fa(0, j); lds.q += [("w", j, 0)] * 2
    if o.stamps:
        a("s_waitcnt lgkmcnt(0)")
        loop_stamp_flush(a, o)
    free = [fb(1, 0), fb(1, 1)] + [fa(1, j) for j in range(5)] + [232 + 4 * i for i in range(5)]
    mf = [(j, 0) for j in range(5)] + [(j, kk) for kk in (1, 2, 3) for j in (0, 1)]
    n1 = len(mf)
    mf += [(j, kk) for j in (0, 1) for kk in range(4, 8)] + [(j, kk) for j in (2, 3, 4) for kk in range(1, 8)]
    needs = []
    for j, kk in mf:
        for t in (("x", kk, 0), ("x", kk, 1), ("w", j, kk)):
            if t not in reg and t not in needs:
                needs.append(t)
    last_use = {}
    for n, (j, kk) in enumerate(mf):
        last_use["x", kk, 0] = last_use["x", kk, 1] = last_use["w", j, kk] = n
    passed9 = [False]
    def try_read():
        if not needs or not free or lds.pending() > 11:
            return False
        t = needs[0]
        kk = t[1] if t[0] == "x" else t[2]
        if kk >= 4 and not passed9[0]:
            return False
        needs.pop(0)
        r = reg[t] = free.pop(0)
        if t[0] == "x":
            lds.op(f"ds_read_b128 {vr(r, 4)}, v{VX + (kk & 3)} offset:{(kk >> 2)*XS + t[2]*4096}", t)
        else:
            for half in range(2):
                lds.op(f"ds_read_b64_tr_b16 {vr(r + 2*half, 2)}, v{VW} offset:{(kk >> 2)*F_WS + (kk & 3)*2560 + half*640 + t[1]*32}", t)
        return True
    pre = [f"v_readfirstlane_b32 s64, v{VN}", f"s_mov_b32 s56, {NLOG2E:#x}", f"s_mov_b32 s57, {NLOG2E:#x}", "s_mul_i32 s58, s40, 5",
           "s_lshl_b32 s59, s39, 2", "s_add_u32 s59, s59, s38", f"s_mul_i32 s59, s59, {HT}", f"s_add_u32 s59, s59, {40*HK}"]
    for j in range(5):
        pre += [f"s_add_u32 s60, s58, {j}", "s_lshr_b32 s61, s60, 1", "s_lshl_b32 s61, s61, 12", "s_and_b32 s60, s60, 1",
                "s_lshl_b32 s60, s60, 9", "s_add_u32 s61, s61, s60", f"s_add_u32 s{68+j}, s61, s59"]
    pre += ["s_cmp_eq_u32 s40, 21\n    s_cselect_b32 s71, 0x40000000, s71\n    s_cselect_b32 s72, 0x40000000, s72"]
    def epi(j, pk):
        r = []
        for mi in range(2):
            g = acc(j, mi); u = g + 8
            if pk:
                r += [f"v_pk_mul_f32 {vr(u+2*p, 2)}, {vr(g+2*p, 2)}, {vr(u+2*p, 2)}" for p in range(4)]
                r += [f"v_pk_mul_f32 {vr(g+2*p, 2)}, {vr(g+2*p, 2)}, s[56:57]" for p in range(4)]
            else:
                r += [f"v_mul_f32 v{u+p}, v{g+p}, v{u+p}" for p in range(8)]
                r += [f"v_mul_f32 v{g+p}, s56, v{g+p}" for p in range(8)]
            r += [f"v_exp_f32 v{g+p}, v{g+p}" for p in range(8)]
            if pk:
                r += ["s_nop 0"] + [f"v_pk_add_f32 {vr(g+2*p, 2)}, {vr(g+2*p, 2)}, 1.0 op_sel_hi:[1,0]" for p in range(4)]
            else:
                r += [f"v_add_f32 v{g+p}, 1.0, v{g+p}" for p in range(8)]
            r += [f"v_rcp_f32 v{g+p}, v{g+p}" for p in range(8)]
            if pk:
                r += ["s_nop 0"] + [f"v_pk_mul_f32 {vr(u+2*p, 2)}, {vr(u+2*p, 2)}, {vr(g+2*p, 2)}" for p in range(4)]
            else:
                r += [f"v_mul_f32 v{u+p}, v{u+p}, v{g+p}" for p in range(8)]
            r += [f"v_cvt_pk_bf16_f32 v{g+p}, v{u+2*p}, v{u+2*p+1}" for p in range(4)]
            r += [f"buffer_store_dwordx4 {vr(g, 4)}, v9, s[48:51], s{68+j} offen offset:{mi*2048} {o.hst}"]
        return r
    fill = list(pre)
    done_at = {j: max(n for n, (jj, kk) in enumerate(mf) if jj == j) for j in range(5)}
    pend = []
    barred10 = False
    for n, (j, kk) in enumerate(mf):
        for mi in range(2):
            while any(t not in reg for t in (("x", kk, mi), ("w", j, kk))):
                assert try_read(), (n, j, kk, free, needs[:3])
            lds.wait(("x", kk, mi), ("w", j, kk))
            a(f"v_mfma_f32_32x32x16_bf16 {vr(acc(j, mi), 16)}, {vr(reg['w', j, kk], 4)}, {vr(reg['x', kk, mi], 4)}, {vr(acc(j, mi), 16)}")
            if last_use["x", kk, mi] == n:
                free.append(reg["x", kk, mi])
            if mi == 1:
                free.append(reg["w", j, kk])
            if n == n1 - o.b9_back and mi == 0:
                lds.wait(*[("x", k2, m2) for k2 in range(4) for m2 in range(2)])
                a("s_barrier")
                passed9[0] = True
            try_read()
            if n < n1 + 4:
                try_read()
            if n == n1 + o.b9b and mi == 0:
                lds.wait(*[("x", k2, m2) for k2 in range(8) for m2 in range(2)])
                a("s_barrier")
            if not needs and not barred10 and lds.pending() == 0:
                a("s_barrier")
                barred10 = True
            while pend and len(a.l) >= pend[0][0] and not fill:
                fill = epi(pend.pop(0)[1], o.epi_pk)
            nxt = min(d for d in done_at.values() if d >= n)
            left = (nxt - n) * 2 + (1 - mi) + 1
            k = min(-(-len(fill) // left), o.fill_max)
            for _ in range(min(k, len(fill))):
                a(fill.pop(0))
        if done_at[j] == n:
            pend.append((len(a.l) + 14, j))
        if n == n1:
            a(f"s_setprio {o.cprio}")
    assert barred10 and passed9[0]
    stamp(a, o, 2); stamp_clk(a, o, 59)
    for x in fill:
        a(x)
    c_wsetup(a)
    a("s_nop 7")
    for _, j in pend:
        for x in epi(j, True):
            a(x)

def p1_ffn(a, o):
    ACC = 16; FA = 176; FB = 216; VX = 4; VW = 8; VN = 10
    acc = lambda j, mi: ACC + (j * 2 + mi) * 16
    fa = lambda b, j: FA + b * 20 + j * 4
    fb = lambda b, mi: FB + b * 8 + mi * 4
    s0 = WB + slot_of(0) * F_WS
    a.c("FFN compute wave: D[f][m] = W^T X^T")
    a("v_and_b32 v1, 31, v0")
    a("v_lshrrev_b32 v2, 5, v0")
    a("v_bfe_u32 v3, v0, 1, 3")
    a("v_xor_b32 v3, v3, v2")
    a("v_lshlrev_b32 v3, 4, v3")
    a("v_lshl_add_u32 v3, v1, 7, v3")
    a("s_lshl_b32 s44, s38, 13")
    a(f"s_add_u32 s44, s44, {slot_of(0) * XS}")
    a(f"v_add_u32 v{VX}, s44, v3")
    for sub in range(1, 4):
        a(f"v_xor_b32 v{VX+sub}, {sub*32}, v{VX}")
    a("v_bfe_u32 v1, v0, 4, 1")
    a(f"v_mul_u32_u24 v1, {F_UP}, v1")
    a("v_lshlrev_b32 v2, 3, v2")
    a("v_bfe_u32 v3, v0, 2, 2")
    a("v_add_u32 v2, v2, v3")
    a("v_mul_u32_u24 v2, 160, v2")
    a("v_add_u32 v1, v1, v2")
    a("v_and_b32 v2, 1, v0")
    a("v_lshlrev_b32 v2, 4, v2")
    a("v_add_u32 v1, v1, v2")
    a("v_bfe_u32 v2, v0, 1, 1")
    a("v_lshlrev_b32 v2, 3, v2")
    a("v_add_u32 v1, v1, v2")
    a(f"v_add_u32 v{VW}, {s0}, v1")
    a(f"v_mov_b32 v{VN+1}, {NONCE_LDS}")
    for r in range(ACC, ACC + 160):
        a(f"v_mov_b32 v{r}, 0")
    warm_stage_any(a, o, 1)
    srd(a, 48, P_WS, HP_SIZE, HP_OFF)
    a("v_bfe_u32 v1, v0, 4, 1")
    a("v_lshlrev_b32 v1, 10, v1")
    a("v_lshrrev_b32 v2, 5, v0")
    a("v_lshlrev_b32 v2, 8, v2")
    a("v_and_b32 v3, 15, v0")
    a("v_lshlrev_b32 v3, 4, v3")
    a("v_add3_u32 v9, v1, v2, v3")
    a("s_mov_b32 s52, 0")
    a(f"s_mov_b32 s53, {slot_of(0)}")
    a(f"s_mov_b32 s55, {XS}")
    a(f"s_mov_b32 s57, {F_WS}")

    def reads(buf, sub):
        r = []
        for mi in range(2):
            r.append(f"ds_read_b128 {vr(fb(buf, mi), 4)}, v{VX+sub} offset:{mi*4096}")
        for j in range(5):
            for half in range(2):
                r.append(f"ds_read_b64_tr_b16 {vr(fa(buf, j)+2*half, 2)}, v{VW} offset:{sub*2560 + half*640 + j*32}")
        return r
    a("s_barrier")
    stamp_clk(a, o, 58); stamp(a, o, 1)
    if o.stamps:
        a("s_mov_b32 s94, s92")
    for r in reads(0, 0):
        a(r)
    tags = [("b", 0), ("b", 1)] + [("a", j) for j in range(5) for _ in range(2)]
    k_loop(a, o, "Lf_loop", lambda b, sb: list(zip(reads(b, sb), tags)), lambda n: [("a", n >> 1), ("b", n & 1)],
           lambda buf, n: f"v_mfma_f32_32x32x16_bf16 {vr(acc(n >> 1, n & 1), 16)}, {vr(fa(buf, n >> 1), 4)}, {vr(fb(buf, n & 1), 4)}, {vr(acc(n >> 1, n & 1), 16)}",
           10, ring_ops(F_WS, range(VX, VX + 4), [VW]), f"ds_read_b32 v{VN}, v{VN+1}", 8 if o.peel else 10)
    if o.peel:
        ffn_peel(a, o, acc, fa, fb, VX, VW, VN)
    else:
        a.seg("fe")
        a("s_waitcnt lgkmcnt(0)")
        loop_stamp_flush(a, o)
        stamp(a, o, 2); stamp_clk(a, o, 59)
        a(f"s_setprio {o.cprio}")
        a(f"v_readfirstlane_b32 s64, v{VN}")
        a(f"s_mov_b32 s56, {NLOG2E:#x}")
        a(f"s_mov_b32 s57, {NLOG2E:#x}")
        a("s_mul_i32 s58, s40, 5")
        a("s_lshl_b32 s59, s39, 2")
        a("s_add_u32 s59, s59, s38")
        a(f"s_mul_i32 s59, s59, {HT}")
        a(f"s_add_u32 s59, s59, {40*HK}")
        c_wsetup(a)
        T = FA
        for j in range(5):
            for k in {1: (0,), 2: (1, 2), 3: (3,)}.get(j, ()) if o.early_w else ():
                c_wload(a, k)
            if j == 3:
                a("s_cmp_eq_u32 s40, 21")
                a("s_cbranch_scc1 Lf_done")
            a(f"s_add_u32 s60, s58, {j}")
            a("s_lshr_b32 s61, s60, 1")
            a("s_lshl_b32 s61, s61, 12")
            a("s_and_b32 s60, s60, 1")
            a("s_lshl_b32 s60, s60, 9")
            a("s_add_u32 s61, s61, s60")
            a("s_add_u32 s62, s61, s59")
            for mi in range(2):
                g = acc(j, mi); u = g + 8
                t = T + ((j * 2 + mi) & 1) * 12
                for p in range(4):
                    a(f"v_pk_mul_f32 {vr(t+2*p, 2)}, {vr(g+2*p, 2)}, s[56:57]")
                for p in range(8):
                    a(f"v_exp_f32 v{t+p}, v{t+p}")
                for p in range(4):
                    a(f"v_pk_mul_f32 {vr(g+2*p, 2)}, {vr(g+2*p, 2)}, {vr(u+2*p, 2)}")
                for p in range(4):
                    a(f"v_pk_add_f32 {vr(t+2*p, 2)}, {vr(t+2*p, 2)}, 1.0 op_sel_hi:[1,0]")
                for p in range(8):
                    a(f"v_rcp_f32 v{t+p}, v{t+p}")
                a("s_nop 0")
                for p in range(4):
                    a(f"v_pk_mul_f32 {vr(g+2*p, 2)}, {vr(g+2*p, 2)}, {vr(t+2*p, 2)}")
                for p in range(4):
                    a(f"v_cvt_pk_bf16_f32 v{t+8+p}, v{g+2*p}, v{g+2*p+1}")
                a(f"buffer_store_dwordx4 {vr(t+8, 4)}, v9, s[48:51], s62 offen offset:{mi*2048} {o.hst}")
    a.label("Lf_done")
    stamp(a, o, 3)
    a("s_lshl_b32 s65, s39, 2")
    a("s_add_u32 s65, s65, s38")
    a("s_lshl_b32 s65, s65, 13")
    a("s_lshl_b32 s66, s40, 7")
    a("s_add_u32 s65, s65, s66")
    a("s_mov_b32 s66, -1" if o.fullflag else "s_mov_b32 s66, 1")
    a("s_mov_b32 s67, 0")
    a("v_lshlrev_b32 v2, 2, v0")

def cmul(a, dr, di, ar, ai, br, bi, t):
    a(f"v_mul_f32 v{t}, v{ar}, v{br}")
    a(f"v_mul_f32 v{t+1}, v{ar}, v{bi}")
    a(f"v_fma_f32 v{t}, -v{ai}, v{bi}, v{t}")
    a(f"v_fma_f32 v{di}, v{ai}, v{br}, v{t+1}")
    a(f"v_mov_b32 v{dr}, v{t}")

def cfma(a, dr, di, ar, ai, br, bi, cr, ci):
    a(f"v_fma_f32 v{dr}, v{ar}, v{br}, v{cr}")
    a(f"v_fma_f32 v{di}, v{ar}, v{bi}, v{ci}")
    a(f"v_fma_f32 v{dr}, -v{ai}, v{bi}, v{dr}")
    a(f"v_fma_f32 v{di}, v{ai}, v{br}, v{di}")

def p1_ssm(a, o):
    ACC = 16; FA = 176; FB = 208; VX = 4; VB = 8
    LAM = 144; L32 = 146; L256 = 148; C2 = 150; TMP = 152; VN = 14
    PW = 224
    acc = lambda j, c: ACC + (j * 2 + c) * 16
    fa = lambda b, j: FA + b * 16 + j * 4
    fb = lambda b, c: FB + b * 8 + c * 4
    s0 = WB + slot_of(0) * S_WS
    a.c("SSM compute wave: D[t][p] = X B^T")
    a("s_lshr_b32 s44, s38, 1")
    a("s_and_b32 s45, s38, 1")
    srd(a, 48, P_LRE, 1280)
    srd(a, 52, P_LIM, 1280)
    srd(a, 56, P_LDT, 1280)
    a("s_lshl_b32 s46, s40, 6")
    a("s_lshl_b32 s47, s45, 5")
    a("s_add_u32 s46, s46, s47")
    a("v_and_b32 v1, 31, v0")
    a("v_add_u32 v2, s46, v1")
    a("v_lshlrev_b32 v2, 1, v2")
    a(f"buffer_load_ushort v{TMP}, v2, s[48:51], 0 offen")
    a(f"buffer_load_ushort v{TMP+1}, v2, s[52:55], 0 offen")
    a(f"buffer_load_ushort v{TMP+2}, v2, s[56:59], 0 offen")
    a("v_bfe_u32 v2, v0, 2, 1")
    a("v_lshlrev_b32 v2, 6, v2")
    a("v_and_b32 v3, 1, v0")
    a("v_lshl_add_u32 v2, v3, 5, v2")
    a(f"v_bfe_u32 v{VX}, v0, 1, 1")
    a(f"v_add_u32 v2, v2, v{VX}")
    a(f"v_bfe_u32 v{VX}, v0, 3, 2")
    a(f"v_lshl_add_u32 v2, v{VX}, 1, v2")
    a(f"v_lshl_or_b32 v3, v3, 2, v{VX}")
    a(f"v_lshrrev_b32 v{VX}, 5, v0")
    a(f"v_xor_b32 v3, v3, v{VX}")
    a("v_lshlrev_b32 v3, 4, v3")
    a("v_lshl_add_u32 v3, v2, 7, v3")
    a("s_lshl_b32 s47, s44, 14")
    a(f"s_add_u32 s47, s47, {slot_of(0) * XS}")
    a(f"v_add_u32 v{VX}, s47, v3")
    for sub in range(1, 4):
        a(f"v_xor_b32 v{VX+sub}, {sub*32}, v{VX}")
    a("v_lshrrev_b32 v2, 5, v0")
    a("v_bfe_u32 v3, v0, 1, 3")
    a("v_xor_b32 v3, v3, v2")
    a("v_lshlrev_b32 v3, 4, v3")
    a("v_lshl_add_u32 v3, v1, 7, v3")
    a("s_lshl_b32 s47, s45, 12")
    a(f"s_add_u32 s47, s47, {s0}")
    a(f"v_add_u32 v{VB}, s47, v3")
    for sub in range(1, 4):
        a(f"v_xor_b32 v{VB+sub}, {sub*32}, v{VB}")
    a(f"v_mov_b32 v{VN+1}, {NONCE_LDS}")
    for r in range(ACC, ACC + 128):
        a(f"v_mov_b32 v{r}, 0")
    warm_stage_any(a, o, 1)
    a("s_waitcnt vmcnt(0)")
    t = TMP
    a(f"v_lshlrev_b32 v{t}, 16, v{t}")
    a(f"v_lshlrev_b32 v{t+1}, 16, v{t+1}")
    a(f"v_lshlrev_b32 v{t+2}, 16, v{t+2}")
    a(f"v_mul_f32 v{t+2}, {LOG2E:#x}, v{t+2}")
    a(f"v_exp_f32 v{t+2}, v{t+2}")
    a("s_nop 0")
    a(f"v_cvt_pk_bf16_f32 v{t+2}, v{t+2}, v{t+2}")
    a(f"v_lshlrev_b32 v{t+2}, 16, v{t+2}")
    a(f"v_mul_f32 v{t+3}, v{t+2}, v{t}")
    a(f"v_mul_f32 v{t+4}, v{t+2}, v{t+1}")
    a(f"v_mul_f32 v{t+3}, {LOG2E:#x}, v{t+3}")
    a(f"v_exp_f32 v{t+3}, v{t+3}")
    a(f"v_mul_f32 v{t+4}, 0.15915494, v{t+4}")
    a(f"v_rndne_f32 v{t+5}, v{t+4}")
    a(f"v_sub_f32 v{t+4}, v{t+4}, v{t+5}")
    a(f"v_cos_f32 v{t+5}, v{t+4}")
    a(f"v_sin_f32 v{t+6}, v{t+4}")
    a("s_nop 0")
    a(f"v_mul_f32 v{LAM}, v{t+3}, v{t+5}")
    a(f"v_mul_f32 v{LAM+1}, v{t+3}, v{t+6}")
    a(f"v_mul_f32 v{t+3}, v{t}, v{t}")
    a(f"v_fma_f32 v{t+3}, v{t+1}, v{t+1}, v{t+3}")
    a(f"v_rcp_f32 v{t+3}, v{t+3}")
    a(f"v_add_f32 v{t+4}, -1.0, v{LAM}")
    a(f"v_mul_f32 v{t+5}, v{t+4}, v{t}")
    a(f"v_fma_f32 v{t+5}, v{LAM+1}, v{t+1}, v{t+5}")
    a(f"v_mul_f32 v{t+6}, v{LAM+1}, v{t}")
    a(f"v_fma_f32 v{t+6}, -v{t+4}, v{t+1}, v{t+6}")
    a(f"v_add_f32 v{t+3}, v{t+3}, v{t+3}")
    a(f"v_mul_f32 v{C2}, v{t+5}, v{t+3}")
    a(f"v_mul_f32 v{C2+1}, v{t+6}, v{t+3}")
    cmul(a, L32, L32 + 1, LAM, LAM + 1, LAM, LAM + 1, t)
    for _ in range(4):
        cmul(a, L32, L32 + 1, L32, L32 + 1, L32, L32 + 1, t)
    L64 = TMP + 20; L128 = TMP + 22
    cmul(a, L64, L64 + 1, L32, L32 + 1, L32, L32 + 1, t)
    cmul(a, L128, L128 + 1, L64, L64 + 1, L64, L64 + 1, t)
    cmul(a, L256, L256 + 1, L128, L128 + 1, L128, L128 + 1, t)
    SEL = TMP + 8
    a("s_mov_b32 s70, 0")
    a("s_mov_b32 s71, -1")
    cmul(a, PW, PW + 1, C2, C2 + 1, L64, L64 + 1, t)
    a(f"v_cndmask_b32 v{SEL+4}, v{C2}, v{PW}, s[70:71]")
    a(f"v_cndmask_b32 v{SEL+6}, v{C2+1}, v{PW+1}, s[70:71]")
    cmul(a, SEL + 5, SEL + 7, SEL + 4, SEL + 6, L32, L32 + 1, t)
    AD = 224; EX = 232
    a("s_lshl_b32 s47, s39, 1")
    a("s_add_u32 s47, s47, s44")
    a("s_lshl_b32 s47, s47, 9")
    a("s_sub_u32 s47, s47, 8192")
    a("v_lshlrev_b32 v3, 4, v0")
    for k in range(8):
        a(f"v_add_u32 v{AD+k}, s47, v3")
        a("s_add_u32 s47, s47, 1024")
        a(f"v_ashrrev_i32 v{EX+k}, 31, v{AD+k}")
        a(f"v_not_b32 v{EX+k}, v{EX+k}")
    a("s_mov_b32 s52, 0")
    a(f"s_mov_b32 s53, {slot_of(0)}")
    a(f"s_mov_b32 s55, {XS}")
    a(f"s_mov_b32 s57, {S_WS}")

    def reads(buf, sub):
        r = []
        r.append(f"ds_read_b128 {vr(fb(buf, 0), 4)}, v{VB+sub}")
        r.append(f"ds_read_b128 {vr(fa(buf, 0), 4)}, v{VX+sub}")
        r.append(f"ds_read_b128 {vr(fb(buf, 1), 4)}, v{VB+sub} offset:8192")
        for j in range(1, 4):
            r.append(f"ds_read_b128 {vr(fa(buf, j), 4)}, v{VX+(sub ^ ((j & 1) << 1))} offset:{j*1024}")
        return r
    a("s_barrier")
    stamp_clk(a, o, 58); stamp(a, o, 1)
    if o.stamps:
        a("s_mov_b32 s94, s92")
    for r in reads(0, 0):
        a(r)
    tags = [("b", 0), ("a", 0), ("b", 1), ("a", 1), ("a", 2), ("a", 3)]
    k_loop(a, o, "Ls_loop", lambda b, sb: list(zip(reads(b, sb), tags)), lambda n: [("a", n >> 1), ("b", n & 1)],
           lambda buf, n: f"v_mfma_f32_32x32x16_bf16 {vr(acc(n >> 1, n & 1), 16)}, {vr(fa(buf, n >> 1), 4)}, {vr(fb(buf, n & 1), 4)}, {vr(acc(n >> 1, n & 1), 16)}",
           8, ring_ops(S_WS, range(VX, VX + 4), range(VB, VB + 4)), f"ds_read_b32 v{VN}, v{VN+1}", 9 if o.speel else 10)
    a.seg("s1")
    LR = vr(LAM, 2)
    def pk_lr(d, x, y):
        a(f"v_pk_fma_f32 {vr(d, 2)}, {LR}, {vr(x, 2)}, {vr(y, 2)} op_sel_hi:[0,1,1]")
    def pk_li(d, x, y, neg):
        n = " neg_lo:[1,0,0] neg_hi:[1,0,0]" if neg else ""
        a(f"v_pk_fma_f32 {vr(d, 2)}, {LR}, {vr(x, 2)}, {vr(y, 2)} op_sel:[1,0,0] op_sel_hi:[1,1,1]{n}")
    ure = lambda n: acc(n >> 3, 0) + 2 * (n & 7)
    uim = lambda n: acc(n >> 3, 1) + 2 * (n & 7)
    S = [TMP, TMP + 4]
    def capture(fn):
        k = len(a.l); fn(); r = [x.strip() for x in a.l[k:]]; del a.l[k:]; return r
    def setup():
        a(f"s_setprio {o.cprio}")
        a(f"v_readfirstlane_b32 s64, v{VN}")
        a("s_lshl_b32 s46, s40, 1")
        a("s_add_u32 s46, s46, s45")
        a("s_lshl_b32 s46, s46, 13")
        a(f"s_add_u32 s46, s46, {AGG_OFF:#x}")
        a(f"s_add_u32 s48, s{P_WS}, s46")
        a(f"s_addc_u32 s49, s{P_WS+1}, 0")
        a("s_movk_i32 s50, 8192")
        a("s_mov_b32 s51, 0x20000")
        a("s_lshl_b32 s46, s39, 1")
        a("s_add_u32 s46, s46, s44")
        a("s_lshl_b32 s47, s46, 9")
        a("v_lshlrev_b32 v3, 4, v0")
        a("s_nop 3")
    def pass1(j):
        for n in range(max(1, 8 * j), 8 * j + 8):
            pr, pi = (ure(0), uim(0)) if n == 1 else (S[(n - 1) & 1], S[(n - 1) & 1] + 2)
            d = S[n & 1]
            pk_lr(d, pr, ure(n)); pk_lr(d + 2, pi, uim(n))
            pk_li(d, pi, d, True); pk_li(d + 2, pr, d + 2, False)
    if not o.speel:
        a("s_waitcnt lgkmcnt(0)")
        loop_stamp_flush(a, o)
        stamp(a, o, 2); stamp_clk(a, o, 59)
        setup()
        for j in range(4):
            pass1(j)
    else:
        lds = Lds(a); reg = {}
        for t, r in ((("b", 0, 0), fb(0, 0)), (("a", 0, 0), fa(0, 0)), (("b", 1, 0), fb(0, 1)), (("a", 1, 0), fa(0, 1)), (("a", 2, 0), fa(0, 2)), (("a", 3, 0), fa(0, 3))):
            reg[t] = r; lds.q.append(t)
        if o.stamps in (1, 2):
            a("s_waitcnt lgkmcnt(0)")
            loop_stamp_flush(a, o)
        free = [fb(1, 0), fb(1, 1)] + [fa(1, j) for j in range(4)] + [224 + 4 * i for i in range(7)]
        mf = [(j, 0) for j in range(4)] + [(j, kk) for j in range(4) for kk in (1, 2, 3)]
        needs = []
        for j, kk in mf:
            for t in (("b", 0, kk), ("a", j, kk), ("b", 1, kk)):
                if t not in reg and t not in needs:
                    needs.append(t)
        def try_read():
            if not needs or not free or lds.pending() > 12:
                return False
            t = needs.pop(0); r = reg[t] = free.pop(0)
            if t[0] == "b":
                lds.op(f"ds_read_b128 {vr(r, 4)}, v{VB + t[2]} offset:{t[1]*8192}", t)
            else:
                lds.op(f"ds_read_b128 {vr(r, 4)}, v{VX + (t[2] ^ ((t[1] & 1) << 1))} offset:{t[1]*1024}", t)
            return True
        def states(k):
            return sum(int(x.split()[1]) + 1 if x.strip().startswith("s_nop") else 1 for x in a.l[k:])
        fill = capture(setup); pend = []; barred = False
        for n, (j, kk) in enumerate(mf):
            for c in range(2):
                while any(t not in reg for t in (("a", j, kk), ("b", c, kk))):
                    assert try_read()
                lds.wait(("a", j, kk), ("b", c, kk))
                a(f"v_mfma_f32_32x32x16_bf16 {vr(acc(j, c), 16)}, {vr(reg['a', j, kk], 4)}, {vr(reg['b', c, kk], 4)}, {vr(acc(j, c), 16)}")
                mark = len(a.l)
                if c == 1:
                    free.append(reg["a", j, kk])
                try_read(); try_read()
                if not needs and not barred and n >= o.sb10:
                    if lds.pending():
                        a("s_waitcnt lgkmcnt(0)"); lds.done = len(lds.q)
                    a("s_barrier")
                    barred = True
                if pend and not fill:
                    miss = 13 - states(pend[0][0])
                    if miss > 0:
                        a(f"s_nop {min(miss, 6) - 1}")
                    if states(pend[0][0]) >= 13:
                        fill = capture(lambda: pass1(pend.pop(0)[1]))
                k = o.sfill
                while fill and (k > 0 or fill[0].startswith("s_addc")):
                    a(fill.pop(0)); k -= 1
                if kk == 3 and c == 1:
                    pend.append((mark, j))
        assert barred
        stamp(a, o, 2); stamp_clk(a, o, 59)
        for x in fill:
            a(x)
        for mk, j in pend:
            while states(mk) < 13:
                a(f"s_nop {min(13 - states(mk), 8) - 1}")
            pass1(j)
    Sf = S[31 & 1]
    PF = FA
    cfma(a, PF, PF + 1, L32, L32 + 1, Sf, Sf + 2, Sf + 1, Sf + 3)
    a(f"v_mov_b32 v{PF+2}, v{PF}"); a(f"v_mov_b32 v{PF+3}, v{PF+1}")
    a(f"v_mov_b32 v{TMP+1}, s64"); a(f"v_mov_b32 v{TMP+3}, s64")
    a(f"v_permlane32_swap_b32 v{PF}, v{PF+2}")
    a(f"v_permlane32_swap_b32 v{PF+1}, v{PF+3}")
    a("s_nop 1")
    cfma(a, TMP, TMP + 2, L64, L64 + 1, PF, PF + 1, PF + 2, PF + 3)
    a("s_mov_b32 exec_hi, 0")
    a(f"buffer_store_dwordx4 {vr(TMP, 4)}, v3, s[48:51], s47 offen sc1")
    a("s_mov_b64 exec, -1")
    stamp(a, o, 3)
    a(f"v_cndmask_b32 v{SEL}, 0, v{PF}, s[70:71]")
    a(f"v_cndmask_b32 v{SEL+2}, 0, v{PF+1}, s[70:71]")
    cfma(a, SEL + 1, SEL + 3, L32, L32 + 1, SEL, SEL + 2, Sf, Sf + 2)
    for k in range(8):
        a(f"v_and_b32 v{EX+k}, s64, v{EX+k}")
    GL = FA + 4
    def agg_loads():
        for k in range(8):
            a(f"buffer_load_dwordx4 {vr(GL+4*k, 4)}, v{AD+k}, s[48:51], 0 offen sc1")
    CC = vr(C2, 2)
    def scale(re, im):
        a(f"v_pk_mul_f32 {vr(TMP+4, 2)}, {CC}, {vr(re, 2)} op_sel:[1,0] op_sel_hi:[1,1]")
        a(f"v_pk_mul_f32 {vr(re, 2)}, {CC}, {vr(re, 2)} op_sel_hi:[0,1]")
        a(f"v_pk_fma_f32 {vr(re, 2)}, {CC}, {vr(im, 2)}, {vr(re, 2)} op_sel:[1,0,0] op_sel_hi:[1,1,1] neg_lo:[1,0,0] neg_hi:[1,0,0]")
        a(f"v_pk_fma_f32 {vr(im, 2)}, {CC}, {vr(im, 2)}, {vr(TMP+4, 2)} op_sel_hi:[0,1,1]")
    scale(SEL, SEL + 2)
    for n in range(32):
        if n == o.apos:
            agg_loads()
        scale(ure(n), uim(n))
    stamp(a, o, 4)
    CR = TMP + 16
    a("s_mov_b32 s72, 0")
    if o.apos < 32:
        a("s_branch Ls_chk")
    a.label("Ls_poll")
    agg_loads()
    a.label("Ls_chk")
    a("s_waitcnt vmcnt(0)")
    for k in range(8):
        a(f"v_xor_b32 v{GL+4*k+1}, v{GL+4*k+1}, v{EX+k}")
        a(f"v_xor_b32 v{GL+4*k+3}, v{GL+4*k+3}, v{EX+k}")
        a(f"v_or3_b32 v{GL+1}, v{GL+1}, v{GL+4*k+1}, v{GL+4*k+3}")
    a(f"v_cmp_ne_u32 vcc, 0, v{GL+1}")
    a("s_cmp_eq_u64 vcc, 0")
    a("s_cbranch_scc1 Ls_gotcarry")
    a(f"s_sleep {o.agg_sleep}")
    a("s_add_u32 s72, s72, 1")
    a(f"s_cmp_lt_u32 s72, {SPIN_MAX:#x}")
    a("s_cbranch_scc1 Ls_poll")
    a.label("Ls_gotcarry")
    er, ei = GL, GL + 2
    for k in range(1, 8):
        d = CR + 2 * (k & 1)
        cfma(a, d, d + 1, L256, L256 + 1, er, ei, GL + 4 * k, GL + 4 * k + 2)
        er, ei = d, d + 1
    a(f"v_mov_b32 v{CR}, v{CR+2}"); a(f"v_mov_b32 v{CR+1}, v{CR+3}")
    a("s_nop 1")
    a(f"v_permlane32_swap_b32 v{CR}, v{CR+2}")
    a(f"v_permlane32_swap_b32 v{CR+1}, v{CR+3}")
    a("s_nop 1")
    cfma(a, CR + 2, CR + 3, L128, L128 + 1, CR, CR + 1, CR + 2, CR + 3)
    CY = vr(CR + 2, 2)
    a(f"v_pk_fma_f32 {vr(SEL, 2)}, {CY}, {vr(SEL+4, 2)}, {vr(SEL, 2)} op_sel_hi:[0,1,1]")
    a(f"v_pk_fma_f32 {vr(SEL+2, 2)}, {CY}, {vr(SEL+6, 2)}, {vr(SEL+2, 2)} op_sel_hi:[0,1,1]")
    a(f"v_pk_fma_f32 {vr(SEL, 2)}, {CY}, {vr(SEL+6, 2)}, {vr(SEL, 2)} op_sel:[1,0,0] op_sel_hi:[1,1,1] neg_lo:[1,0,0] neg_hi:[1,0,0]")
    a(f"v_pk_fma_f32 {vr(SEL+2, 2)}, {CY}, {vr(SEL+4, 2)}, {vr(SEL+2, 2)} op_sel:[1,0,0] op_sel_hi:[1,1,1]")
    a.seg("s2")
    a.label("Ls_nocarry")
    stamp(a, o, 5)
    TS = 144
    a(f"s_mul_i32 s47, s38, {64*TS}")
    a(f"s_add_u32 s47, s47, {S_TR}")
    a("v_and_b32 v1, 31, v0")
    a(f"v_mul_u32_u24 v1, {TS}, v1")
    a("v_lshrrev_b32 v2, 5, v0")
    a("v_lshl_add_u32 v1, v2, 6, v1")
    a("v_add_u32 v1, s47, v1")
    a("v_lshrrev_b32 v2, 4, v0")
    a("v_lshlrev_b32 v2, 3, v2")
    a("v_bfe_u32 v3, v0, 2, 2")
    a("v_add_u32 v2, v2, v3")
    a(f"v_mul_u32_u24 v2, {TS}, v2")
    a("v_and_b32 v3, 3, v0")
    a("v_lshl_add_u32 v2, v3, 3, v2")
    a("v_add_u32 v2, s47, v2")
    a("v_lshlrev_b32 v3, 4, v0")
    srd(a, 48, P_WS, HP_SIZE, HP_OFF)
    a("s_lshl_b32 s46, s40, 1")
    a("s_add_u32 s73, s46, s45")
    a("s_lshl_b32 s46, s73, 13")
    a("s_lshl_b32 s47, s39, 2")
    a("s_lshl_b32 s56, s44, 1")
    a("s_add_u32 s47, s47, s56")
    a(f"s_mul_i32 s47, s47, {HT}")
    a("s_add_u32 s46, s46, s47")
    a(f"s_add_u32 s47, s46, {HT}")
    a(f"s_add_u32 s56, s46, {HK}")
    a(f"s_add_u32 s57, s47, {HK}")
    c_wsetup(a)
    pr, pi = SEL, SEL + 2
    PKD = FA; OUT = FA + 32
    def flush_round(rd):
        a("s_waitcnt lgkmcnt(0)")
        for c in range(2):
            for sg in range(4):
                d = OUT + (c * 4 + sg) * 4
                a(f"ds_read_b64_tr_b16 {vr(d, 2)}, v2 offset:{c*32*TS + sg*32}")
                a(f"ds_read_b64_tr_b16 {vr(d+2, 2)}, v2 offset:{c*32*TS + 4*TS + sg*32}")
    def store_round(rd):
        a("s_waitcnt lgkmcnt(0)")
        for c in range(2):
            for sg in range(4):
                d = OUT + (c * 4 + sg) * 4
                mi = 2 * sg + rd
                so = (46, 47, 56, 57)[c * 2 + (mi >> 2)]
                a(f"buffer_store_dwordx4 {vr(d, 4)}, v3, s[48:51], s{so} offen offset:{(mi & 3)*1024} {o.hst}")
    for n in range(32):
        r, i = ure(n), uim(n)
        pk_lr(r, pr, r); pk_lr(i, pi, i)
        pk_li(r, pi, r, True); pk_li(i, pr, i, False)
        pr, pi = r, i
        if n == 17:
            flush_round(0)
        if n == 21:
            store_round(0)
        if n in (10, 25, 28) and o.early_w:
            c_wload(a, (10, 25, 28).index(n))
        if (n & 7) == 7:
            j = n >> 3
            st = PKD + (j & 1) * 16
            for c in range(2):
                sg = "-" if c else ""
                for par in range(2):
                    for e in range(4):
                        b = acc(j, c) + par
                        a(f"v_cvt_pk_bf16_f32 v{st+c*8+par*4+e}, {sg}v{b+4*e}, {sg}v{b+4*e+2}")
                    a(f"ds_write_b128 v1, {vr(st+c*8+par*4, 4)} offset:{c*32*TS + par*32 + (j & 1)*16}")
    flush_round(1)
    if o.early_w:
        c_wload(a, 3)
    store_round(1)
    stamp(a, o, 6)
    a("s_lshl_b32 s65, s39, 2")
    a("s_lshl_b32 s66, s44, 1")
    a("s_add_u32 s65, s65, s66")
    a("s_lshl_b32 s65, s65, 13")
    a("s_lshl_b32 s66, s73, 7")
    a("s_add_u32 s65, s65, s66")
    a(f"s_add_u32 s65, s65, {22*128}")
    a("s_mov_b32 s66, -1" if o.fullflag else "s_mov_b32 s66, 1")
    a("s_mov_b32 s67, s66")
    a("v_lshrrev_b32 v2, 5, v0")
    a("v_lshlrev_b32 v2, 13, v2")
    a("v_and_b32 v1, 31, v0")
    a("v_lshl_add_u32 v2, v1, 2, v2")
    a("s_branch L_p2c")

L_ACC = 6; L_H = 86; L_W = 134
def p2_prefetch(a, o, vm, cuts, wait9, hook=None):
    if wait9:
        a(f"v_mov_b32 v2, {NONCE_LDS}")
        a("ds_read_b32 v2, v2")
    srd(a, 48, P_WS, HP_SIZE, HP_OFF)
    srd(a, 52, P_WS, W2_SIZE, W2_OFF)
    a("s_mul_i32 s74, s90, 14")
    a("s_min_u32 s74, s74, 40")
    a(f"s_mul_i32 s66, s42, {HT}")
    a(f"s_add_u32 s66, s66, {40*HK}")
    a(f"s_mul_i32 s67, s43, {WT}")
    a(f"s_add_u32 s67, s67, {40*WK}")
    a("s_cmp_lt_u32 s90, 3")
    a("s_cselect_b32 s50, s66, s50")
    a("s_cselect_b32 s54, s67, s54")
    srd(a, 56, P_WS, W2_SIZE, W2_OFF)
    if wait9:
        a("s_waitcnt lgkmcnt(0)")
        a("v_readfirstlane_b32 s64, v2")
    a("v_lshlrev_b32 v1, 4, v0")
    a(f"s_mul_i32 s76, s74, {WK}")
    a(f"s_mul_i32 s66, s43, {WT}")
    a("s_add_u32 s76, s76, s66")
    a(f"s_mul_i32 s77, s101, {7*WK}")
    a("s_add_u32 s76, s76, s77")
    a("s_add_u32 s77, s76, 4096")
    a("s_mul_i32 s75, s101, 5")
    ops = []
    for n in range(6):
        for i in range(5):
            post = [f"s_add_u32 s76, s76, {WK}", f"s_add_u32 s77, s77, {WK}"] if i == 4 else []
            ops.append(([], f"buffer_load_dwordx4 {vr(L_W + n*20 + i*4, 4)}, v1, s[52:55], s{76 + (i >> 2)} offen offset:{(i & 3)*1024} sc1", post, 0))
    for n in range(6):
        for i in range(5):
            pre = []
            if i == 0:
                pre = [f"s_add_u32 s69, s90, {4*n}", "s_mul_i32 s68, s69, 43", "s_lshr_b32 s68, s68, 8", "s_mul_i32 s70, s68, 6",
                       "s_sub_u32 s70, s69, s70", "s_add_u32 s70, s70, s75", "s_cmp_ge_u32 s70, 8", "s_cselect_b32 s71, 46, 56",
                       "s_add_u32 s70, s70, s71", "s_mul_i32 s68, s68, 10", "s_add_u32 s68, s68, s70", f"s_mul_i32 s68, s68, {WK}",
                       "s_add_u32 s68, s68, s66", "s_mul_i32 m0, s69, 5120", "s_add_u32 s70, s68, 4096"]
            if i == 4:
                pre = ["s_add_u32 m0, m0, 4096", "s_nop 0"]
            ops.append((pre, f"buffer_load_dwordx4 v1, s[56:59], s{68 + 2*(i >> 2)} offen offset:{(i & 3)*1024} sc1 lds", [], 8 if n < 1 else 9 if n < 3 else 9.5 if n < 5 else 10))
    tag = int(wait9)
    def run(lo, hi, passed, thr=0):
        for pre, ins, post, need in ops[lo:hi]:
            assert need <= passed
            for p in pre: a(p)
            if thr:
                a(f"s_waitcnt vmcnt({thr - 1})")
            vm.op(ins, "pf")
            for p in post: a(p)
    def bar(s):
        stamp(a, o, 8 + s)
        a("s_barrier")
        stamp(a, o, 20 + s)
        if hook and s < 10: hook(s)
    def fwok():
        a("s_setprio 0")
        a("s_lshl_b32 s67, s90, 2")
        a(f"s_add_u32 s67, s67, {SFLAG_LDS}")
        a("v_mov_b32 v2, s67")
        a("v_mov_b32 v3, s64")
        a("ds_write_b32 v2, v3 offset:144")
    def xbar(name):
        pass
    def look(name):
        a("s_cmp_lg_u32 s90, 2")
        a(f"s_cbranch_scc1 {name}")
        fw_load(a)
        fw_test(a)
        a("s_cselect_b32 s44, s64, 0")
        a("v_mov_b32 v29, s44")
        a("ds_write_b32 v28, v29")
        a("s_waitcnt lgkmcnt(0)")
        a.label(name)
    def verdict(extra=""):
        a("ds_read_b32 v29, v28")
        a(f"s_waitcnt {extra}lgkmcnt(0)")
        a("v_cmp_ne_u32 vcc, s64, v29")
        a("s_cmp_eq_u64 vcc, 0")
    fw_setup(a)
    a(f"v_mov_b32 v28, {NONCE_LDS - 8}")
    if not wait9:
        if o.vlook < 8:
            look("Lp_nolookv")
            bar(o.vlook)
            verdict()
            a("s_cbranch_scc0 Lp_notv")
            a("s_setprio 0")
            stamp(a, o, 3)
            lo = 0
            for k, b in enumerate(range(o.vlook + 1, 11)):
                run(lo, o.cuts_v[k], b - 1, o.thr_v if b <= 8 else 0); lo = o.cuts_v[k]
                a(f"s_setprio {o.hprio}")
                bar(b)
                a("s_setprio 0")
            xbar("Ll_noxv")
            fwok()
            run(lo, 60, 10, o.thr_e)
            a(f"s_branch Lp_done{tag}")
            a.label("Lp_notv")
            for b in range(o.vlook + 1, 8):
                bar(b)
        look("Lp_nolook")
    bar(8)
    verdict("vmcnt(0) ")
    a(f"s_cbranch_scc0 Lp_late{tag}")
    stamp(a, o, 5)
    vm.q = []
    if o.peel:
        assert o.vlook == 8
        a("s_cmp_eq_u32 s41, 1")
        a(f"s_cbranch_scc1 Lp_essm{tag}")
        c = o.cuts_f
        run(0, c[0], 8)
        bar(9)
        run(c[0], c[1], 9)
        a("s_barrier")
        a("s_setprio 0")
        run(c[1], c[2], 9.5, o.thr_f)
        bar(10)
        fwok()
        run(c[2], 60, 10, o.thr_e)
        a(f"s_branch Lp_done{tag}")
        a.label(f"Lp_essm{tag}")
        vm.q = []
    run(0, cuts[0], 8)
    bar(9)
    run(cuts[0], cuts[1], 9)
    bar(10)
    xbar("Ll_noxe")
    fwok()
    run(cuts[1], 60, 10, o.thr_e)
    a(f"s_branch Lp_done{tag}")
    a.label(f"Lp_late{tag}")
    bar(9)
    if o.peel:
        a("s_cmp_eq_u32 s41, 1")
        a(f"s_cbranch_scc1 Lp_no9b{tag}")
        a("s_barrier")
        a.label(f"Lp_no9b{tag}")
    bar(10)
    xbar("Ll_nox")
    fw_check(a)
    fwok()
    stamp(a, o, 4)
    vm.q = []
    run(0, 60, 10, o.thr_t)
    a.label(f"Lp_done{tag}")
    if hook: hook(10)
    vm.drain()
    a("s_lshl_b32 s66, s90, 2")
    a(f"s_add_u32 s66, s66, {SFLAG_LDS}")
    a("v_mov_b32 v2, s66")
    a("v_mov_b32 v3, s64")
    a("ds_write_b32 v2, v3")
    stamp(a, o, 6)

def p1_loader(a, o):
    a("s_cmp_ge_u32 s90, 2")
    a("s_cbranch_scc1 L_helper")
    VXO = 4; VWO = 12; VE = 18
    vm = VM(a)
    a("v_lshrrev_b32 v1, 3, v0")
    a("v_and_b32 v2, 7, v0")
    a("v_mul_u32_u24 v3, 1280, v1")
    a(f"v_lshrrev_b32 v{VE}, 1, v1")
    a(f"v_xor_b32 v{VE}, v{VE}, v2")
    a(f"v_lshlrev_b32 v{VE}, 4, v{VE}")
    a(f"v_xor_b32 v{VE+1}, 64, v{VE}")
    a(f"v_add_u32 v{VE}, v{VE}, v3")
    a(f"v_add_u32 v{VE+1}, v{VE+1}, v3")
    a(f"s_and_b32 s44, s40, {o.ab}")
    a(f"s_and_b32 s45, s39, {o.ab}")
    a("s_lshl_b32 s46, s39, 8")
    a("s_lshl_b32 s47, s90, 7")
    a("s_add_u32 s46, s46, s47")
    a("s_lshl_b32 s47, s44, 6")
    a("s_add_u32 s85, s46, s47")
    a("s_xor_b32 s47, s47, 64")
    a("s_add_u32 s86, s46, s47")
    a("s_mul_i32 s85, s85, 1280")
    a("s_mul_i32 s86, s86, 1280")
    a("s_lshl_b32 s75, s90, 14")
    a("s_lshl_b32 s47, s44, 13")
    a("s_add_u32 s75, s75, s47")
    a("s_xor_b32 s76, s75, 8192")
    a("s_cmp_eq_u32 s41, 1")
    a("s_cbranch_scc1 Ll_ssm")
    for ssm in (0, 1):
        if ssm:
            a.label("Ll_ssm")
        for i in range(8):
            bit = (i & 1) ^ ((i >> 2) & 1 if ssm else 0)
            a(f"v_add_u32 v{VXO+i}, {i*8*1280 - (i & 3)*1024}, v{VE+bit}")
        slot = S_WS if ssm else F_WS
        a(f"s_mov_b32 s81, {slot}")
        a(f"s_mov_b32 s82, {2*slot}")
        a("s_xor_b32 s47, s45, 1")
        if not ssm:
            for i in range(5):
                a(f"v_add_u32 v2, {64*i}, v0")
                a("v_mul_u32_u24 v3, 6554, v2")
                a("v_lshrrev_b32 v3, 16, v3")
                a("v_mul_u32_u24 v1, 10, v3")
                a("v_sub_u32 v2, v2, v1")
                a("v_mul_u32_u24 v3, 3456, v3")
                a("v_lshl_add_u32 v3, v2, 4, v3")
                a(f"v_subrev_u32 v{VWO+i}, {(i & 3)*1024}, v3")
            a("s_mul_i32 s46, s40, 160")
            a(f"s_mul_i32 s66, s45, {32*3456}")
            a(f"s_mul_i32 s67, s47, {32*3456}")
            a("s_add_u32 s66, s66, s46")
            a("s_add_u32 s67, s67, s46")
            a(f"s_mul_i32 s46, s90, {F_UP}")
            a(f"s_add_u32 s46, s46, {WB}")
            a("s_mul_i32 s77, s45, 5120")
            a("s_mul_i32 s78, s47, 5120")
            a("s_add_u32 s77, s77, s46")
            a("s_add_u32 s78, s78, s46")
            a("s_add_u32 s79, s77, 4096")
            a("s_add_u32 s80, s78, 4096")
            a("s_mov_b32 s83, s81")
            a("s_mov_b32 s87, s82")
            a(f"s_mov_b32 s84, {64*3456}")
            a("s_waitcnt lgkmcnt(0)")
            a("s_cmp_eq_u32 s90, 0")
            a(f"s_cselect_b32 s52, s{P_W1}, s{P_W3}")
            a(f"s_cselect_b32 s53, s{P_W1+1}, s{P_W3+1}")
            a(f"s_mov_b32 s54, {640*3456}")
            a("s_branch Ll_go")
        else:
            for i in range(4):
                a(f"v_add_u32 v{VWO+i}, {i*8*1280 - i*1024}, v{VE+(i & 1)}")
            a(f"v_mov_b32 v{VWO+4}, 0x40000000")
            a(f"s_mul_i32 s46, s40, {64*1280}")
            a(f"s_mul_i32 s66, s45, {32*1280}")
            a(f"s_mul_i32 s67, s47, {32*1280}")
            a("s_add_u32 s66, s66, s46")
            a("s_add_u32 s67, s67, s46")
            a("s_lshl_b32 s46, s90, 13")
            a("s_lshl_b32 s77, s45, 12")
            a("s_add_u32 s77, s77, s46")
            a("s_xor_b32 s78, s77, 4096")
            a(f"s_add_u32 s77, s77, {WB}")
            a(f"s_add_u32 s78, s78, {WB}")
            a("s_lshl_b32 s79, s90, 10")
            a(f"s_add_u32 s79, s79, {S_DUMMY}")
            a("s_mov_b32 s80, s79")
            a("s_mov_b32 s83, 0")
            a("s_mov_b32 s87, 0")
            a("s_movk_i32 s84, 128")
            a("s_waitcnt lgkmcnt(0)")
            a("s_cmp_eq_u32 s90, 0")
            a(f"s_cselect_b32 s52, s{P_BRE}, s{P_BIM}")
            a(f"s_cselect_b32 s53, s{P_BRE+1}, s{P_BIM+1}")
            a(f"s_mov_b32 s54, {640*1280}")
    a.label("Ll_go")
    a("s_mov_b32 s55, 0x20000")
    srd(a, 48, P_X, 2048 * 1280)
    a("s_lshl_b32 s44, s3, 7")
    a("s_add_u32 s85, s85, s44")
    a("s_add_u32 s86, s86, s44")
    a("s_mul_i32 s44, s3, s84")
    a("s_add_u32 s66, s66, s44")
    a("s_add_u32 s67, s67, s44")
    a("s_mul_i32 s73, s84, -9")
    a("s_mov_b32 s71, s3")
    a("s_mov_b32 s72, s3")
    a("s_movk_i32 s74, 128")
    def setm0(base, sl, five=False):
        if sl == 0:
            return f"s_mov_b32 m0, s{base}"
        return f"s_add_u32 m0, s{base}, s{((83, 87) if five else (81, 82))[sl-1]}"
    def half(stage, h, extra=()):
        extra = list(extra)
        sl = slot_of(stage)
        def dma(ins):
            vm.op(ins, ("st", stage))
            for _ in range(2 if len(extra) > 14 else 1):
                if extra:
                    a(extra.pop(0))
                    if extra and extra[0].startswith("s_addc"):
                        a(extra.pop(0))
        a(f"s_add_u32 m0, s{75 + h}, {sl*XS}"); a("s_nop 0")
        for i in range(8):
            if i == 4:
                a("s_add_u32 m0, m0, 4096"); a("s_nop 0")
            dma(f"buffer_load_dwordx4 v{VXO+i}, s[48:51], s{85+h} offen offset:{(i & 3)*1024} lds")
        a(setm0(77 + h, sl))
        a(f"s_add_u32 s{71+h}, s{71+h}, 1")
        for i in range(4):
            dma(f"buffer_load_dwordx4 v{VWO+i}, s[52:55], s{66+h} offen offset:{i*1024} lds")
        a(setm0(79 + h, sl, True)); a("s_nop 0")
        dma(f"buffer_load_dwordx4 v{VWO+4}, s[52:55], s{66+h} offen lds")
        a(f"s_cmp_eq_u32 s{71+h}, 10")
        a(f"s_cselect_b32 s44, {-9*128 & 0xffffffff:#x}, s74")
        a("s_cselect_b32 s45, s73, s84")
        a(f"s_add_u32 s{85+h}, s{85+h}, s44")
        a(f"s_add_u32 s{66+h}, s{66+h}, s45")
        for x in extra:
            a(x)
    def bar(s):
        vm.wait(("st", s))
        stamp(a, o, 8 + s)
        a("s_barrier")
        stamp(a, o, 20 + s)
    wo = lambda: warm_ops(o, "w")
    lw = list(o.lwarm)
    assert sum(lw) in (0, 9)
    half0 = half
    def lwarm_setup():
        a("v_lshlrev_b32 v20, 4, v0")
        a("s_cmp_eq_u32 s90, 1")
        a("s_cbranch_scc1 Ll_wx")
        a("s_and_b32 s68, s2, 1")
        a("s_cmp_eq_u32 s68, 0")
        a(f"s_cselect_b32 s56, s{P_W1}, s{P_W3}")
        a(f"s_cselect_b32 s57, s{P_W1+1}, s{P_W3+1}")
        a(f"s_mov_b32 s58, {640*3456}")
        a("s_mov_b32 s60, s56")
        a("s_mov_b32 s61, s57")
        a("s_mov_b32 s62, s58")
        a("s_lshr_b32 s68, s2, 1")
        a("s_mul_i32 s68, s68, 1728")
        a("s_add_u32 s69, s68, 1008")
        a("v_min_u32 v21, 704, v20")
        a(f"s_mov_b32 s70, {64*3456}")
        a("s_branch Ll_wd")
        a.label("Ll_wx")
        a(f"s_mov_b32 s56, s{P_X}")
        a(f"s_mov_b32 s57, s{P_X+1}")
        a(f"s_mov_b32 s58, {2048*1280}")
        a("s_cmp_lt_u32 s2, 128")
        a(f"s_cselect_b32 s60, s{P_BRE}, s{P_BIM}")
        a(f"s_cselect_b32 s61, s{P_BRE+1}, s{P_BIM+1}")
        a(f"s_mov_b32 s62, {640*1280}")
        a("v_lshrrev_b32 v20, 3, v0")
        a("v_min_u32 v21, 4, v20")
        a("v_and_b32 v22, 7, v0")
        a("v_lshlrev_b32 v22, 4, v22")
        a("v_mul_u32_u24 v20, 1280, v20")
        a("v_mul_u32_u24 v21, 1280, v21")
        a("v_add_u32 v20, v20, v22")
        a("v_add_u32 v21, v21, v22")
        a(f"s_mul_i32 s68, s2, {8*1280}")
        a("s_and_b32 s69, s2, 127")
        a(f"s_mul_i32 s69, s69, {5*1280}")
        a("s_movk_i32 s70, 128")
        a.label("Ll_wd")
        a("s_mov_b32 s59, 0x20000")
        a("s_mov_b32 s63, 0x20000")
    nh = [0]
    def half(stage, h, extra=()):
        half0(stage, h, extra)
        if nh[0] == 0 and sum(lw):
            lwarm_setup()
        k = lw[nh[0]] if nh[0] < len(lw) else 0
        nh[0] += 1
        for _ in range(k):
            a("s_add_u32 s68, s68, s70")
            a("s_add_u32 s69, s69, s70")
            vm.op("buffer_load_dwordx4 v[28:31], v20, s[56:59], s68 offen", "lw")
            vm.op("buffer_load_dwordx4 v[28:31], v21, s[60:63], s69 offen", "lw")
    half(0, 0)
    warm_setup(a, o); warm_skip(a, o, 3)
    half(0, 1, wo())
    half(1, 0, wo()); bar(0)
    nw = 2
    for s in range(0, 8):
        if s < o.lead:
            half(s + 1, 1, wo() if nw < 7 else ()); nw += 1; half(s + 2, 0)
        elif s == o.lead:
            half(s + 1, 1); half(s + 2, 0, wo() if nw < 7 else ()); nw += 1; half(s + 2, 1)
        else:
            half(s + 2, 0, wo() if nw < 7 else ()); nw += 1; half(s + 2, 1)
        if s < 7:
            bar(s + 1)
    assert o.lead <= 7 and nw >= 7
    vm.wait(("st", 8))
    p2_prefetch(a, o, vm, o.cuts_l, True)
    a("s_branch L_p2l")

    a.label("L_helper")
    a(f"s_setprio {o.hprio}")
    a("s_waitcnt lgkmcnt(0)")
    vm = VM(a)
    GWF, XF, GA = 40, 120, 128
    RJ, OJ, O2, VA = 134, 166, 198, 32
    if o.codepf:
        a("s_getpc_b64 s[56:57]")
        a.label("Lpc")
        a(f"s_sub_u32 s56, s56, Lpc-{NAME}_kernel")
        a("s_subb_u32 s57, s57, 0")
        a(f"s_mov_b32 s58, L_codeend-{NAME}_kernel")
        a("s_mov_b32 s59, 0x20000")
        a("s_lshr_b32 s66, s2, 3")
        a("s_lshl_b32 s66, s66, 1")
        a("s_add_u32 s66, s66, s90")
        a("s_sub_u32 s66, s66, 2")
        a("s_lshl_b32 s66, s66, 10")
        a("v_lshlrev_b32 v21, 4, v0")
        a("buffer_load_dwordx4 v[24:27], v21, s[56:59], s66 offen")
    srd(a, 60, P_DBG, 256)
    a("v_mov_b32 v19, 0")
    a("s_lshl_b32 s65, s2, 2")
    a("s_lshl_b32 s66, s90, 1")
    a("s_add_u32 s65, s65, s66")
    a("s_sub_u32 s65, s65, 4")
    a("s_cmp_lg_u32 s65, 0")
    a("s_cbranch_scc1 Lh_nononce")
    a("s_memrealtime s[66:67]")
    a("s_waitcnt lgkmcnt(0)")
    a("s_or_b32 s66, s66, 1")
    a("v_mov_b32 v20, s66")
    a("s_mov_b64 exec, 1")
    a("buffer_store_dword v20, v19, s[60:63], 0 offen sc1")
    a("s_mov_b64 exec, -1")
    a.label("Lh_nononce")
    warm_setup(a, o); warm_skip(a, o, 3)
    warm_stage_xb(a, o, 1)
    srd(a, 52, P_GW, 1280)
    a("v_lshlrev_b32 v21, 4, v0")
    a("v_lshrrev_b32 v6, 4, v0")
    a("v_and_b32 v7, 15, v0")
    a("v_lshlrev_b32 v5, 4, v6")
    a("s_lshl_b32 s66, s41, 4")
    a("s_add_u32 s66, s66, s40")
    a("s_cmp_eq_u32 s90, 3")
    a("s_cselect_b32 s73, s66, 16")
    a("s_cmp_ge_u32 s73, 16")
    a("s_cbranch_scc1 Lh_nogw")
    a("s_lshl_b32 s66, s3, 7")
    for k in range(20):
        a(f"buffer_load_dwordx4 {vr(GWF+4*k, 4)}, v5, s[52:55], s66 offen offset:{(k & 1)*64}")
        if k & 1:
            a("s_add_u32 s66, s66, 128")
            a("s_cmp_eq_u32 s66, 1280")
            a("s_cselect_b32 s66, 0, s66")
    a.label("Lh_nogw")
    a("v_lshrrev_b32 v8, 3, v0")
    a(f"v_mul_u32_u24 v8, {8*1280}, v8")
    a("v_and_b32 v10, 7, v0")
    a("v_lshl_add_u32 v8, v10, 4, v8")
    a(f"v_mul_u32_u24 v9, {8*1280}, v6")
    a("v_lshl_add_u32 v9, v7, 4, v9")
    a("v_bfe_u32 v10, v0, 1, 3")
    a("v_xor_b32 v10, v10, v6")
    a("v_lshlrev_b32 v10, 4, v10")
    a("v_lshl_add_u32 v10, v7, 7, v10")
    a("s_and_b32 s66, s40, 15")
    a("s_lshl_b32 s66, s66, 11")
    a("v_add_u32 v10, s66, v10")
    for k in range(3):
        a(f"v_add_u32 v{12+2*k}, {k*XS}, v10")
        a(f"v_xor_b32 v{13+2*k}, 64, v{12+2*k}")
    for k in range(4):
        a(f"v_mov_b32 v{GA+k}, 0")
    a("s_lshr_b32 s65, s65, 1")
    a("s_mul_i32 s70, s65, 698")
    a("s_lshr_b32 s70, s70, 16")
    a("s_mul_i32 s69, s70, 94")
    a("s_sub_u32 s69, s65, s69")
    a("s_sub_u32 s66, s69, 54")
    a("s_and_b32 s67, s66, 1")
    a("s_lshl_b32 s68, s70, 1")
    a("s_add_u32 s67, s67, s68")
    a("s_bfe_u32 s84, s66, 0x10001")
    a("s_lshr_b32 s66, s66, 2")
    a("s_lshl_b32 s85, s66, 7")
    a(f"s_mul_i32 s68, s67, {64*1280}")
    a("s_add_u32 s85, s85, s68")
    a("s_lshl_b32 s66, s66, 2")
    a("s_add_u32 s66, s66, s84")
    a("s_lshl_b32 s67, s67, 2")
    a(f"s_mul_i32 s86, s69, {32*1280}")
    a("s_lshl_b32 s68, s70, 8")
    a("s_add_u32 s86, s86, s68")
    a("s_lshl_b32 s70, s70, 3")
    a("s_cmp_lt_u32 s69, 54")
    a("s_cselect_b32 s88, 1, 0")
    a("s_add_u32 s69, s69, 40")
    a("s_cmp_eq_u32 s88, 1")
    a("s_cselect_b32 s66, s69, s66")
    a("s_cselect_b32 s67, s70, s67")
    a("s_cselect_b32 s85, s86, s85")
    a("s_cselect_b64 vcc, -1, 0")
    a(f"s_add_u32 s86, s85, {4*1280}")
    a("v_cndmask_b32 v8, v8, v9, vcc")
    a(f"s_mul_i32 s87, s66, {WK}")
    a("s_cmp_ge_u32 s65, 470")
    a("s_cselect_b32 s87, 0x40000000, s87")
    a("s_cmp_eq_u32 s88, 1")
    for t in range(8):
        a(f"s_movk_i32 s68, {(t >> 2)*2*WK + (t & 3)*256}")
        a(f"s_cselect_b32 s68, {(t & 1)*128}, s68")
        a(f"s_lshl1_add_u32 s69, 0, s68" if False else f"s_or_b32 s69, s68, 0")
        a(f"s_add_u32 s{76+t}, s69, s87")
        a("s_cmp_eq_u32 s88, 1")
    a("v_bfe_u32 v9, v0, 3, 1")
    a("v_lshlrev_b32 v9, 2, v9")
    a("v_lshlrev_b32 v18, 8, v6")
    a("v_and_b32 v20, 7, v0")
    a("v_lshl_add_u32 v18, v20, 4, v18")
    a("v_lshlrev_b32 v20, 4, v7")
    a("v_cndmask_b32 v18, v20, v18, vcc")
    for j in range(4):
        a(f"v_add_u32 v20, {j}, v9")
        a("v_cndmask_b32 v20, v6, v20, vcc")
        a("v_add_u32 v20, s67, v20")
        a("v_mul_u32_u24 v22, 52, v20")
        a("v_lshrrev_b32 v22, 8, v22")
        a(f"v_mul_u32_u24 v22, {WT - 5120}, v22")
        a("v_lshl_add_u32 v22, v20, 10, v22")
        a(f"v_add_u32 v{VA+j}, v22, v18")
    warm_stage_xb(a, o, 1)
    def gstep(s):
        sl = slot_of(s)
        a(f"ds_read_b128 {vr(XF, 4)}, v{12+2*sl}")
        a(f"ds_read_b128 {vr(XF+4, 4)}, v{13+2*sl}")
        a("s_waitcnt lgkmcnt(0)")
        a(f"v_mfma_f32_16x16x32_bf16 {vr(GA, 4)}, {vr(GWF+8*s, 4)}, {vr(XF, 4)}, {vr(GA, 4)}")
        a(f"v_mfma_f32_16x16x32_bf16 {vr(GA, 4)}, {vr(GWF+8*s+4, 4)}, {vr(XF+4, 4)}, {vr(GA, 4)}")
    def ev_load():
        a("s_cmp_eq_u32 s84, 0")
        a(f"s_cselect_b32 s56, s{P_CRE}, s{P_CIM}")
        a(f"s_cselect_b32 s57, s{P_CRE+1}, s{P_CIM+1}")
        a(f"s_mov_b32 s58, {640*1280}")
        a("s_cmp_eq_u32 s88, 1")
        a(f"s_cselect_b32 s56, s{P_W2}, s56")
        a(f"s_cselect_b32 s57, s{P_W2+1}, s57")
        a(f"s_cselect_b32 s58, {1728*1280}, s58")
        a("s_mov_b32 s59, 0x20000")
        for e in range(8):
            a(f"buffer_load_dwordx4 {vr(RJ+4*e, 4)}, v8, s[56:59], s{85 + (e >> 2)} offen offset:{(e & 3)*1280}")
    def ev_store(jb):
        if jb == 0:
            srd(a, 56, P_WS, W2_SIZE, W2_OFF)
            a("s_mov_b32 s70, 0x05040100")
            a("s_mov_b32 s71, 0x07060302")
            a("s_waitcnt vmcnt(0)")
            a("s_cmp_eq_u32 s88, 0")
            a("s_cbranch_scc1 Lh_noperm")
            for t in range(8):
                for e in range(4):
                    a(f"v_perm_b32 v{OJ+4*t+e}, v{RJ+8*e+4+(t >> 1)}, v{RJ+8*e+(t >> 1)}, s{70+(t & 1)}")
            a("s_branch Lh_tr")
            a.label("Lh_noperm")
            for k in range(0, 32, 2):
                a(f"v_pk_mov_b32 {vr(OJ+k, 2)}, {vr(RJ+k, 2)}, {vr(RJ+k, 2)} op_sel:[0,1]")
            a.label("Lh_tr")
            for (src, dst, x, dp, m) in ((OJ, O2, 1, ("quad_perm:[1,0,3,2]",)*2, 0xaaaaaaaa), (O2, OJ, 2, ("quad_perm:[2,3,0,1]",)*2, 0xcccccccc),
                                         (OJ, O2, 4, ("row_shr:4", "row_shl:4"), 0xf0f0f0f0)):
                for hi in (1, 0):
                    mm = m if hi else (~m & 0xffffffff)
                    a(f"s_mov_b32 vcc_lo, {mm:#x}")
                    a(f"s_mov_b32 vcc_hi, {mm:#x}")
                    a("s_nop 1")
                    for t in range(8):
                        if bool(t & x) != bool(hi):
                            continue
                        for e in range(4):
                            a(f"v_cndmask_b32_dpp v{dst+4*t+e}, v{src+4*(t ^ x)+e}, v{src+4*t+e}, vcc {dp[hi]} row_mask:0xf bank_mask:0xf bound_ctrl:0")
        for t in range(4*jb, 4*jb + 4):
            a(f"buffer_store_dwordx4 {vr(O2+4*t, 4)}, v{VA + (t >> 1)}, s[56:59], s{76 + t} offen sc1")
    def ev_drain():
        a("s_mov_b32 s72, 0")
        a.label("Lh_npoll")
        a("s_waitcnt vmcnt(0)")
        a("v_readfirstlane_b32 s64, v23")
        a("s_add_u32 s72, s72, 1")
        a("s_cmp_lg_u32 s64, 0")
        a("s_cbranch_scc1 Lh_ngot")
        a("buffer_load_dword v23, v19, s[60:63], 0 offen sc1")
        a(f"s_cmp_lt_u32 s72, {SPIN_MAX:#x}")
        a("s_cbranch_scc1 Lh_npoll")
        a.label("Lh_ngot")
        a(f"v_mov_b32 v22, {NONCE_LDS}")
        a("ds_write_b32 v22, v23")
        a("s_waitcnt lgkmcnt(0)")
    def ev_flag():
        srd(a, 56, P_WS, FW_SIZE, FW_OFF)
        a("s_cmp_lg_u32 s90, 2")
        a("s_cbranch_scc1 Lh_noflag")
        a("s_lshl_b32 s66, s2, 7")
        a("v_lshlrev_b32 v22, 2, v0")
        a("s_mov_b32 exec_hi, 0")
        if not o.fullflag:
            a("s_mov_b32 exec_lo, 1")
        a("buffer_store_dword v23, v22, s[56:59], s66 offen sc1")
        a("s_mov_b64 exec, -1")
        a.label("Lh_noflag")
    t_ld, t_s0, t_s1, t_dr = o.hsched
    assert t_ld < t_s0 <= t_s1 < t_dr <= 6
    nyoung = 0
    if o.vwarm:
        a("s_cmp_eq_u32 s90, 3")
        a("s_cbranch_scc1 Lh_wx")
        a("s_and_b32 s68, s2, 1")
        a("s_cmp_eq_u32 s68, 0")
        a(f"s_cselect_b32 s56, s{P_W1}, s{P_W3}")
        a(f"s_cselect_b32 s57, s{P_W1+1}, s{P_W3+1}")
        a(f"s_mov_b32 s58, {640*3456}")
        a("s_mov_b32 s59, 0x20000")
        a("s_lshr_b32 s68, s2, 1")
        a("s_mul_i32 s68, s68, 1728")
        a("v_min_u32 v24, 704, v21")
        for st in range(1, 10 if o.vwarm == 1 else 1):
            a(f"s_add_u32 s68, s68, {64*3456}")
            a("buffer_load_dwordx4 v[28:31], v21, s[56:59], s68 offen")
            a("buffer_load_dwordx4 v[28:31], v24, s[56:59], s68 offen offset:1008")
        a("s_branch Lh_wd")
        a.label("Lh_wx")
        srd(a, 52, P_X, 2048 * 1280)
        a("s_cmp_lt_u32 s2, 128")
        a(f"s_cselect_b32 s56, s{P_BRE}, s{P_BIM}")
        a(f"s_cselect_b32 s57, s{P_BRE+1}, s{P_BIM+1}")
        a(f"s_mov_b32 s58, {640*1280}")
        a("s_mov_b32 s59, 0x20000")
        a("v_lshrrev_b32 v24, 3, v0")
        a("v_min_u32 v25, 4, v24")
        a("v_and_b32 v26, 7, v0")
        a("v_lshlrev_b32 v26, 4, v26")
        a("v_mad_u32_u24 v24, v24, s98, v26").__class__
        a.l.pop()
        a("v_mul_u32_u24 v24, 1280, v24")
        a("v_mul_u32_u24 v25, 1280, v25")
        a("v_add_u32 v24, v24, v26")
        a("v_add_u32 v25, v25, v26")
        a(f"s_mul_i32 s68, s2, {8*1280}")
        a("s_and_b32 s69, s2, 127")
        a(f"s_mul_i32 s69, s69, {5*1280}")
        if o.vwarm == 3 and o.map1 == "8x1":
            a("s_lshl_b32 s68, s39, 5")
            a("s_lshr_b32 s69, s2, 3")
            a("s_add_u32 s68, s68, s69")
            a(f"s_mul_i32 s68, s68, {8*1280}")
        if o.vwarm == 4:
            for k in range(7):
                a(f"buffer_load_dwordx4 v[28:31], v21, s[56:59], s69 offen")
                a(f"s_add_u32 s69, s69, {1024 if k < 5 else 256}")
        else:
            for st in range(0 if o.vwarm == 3 else 1, 10):
                a(f"buffer_load_dwordx4 v[28:31], v24, s[52:55], s68 offen offset:{st*128}")
                if o.vwarm != 3:
                    a(f"buffer_load_dwordx4 v[28:31], v25, s[56:59], s69 offen offset:{st*128}")
        a.label("Lh_wd")
        nyoung = {3: 10, 4: 7}.get(o.vwarm, 18)
    if t_ld < 0:
        ev_load()
        nyoung += 8
    a(f"s_waitcnt vmcnt({nyoung})")
    assert t_dr + 1 < o.vlook
    for s in range(o.vlook):
        stamp(a, o, 8 + s)
        a("s_barrier")
        gstep(s)
        if s == t_dr: ev_drain()
        if s == t_dr + 1: ev_flag()
        if s < 5:
            warm_stage_xb(a, o, 1)
        if s == t_ld: ev_load()
        if s == t_s0: ev_store(0)
        if s == t_s1: ev_store(1)
        if s == t_dr - 1: a("buffer_load_dword v23, v19, s[60:63], 0 offen sc1")
        if o.tlb and s == o.tlb:
            a("s_cmp_eq_u32 s90, 2")
            a(f"s_cselect_b32 s52, s{P_WS}, s{P_OUT}")
            a(f"s_cselect_b32 s53, s{P_WS+1}, s{P_OUT+1}")
            a(f"s_mov_b32 s54, {2048*2560}")
            a(f"s_cselect_b32 s54, {FW_OFF + FW_SIZE}, s54")
            a("s_mov_b32 s55, 0x20000")
            a("v_lshlrev_b32 v30, 20, v0")
            a("buffer_load_dword v31, v30, s[52:55], 0 offen sc1")
        if o.hops and s == o.hopsched[0]:
            a("s_mov_b64 exec, 0")
            a("s_cmp_eq_u32 s41, 0")
            a("s_cbranch_scc1 Lhop_fe_0")
            a("s_cmp_eq_u32 s90, 2")
            a("s_cbranch_scc1 Lhop_s1_0")
            a("s_branch Lhop_s2_0")
            a.label("Lhopret_fe"); a.label("Lhopret_s1"); a.label("Lhopret_s2")
            a("s_mov_b64 exec, -1")
        if o.hops and s == o.hopsched[1]:
            a("s_mov_b64 exec, 0")
            a("s_cmp_eq_u32 s90, 2")
            a("s_cbranch_scc1 Lhop_pc_0")
            a("s_branch Lhop_pl_0")
            a.label("Lhopret_pc"); a.label("Lhopret_pl")
            a("s_mov_b64 exec, -1")
    def hook(s):
        if s < 10:
            gstep(s)
            return
        a("s_cmp_ge_u32 s73, 16")
        a("s_cbranch_scc1 Lh_nog")
        a(f"v_cvt_pk_bf16_f32 v{GA}, v{GA}, v{GA}")
        a(f"v_lshlrev_b32 v{GA}, 16, v{GA}")
        a(f"v_mul_f32 v{GA}, {NLOG2E:#x}, v{GA}")
        a(f"v_exp_f32 v{GA}, v{GA}")
        a("s_nop 0")
        a(f"v_add_f32 v{GA}, 1.0, v{GA}")
        a(f"v_rcp_f32 v{GA}, v{GA}")
        a("s_nop 0")
        a(f"v_cvt_pk_bf16_f32 v{GA}, v{GA}, v{GA}")
        a(f"v_lshlrev_b32 v{GA}, 16, v{GA}")
        a(f"v_mov_b32 v{GA+1}, s64")
        srd(a, 60, P_WS, G_SIZE, G_OFF)
        a("v_lshlrev_b32 v2, 3, v0")
        a("s_lshl_b32 s66, s39, 4")
        a("s_add_u32 s66, s66, s40")
        a("s_lshl_b32 s66, s66, 7")
        a("s_mov_b64 exec, 0xffff")
        a(f"buffer_store_dwordx2 {vr(GA, 2)}, v2, s[60:63], s66 offen sc1")
        a("s_mov_b64 exec, -1")
        a.label("Lh_nog")
    p2_prefetch(a, o, vm, o.cuts_h, False, hook)
    a.seg("pl")
    a.label("L_p2l")
    a(f"s_setprio {o.lprio}")

def lds_wait(a, name, off):
    a("s_mov_b32 s72, 0")
    a.label(f"{name}poll")
    a(f"ds_read_b32 v7, v6 offset:{off}")
    a("s_waitcnt lgkmcnt(0)")
    a("v_cmp_ne_u32 vcc, s64, v7")
    a("s_add_u32 s72, s72, 1")
    a("s_cmp_eq_u64 vcc, 0")
    a(f"s_cbranch_scc1 {name}got")
    a("s_sleep 1")
    a(f"s_cmp_lt_u32 s72, {SPIN_MAX*4:#x}")
    a(f"s_cbranch_scc1 {name}poll")
    a.label(f"{name}got")

def p2(a, o, loader):
    X = "L" if loader else "C"
    vm = VM(a)
    NS = 14 if loader else 10
    wreg = {}; hreg = {}
    if loader:
        ACC = L_ACC
        for n in range(6):
            for dt in range(5):
                wreg[n, dt] = L_W + n * 20 + dt * 4
        free = [L_H + 4 * i for i in range(12)]
        VO = 1
        lds_steps = ()
    else:
        ACC = C_ACC
        for k, n in enumerate(C_RSTEPS):
            for dt in range(5):
                wreg[n, dt] = C_WR + k * 20 + dt * 4
        lds_steps = tuple(range(2, 8))
        for n in lds_steps:
            for dt in range(5):
                wreg[n, dt] = C_WL + (((n - 2) * 5 + dt) % 6) * 4
        free = [C_H + 4 * i for i in range(12)]
        VO = 12
    acc = lambda dt, mi: ACC + (dt * 4 + mi) * 4
    srd(a, 56, P_WS, FH_SIZE, FH_OFF)
    if not loader:
        a("v_mov_b32 v3, s64")
        a("s_lshl_b32 s68, s90, 2")
        a(f"s_add_u32 s68, s68, {SFLAG_LDS}")
        a("v_mov_b32 v6, s68")
        a("s_waitcnt vmcnt(0)")
        a("s_mov_b64 exec, s[66:67]")
        a(f"buffer_store_dword v3, v2, s[56:59], s65 offen {o.hst}")
        a("s_mov_b64 exec, -1")
        a(f"s_setprio {o.cprio2}")
        if o.gate:
            a("ds_write_b32 v6, v3 offset:288")
        stamp(a, o, 7)
        lds_wait(a, "L2C_f", 144)
        if not o.opoll:
            for k in range(4):
                c_wload(a, k)
        a(f"s_mul_i32 s68, s90, {CREG}")
        a(f"v_add_u32 v4, s68, v{VO}")
    a("s_lshl_b32 s80, s74, 12")
    a(f"s_mul_i32 s69, s42, {HT}")
    a("s_add_u32 s80, s80, s69")
    a(f"s_mul_i32 s69, s101, {NS//2*HK}")
    a("s_add_u32 s80, s80, s69")
    a(f"s_mul_i32 s83, s101, {-NS*HK}")
    a(f"s_add_u32 s83, s83, {HK}")
    if loader:
        a(f"s_mul_i32 s75, s101, {-NS*WK}")
        a(f"s_add_u32 s75, s75, {WK}")
    if loader:
        a("s_mul_i32 s68, s90, 7")
        a("s_add_u32 s68, s68, 22")
        a("s_cmp_eq_u32 s90, 2")
        a("s_cselect_b32 s69, 6, 7")
        a("s_cmp_eq_u32 s90, 3")
        a("s_cselect_b32 s68, 0, s68")
        a("s_cselect_b32 s69, 6, s69")
    else:
        a("s_lshl_b32 s68, s90, 2")
        a("s_add_u32 s68, s68, 5")
        a("s_mov_b32 s69, 5")
    a("s_bfm_b64 s[78:79], s69, s68")
    a("v_lshlrev_b32 v2, 7, v0")
    a("s_lshl_b32 s65, s42, 13")
    if loader and o.gate:
        a("s_lshl_b32 s70, s90, 2")
        a(f"s_add_u32 s70, s70, {SFLAG_LDS}")
        a("v_mov_b32 v6, s70")
        lds_wait(a, "L2L_g", 288)
        if o.xstage:
            assert not o.rot2
            a("s_mul_i32 s70, s90, 9216")
            a(f"s_add_u32 s70, s70, {S_TR}")
            a("s_mov_b32 m0, s70")
            a("v_add_u32 v2, s70, v1")
            for i in range(4):
                a(f"buffer_load_dwordx4 v1, s[52:55], s76 offen offset:{i*1024} sc1 lds")
            a("s_add_u32 m0, m0, 4096")
            a(f"s_add_u32 s76, s76, {WK}")
            a("buffer_load_dwordx4 v1, s[52:55], s77 offen sc1 lds")
            a("s_add_u32 m0, m0, 1024")
            a(f"s_add_u32 s77, s77, {WK}")
            for i in range(4):
                a(f"buffer_load_dwordx4 v1, s[52:55], s76 offen offset:{i*1024} sc1 lds")
            a(f"s_add_u32 s76, s76, {WK}")
    stamp(a, o, 40)
    if o.dspan and not loader:
        a("s_cmp_lg_u32 s38, 0")
        a("s_cbranch_scc1 Ld2")
        dmark(a, o, 6)
        a.label("Ld2")
    a("s_mov_b32 s72, 0")
    if o.spoll:
        nf = 7 if loader else 5
        a("s_lshl_b32 s68, s68, 7")
        a("s_add_u32 s68, s68, s65")
        a("s_add_u32 s78, s56, s68")
        a("s_addc_u32 s79, s57, 0")
        a("s_sub_u32 s69, s69, 1")
        a("s_lshl_b32 s69, s69, 7")
        def sl():
            for k in range(nf - 1):
                a(f"s_load_dword s{6+k}, s[78:79], {k*128} glc")
            a(f"s_load_dword s{6+nf-1}, s[78:79], s69 glc")
        if not loader and o.opoll:
            for k in range(4):
                if k == o.opoll:
                    sl()
                c_wload(a, k)
            a("s_branch L2C_chk")
        a.label(f"L2{X}_poll")
        sl()
        a.label(f"L2{X}_chk")
        a("s_waitcnt lgkmcnt(0)")
        for k in range(nf):
            a(f"s_xor_b32 s{6+k}, s{6+k}, s64")
        for k in range(1, nf):
            a(f"s_or_b32 s6, s6, s{6+k}")
        a(f"s_cbranch_scc0 L2{X}_go")
        a(f"s_sleep {o.poll_sleep}")
        a("s_add_u32 s72, s72, 1")
        a(f"s_cmp_lt_u32 s72, {SPIN_MAX:#x}")
        a(f"s_cbranch_scc1 L2{X}_poll")
        if not loader:
            vm.q = [("w", n) for n in C_RSTEPS for _ in range(5)]
    else:
        a.label(f"L2{X}_poll")
        a("s_mov_b64 exec, s[78:79]")
        a("buffer_load_dword v3, v2, s[56:59], s65 offen sc1")
        a("s_waitcnt vmcnt(0)")
        a("v_cmp_ne_u32 vcc, s64, v3")
        a("s_mov_b64 exec, -1")
        a("s_and_b64 s[78:79], vcc, s[78:79]")
        a(f"s_cbranch_scc0 L2{X}_go")
        a(f"s_sleep {o.poll_sleep}")
        a("s_add_u32 s72, s72, 1")
        a(f"s_cmp_lt_u32 s72, {SPIN_MAX:#x}")
        a(f"s_cbranch_scc1 L2{X}_poll")
    a.label(f"L2{X}_go")
    stamp(a, o, 41)
    needs = []
    for n in range(NS):
        if loader and n >= 6:
            needs += [("l" if o.xstage and (n - 6) * 5 + i < 9 else "w", n, i) for i in range(5)]
        needs += [("h", n, i) for i in range(4)]
    E = {}
    cur = [0]
    look = o.look_l if loader else o.look_c
    def try_issue(force=False):
        if not needs or not free:
            return False
        if needs[0][1] > cur[0] + look and not force:
            return False
        kind, n, i = needs.pop(0)
        r = free.pop(0)
        tog = loader and o.ltog and started[0]
        if tog:
            a("s_setprio 0")
        if kind == "l":
            assert cur[0] >= 1
            wreg[n, i] = r
            a(f"ds_read_b128 {vr(r, 4)}, v2 offset:{((n - 6)*5 + i)*1024}")
        elif kind == "h":
            hreg[n, i] = r
            vm.op(f"buffer_load_dwordx4 {vr(r, 4)}, v{VO}, s[48:51], s80 offen offset:{i*1024} {o.hld}", ("h", n))
            if i == 3 and not o.dbg_sameh:
                a(f"s_add_u32 s80, s80, {HK if n != NS//2 - 1 else 's83'}")
        else:
            wreg[n, i] = r
            vm.op(f"buffer_load_dwordx4 {vr(r, 4)}, v{VO}, s[52:55], s{76 + (i >> 2)} offen offset:{(i & 3)*1024} {o.hld}", ("w", n))
            if i >= 3:
                a(f"s_add_u32 s{76 + (i >> 2)}, s{76 + (i >> 2)}, {WK if n != NS//2 - 1 else 's75'}")
        if tog:
            a(f"s_setprio {o.ltog}")
        return True
    started = [False]
    while try_issue():
        pass
    started[0] = True
    if loader and o.ltog:
        a(f"s_setprio {o.ltog}")
    VS = 4 if loader else 8
    a(f"v_lshrrev_b32 v{VS}, 4, v0")
    a("v_bfe_u32 v3, v0, 1, 2")
    a(f"v_xor_b32 v{VS}, v{VS}, v3")
    a("v_and_b32 v3, 15, v0")
    a(f"v_lshl_or_b32 v{VS}, v3, 2, v{VS}")
    a(f"v_lshlrev_b32 v{VS}, 4, v{VS}")
    if not loader:
        a("v_bfe_u32 v9, v0, 3, 2")
        a("v_xor_b32 v9, v9, v0")
        a("v_lshlrev_b32 v9, 4, v9")
    if loader:
        a(f"s_mul_i32 s68, s90, {2*CREG}")
        a("s_add_u32 s68, s68, 20480")
        a(f"s_add_u32 s69, s68, {CREG}")
        a("s_mul_i32 s70, s90, 20480")
        a(f"s_add_u32 s70, s70, {122880 - 2*20480}")
        a("s_add_u32 s82, s70, 10240")
        a("s_cmp_ge_u32 s90, 2")
        a("s_cselect_b32 s68, s70, s68")
        a("s_cselect_b32 s69, s82, s69")
        a("v_add_u32 v3, s68, v4")
        a("v_add_u32 v5, s69, v4")
    def lds_w(k):
        n, dt = 2 + k // 5, k % 5
        return f"ds_read_b128 {vr(wreg[n, dt], 4)}, v4 offset:{k*1024}"
    def eloads():
        E["g"] = free.pop(0); E["x"] = [free.pop(0) for _ in range(5)]
        srd(a, 60, P_WS, G_SIZE, G_OFF)
        a("v_lshrrev_b32 v2, 2, v0")
        a("v_lshlrev_b32 v3, 3, v2")
        a("s_lshl_b32 s68, s42, 6")
        a("s_lshl_b32 s69, s90, 4")
        a("s_add_u32 s68, s68, s69")
        a("s_lshl_b32 s81, s68, 3")
        a(f"v_mov_b32 v{E['g']+2}, v3")
        vm.op(f"buffer_load_dwordx2 {vr(E['g'], 2)}, v3, s[60:63], s81 offen sc1", "e")
        srd(a, 84, P_X, 2048 * 1280)
        a("v_and_b32 v3, 3, v0")
        a("v_lshlrev_b32 v3, 3, v3")
        a("v_mul_u32_u24 v2, 1280, v2")
        a("v_add_u32 v2, v2, v3")
        a("s_mul_i32 s71, s68, 1280")
        a("s_mul_i32 s69, s43, 160")
        a("s_add_u32 s71, s71, s69")
        for dt in range(5):
            vm.op(f"buffer_load_dwordx2 {vr(E['x'][dt], 2)}, v2, s[84:87], s71 offen offset:{dt*32}", "e")
        srd(a, 84, P_DSK, 1280)
        for dt in range(5):
            vm.op(f"buffer_load_dwordx2 {vr(E['x'][dt]+2, 2)}, v3, s[84:87], s69 offen offset:{dt*32}", "e")
        a("v_lshlrev_b32 v2, 1, v2")
        a("s_lshl_b32 s71, s71, 1")
        srd(a, 84, P_OUT, 2048 * 2560)
        a(f"s_mul_i32 s68, s90, {CREG}")
        a("v_add_u32 v3, s68, v8")
        a("v_add_u32 v5, 10240, v3")
    def put(dt):
        for mi in range(4):
            a(f"ds_write_b128 v{3 if mi < 2 else 5}, {vr(acc(dt, mi), 4)} offset:{((mi & 1)*5 + dt)*1024}")
    def mfma(n, dt, mi):
        c = "0" if n == 0 else vr(acc(dt, mi), 4)
        if o.dbg_nomfma:
            return
        a(f"v_mfma_f32_16x16x32_bf16 {vr(acc(dt, mi), 4)}, {vr(wreg[n, dt], 4)}, {vr(hreg[n, mi], 4)}, {c}")
    SP = (6, 8, 10, 12, 14, 16, 18, 22, 24, 26, 28, 30, 94, 98)
    def wait_step(n):
        need = [("h", n)]
        if loader and n >= (7 if o.xstage else 6):
            need.append(("w", n))
        vm.wait(*need)
        if loader and o.xstage and n in (6, 7):
            a("s_waitcnt lgkmcnt(0)")
        if o.stamps == 3:
            a(f"s_memrealtime s[{SP[n]}:{SP[n]+1}]")
        elif o.stamps and n in (0, 1, 5):
            stamp(a, o, 42 + (0, 1, 5).index(n))
    for n in range(NS - 2):
        cur[0] = n
        wait_step(n)
        if not loader and n == 1:
            a("v_and_b32 v6, 3, v0")
            a("v_lshlrev_b32 v6, 2, v6")
            a(f"v_add_u32 v6, {SFLAG_LDS}, v6")
            lds_wait(a, "L2C_s", 0)
            for k in range(5):
                a(lds_w(k))
        for dt in range(5):
            if n in lds_steps:
                f = (n - 2) * 5 + dt
                a(f"s_waitcnt lgkmcnt({min(29, f + 4) - f})")
            for mi in range(4):
                mfma(n, dt, mi)
                if mi == 0 and n in lds_steps and (n - 2) * 5 + dt + 5 < 30:
                    a(lds_w((n - 2) * 5 + dt + 5))
                if dt == 4:
                    free.append(hreg[n, mi])
                if mi % 2 == 1:
                    try_issue()
            if n not in lds_steps:
                free.append(wreg[n, dt])
        while (min(n + 2, NS - 1), 3) not in hreg:
            assert try_issue(True)
        if loader and n == o.mstep:
            a("s_barrier")
        if not loader and not needs and not E and len(free) >= 6:
            eloads()
    assert not needs and (loader or E)
    wait_step(NS - 2)
    for mi in range(4):
        mfma(NS - 2, 0, mi)
    wait_step(NS - 1)
    for dt in range(5):
        if dt < 4:
            for mi in range(4):
                mfma(NS - 2, dt + 1, mi)
        for mi in range(4):
            mfma(NS - 1, dt, mi)
        if dt >= 1:
            if dt == 4:
                a("s_nop 3")
            put(dt - 1)
    stamp(a, o, 45)
    a("s_nop 3")
    put(4)
    if loader:
        a("s_waitcnt lgkmcnt(0)")
        stamp(a, o, 46)
        a("s_barrier")
    else:
        vm.wait("e")
        T = free.pop(0)
        for dt in range(5):
            b = E["x"][dt]
            a(f"v_lshlrev_b32 v{T}, 16, v{b+2}")
            a(f"v_and_b32 v{T+1}, 0xffff0000, v{b+2}")
            a(f"v_lshlrev_b32 v{T+2}, 16, v{b+3}")
            a(f"v_and_b32 v{T+3}, 0xffff0000, v{b+3}")
            a(f"v_lshlrev_b32 v{b+2}, 16, v{b+1}")
            a(f"v_and_b32 v{b+3}, 0xffff0000, v{b+1}")
            a(f"v_and_b32 v{b+1}, 0xffff0000, v{b}")
            a(f"v_lshlrev_b32 v{b}, 16, v{b}")
            for p in range(2):
                a(f"v_pk_mul_f32 {vr(b+2*p, 2)}, {vr(b+2*p, 2)}, {vr(T+2*p, 2)}")
                a(f"v_cvt_pk_bf16_f32 v{b+2*p+1}, v{b+2*p}, v{b+2*p+1}")
                a(f"v_lshlrev_b32 v{b+2*p}, 16, v{b+2*p+1}")
                a(f"v_and_b32 v{b+2*p+1}, 0xffff0000, v{b+2*p+1}")
        G = E["g"]
        a("s_mov_b32 s72, 0")
        a.label("L2C_gpoll")
        a(f"v_cmp_ne_u32 vcc, s64, v{G+1}")
        a("s_cmp_eq_u64 vcc, 0")
        a("s_cbranch_scc1 L2C_ggot")
        a(f"buffer_load_dwordx2 {vr(G, 2)}, v{G+2}, s[60:63], s81 offen sc1")
        a("s_waitcnt vmcnt(0)")
        a("s_add_u32 s72, s72, 1")
        a(f"s_cmp_lt_u32 s72, {SPIN_MAX:#x}")
        a("s_cbranch_scc1 L2C_gpoll")
        a.label("L2C_ggot")
        a(f"v_sub_f32 v{G+1}, 1.0, v{G}")
        a(f"v_cvt_pk_bf16_f32 v{G+1}, v{G+1}, v{G+1}")
        a(f"v_lshlrev_b32 v{G+1}, 16, v{G+1}")
        a("s_mul_i32 s68, s90, 5120")
        a("v_add_u32 v3, s68, v9")
        a(f"v_add_u32 v4, {2*CREG}, v3")
        a(f"v_add_u32 v6, {4*CREG}, v3")
        a("s_lshr_b32 s69, s90, 1")
        a(f"s_mul_i32 s69, s69, {CREG - 10240}")
        a("s_add_u32 s69, s69, 20480")
        a("v_add_u32 v5, s69, v3")
        a(f"v_add_u32 v7, {2*CREG}, v5")
        a("s_waitcnt lgkmcnt(0)")
        a("s_barrier")
        RD = ACC
        SUM = [free.pop(0) for _ in range(5)]
        src = {0: (3, 0), 1: (3, CREG), 2: (4, 0), 3: (4, CREG), 4: (5, 0), 5: (7, 0), 6: (6, 0), 7: (6, 20480)}
        def rd(dt, lo):
            for s in range(4):
                v, off = src[lo + s]
                a(f"ds_read_b128 {vr(RD + dt*16 + s*4, 4)}, v{v} offset:{off + dt*1024}")
        def sweep(lo, fn):
            for dt in range(3):
                rd(dt, lo)
            for dt in range(5):
                a(f"s_waitcnt lgkmcnt({4*min(2, 4-dt)})")
                fn(dt)
                if dt + 3 < 5:
                    rd(dt + 3, lo)
        def csum(dt):
            for p in range(2):
                r = lambda s: vr(RD + dt*16 + 4*s + 2*p, 2)
                a(f"v_pk_add_f32 {r(0)}, {r(0)}, {r(1)}")
                a(f"v_pk_add_f32 {r(2)}, {r(2)}, {r(3)}")
                a(f"v_pk_add_f32 {vr(SUM[dt]+2*p, 2)}, {r(0)}, {r(2)}")
        sweep(0, csum)
        stamp(a, o, 46)
        a("s_barrier")
        stamp(a, o, 47)
        def fin(dt):
            sk = E["x"][dt]
            for p in range(2):
                r = lambda s: vr(RD + dt*16 + 4*s + 2*p, 2)
                B = SUM[dt] + 2*p
                a(f"v_pk_add_f32 {vr(B, 2)}, {vr(B, 2)}, {r(3)}")
                a(f"v_pk_add_f32 {r(0)}, {r(0)}, {r(1)}")
                a(f"v_pk_add_f32 {r(2)}, {r(2)}, {vr(sk+2*p, 2)}")
                a(f"v_cvt_pk_bf16_f32 v{B+1}, v{B}, v{B+1}")
                a(f"v_pk_add_f32 {r(0)}, {r(0)}, {r(2)}")
                a(f"v_lshlrev_b32 v{B}, 16, v{B+1}")
                a(f"v_and_b32 v{B+1}, 0xffff0000, v{B+1}")
                a(f"v_pk_mul_f32 {vr(B, 2)}, {vr(G, 2)}, {vr(B, 2)} op_sel:[1,0] op_sel_hi:[1,1]")
                a(f"v_cvt_pk_bf16_f32 v{B+1}, v{B}, v{B+1}")
                a(f"v_lshlrev_b32 v{B}, 16, v{B+1}")
                a(f"v_and_b32 v{B+1}, 0xffff0000, v{B+1}")
                a(f"v_pk_fma_f32 {vr(sk+2*p, 2)}, {vr(G, 2)}, {r(0)}, {vr(B, 2)} op_sel_hi:[0,1,1]")
            a(f"buffer_store_dwordx4 {vr(sk, 4)}, v2, s[84:87], s71 offen offset:{dt*64} {o.out_store}")
        sweep(4, fin)
    stamp(a, o, 48)
    if o.stamps == 3:
        for n in range(NS):
            a(f"v_writelane_b32 v254, s{SP[n]}, {8+n}")
        for n in range(22, 32):
            a(f"v_writelane_b32 v254, 0, {n}")
    stamp_flush(a, o)
    a("s_endpgm")

import subprocess, re, os
VOP_WIDEN = re.compile(r"^\s+(v_(?:exp|rcp|mov|lshlrev|and|add|sub|mul|xor|or|cvt|sin|cos|rndne|lshrrev|min|max|subrev)_\w+?)(_e32)?\s")
def sizes_of(lines, o):
    src = wrap("\n".join(lines) + "\n", o)
    open("_al.s", "w").write(src)
    subprocess.run(["clang", "-x", "assembler", "-target", "amdgcn-amd-amdhsa", "-mcpu=gfx950", "-c", "_al.s", "-o", "_al.o"], check=True)
    d = subprocess.run(["llvm-objdump", "-d", "--mcpu=gfx950", "_al.o"], capture_output=True, text=True).stdout
    return [len(m.group(1).split()) * 4 for m in re.finditer(r"// [0-9A-F]{12}: ([0-9A-F ]+)", d)]
def is_ins(l):
    t = l.strip()
    return l.startswith("    ") and t and not t.startswith(";") and not t.startswith(".")
def finalize(a, o):
    out = []; cur = None; cnt = 0; nh = 0
    for l in a.l:
        if isinstance(l, tuple):
            if cur and o.hops:
                out.append(f"Lhop_{cur}_{nh}:")
                out.append(f"    s_cbranch_execz Lhopret_{cur}")
            cur = l[1]; cnt = 10**9; nh = 0
            continue
        for x in l.split("\n"):
            if cur and o.hops and is_ins(x):
                if cnt >= o.hops and not (out and re.match(r"\s+s_(add_u32|mov_b32) m0", out[-1])):
                    out.append(f"Lhop_{cur}_{nh}:")
                    out.append(f"    s_cbranch_execz Lhop_{cur}_{nh+1}")
                    nh += 1; cnt = 0
                cnt += 1
            out.append(x)
    if not o.align:
        return out
    sz = sizes_of(out, o)
    idx = [i for i, l in enumerate(out) if is_ins(l)]
    assert len(idx) == len(sz), (len(idx), len(sz))
    off = 0; ins_before = {}; last_widen = None
    k = 0
    while k < len(idx):
        if sz[k] % 8 == 0:
            run = 0
            while k + run < len(idx) and sz[k + run] % 8 == 0:
                run += 1
            if off % 8 and run >= o.align:
                if last_widen is not None:
                    m = VOP_WIDEN.match(out[idx[last_widen]])
                    out[idx[last_widen]] = out[idx[last_widen]].replace(m.group(1) + (m.group(2) or ""), m.group(1) + "_e64", 1)
                else:
                    ins_before[idx[k]] = "    s_nop 0"
                off += 4
            off += sum(sz[k:k + run]); k += run
            if run >= 2:
                last_widen = None
            continue
        if sz[k] == 4 and VOP_WIDEN.match(out[idx[k]]) and "dpp" not in out[idx[k]]:
            last_widen = k
        off += sz[k]; k += 1
    res = []
    for i, l in enumerate(out):
        if i in ins_before:
            res.append(ins_before[i])
        res.append(l)
    return res

def wrap(body, o):
    ref = open(f"cdna_kernels/{NAME}.s.ref").read().splitlines()
    head = [l for l in ref if l.startswith(";") and "@launch" not in l]
    out = "\n".join(head) + "\n"
    out += f"; @launch grid=(256,1,1) block=(512,1,1) lds={LDS_BYTES}\n"
    out += f'.amdgcn_target "amdgcn-amd-amdhsa--gfx950"\n.text\n.globl {NAME}_kernel\n'
    out += body
    out += f""".section .rodata,"a"
.p2align 6
.amdhsa_kernel {NAME}_kernel
  .amdhsa_next_free_vgpr 256
  .amdhsa_next_free_sgpr 102
  .amdhsa_accum_offset 256
  .amdhsa_group_segment_fixed_size 0
  .amdhsa_kernarg_size 136
  .amdhsa_user_sgpr_count 2
  .amdhsa_user_sgpr_kernarg_segment_ptr 1
  .amdhsa_system_sgpr_workgroup_id_x 1
.end_amdhsa_kernel
"""
    return out

def generate(o):
    return wrap("\n".join(finalize(kernel(o), o)) + "\n", o)

if __name__ == "__main__":
    o = Opt()
    path = f"cdna_kernels/{NAME}.s"
    for arg in sys.argv[1:]:
        k, v = arg.split("=", 1)
        if k == "out":
            path = v
        else:
            cur = getattr(o, k)
            setattr(o, k, type(cur)(int(v)) if isinstance(cur, (bool, int)) else tuple(int(x) for x in v.split(",")) if isinstance(cur, tuple) else v)
    open(path, "w").write(generate(o))
    print("wrote", path)
```

```python
import sys

NAME = "gated_mix__ssm_conv_s5__glu_gated_swiglu__prompt"

class Opt:
    stamps = 0
    map1 = "2x4"
    map2 = "4x2"
    out_store = "nt"
    poll_sleep = 4
    warm = False
    vwarm = 0
    lwarm = (0,)
    hprio = 2
    look_l = 3
    look_c = 4
    mstep = 11
    ltog = 0
    peel = 1
    cuts_f = (12, 22, 42)
    thr_f = 0
    b9b = 7
    speel = 0
    apos = 20
    sfill = 8
    sb10 = 11
    spad = 0
    cwait = 1
    spoll = 1
    apoll = 0
    tlb = 0
    vlook = 8
    gate = 1
    xq = 0
    fastw = 1
    snonce = 0
    eparam = 0
    xstage = 0
    dbg_nomfma = 0
    dbg_sameh = 0
    opoll = 2
    fullflag = 1
    cuts_v = (12, 24, 35, 45)
    thr_v = 4
    lfirst = 1
    rot2 = 0
    rot = 10
    rotm = 0
    rots = 1
    rotq = 8
    rotx = 6
    barpos = 2
    b9_back = 2
    epi_pk = 0
    fill_max = 10
    hops = 0
    align = 3
    hopsched = (3, 4, 5)
    ab = 1
    lead = 3
    cwarm = 2
    codepf = 1
    dspan = 0
    hst = "sc1"
    hld = "sc1"
    throttle = 0
    early_w = False
    cuts_l = (16, 34)
    cuts_h = (16, 34)
    hsched = (0, 1, 1, 3)
    thr_e = 6
    thr_t = 8
    pre_y = 0
    thr_y = 2
    lprio = 0
    agg_sleep = 1
    use_y = 0
    ssm_early = 1
    cprio = 3
    cprio2 = 0

HP_OFF  = 0
HP_SIZE = 94 * 128 * 1024
W2_OFF  = 0xC00000
W2_SIZE = 94 * 40 * 1024
HK = 4096
HT = 94 * HK
WK = 5120
WT = 94 * WK
G_OFF   = 0x1000000
G_SIZE  = 2048 * 8
AGG_OFF = 0x1010000
AGG_SIZE = 160 * 1024
FH_OFF  = 0x1040000
FH_SIZE = 32 * 8192
FW_OFF  = 0x1080000
FW_SIZE = 256 * 128
ST_OFF  = 0x1100000
ST_SIZE = 0x100000

LOG2E = 0x3fb8aa3b
NLOG2E = 0xbfb8aa3b
SPIN_MAX = 0x40000

class Asm:
    def __init__(self):
        self.l = []
    def __call__(self, s):
        self.l.append("    " + s)
    def label(self, s):
        self.l.append(s + ":")
    def c(self, s):
        self.l.append("    ; " + s)
    def raw(self, s):
        self.l.append(s)
    def text(self):
        return "\n".join(self.l) + "\n"
    def seg(self, name):
        self.l.append(("SEG", name))
    _uid = 0
    def uid(self):
        self._uid += 1
        return self._uid

class VM:
    def __init__(self, a):
        self.a = a; self.q = []
    def op(self, ins, tag=None):
        self.a(ins); self.q.append(tag)
    def wait(self, *tags):
        last = max(i for i, t in enumerate(self.q) if t in tags)
        n = len(self.q) - 1 - last
        assert n <= 63, n
        self.a(f"s_waitcnt vmcnt({n})")
    def drain(self):
        self.a("s_waitcnt vmcnt(0)"); self.q = []

def vr(b, n=1, p="v"):
    return f"{p}{b}" if n == 1 else f"{p}[{b}:{b+n-1}]"

def srd(a, d, base, size, off=0):
    if off:
        a(f"s_add_u32 s{d}, s{base}, {off:#x}")
        a(f"s_addc_u32 s{d+1}, s{base+1}, 0")
    else:
        a(f"s_mov_b32 s{d}, s{base}")
        a(f"s_mov_b32 s{d+1}, s{base+1}")
    a(f"s_mov_b32 s{d+2}, {size:#x}")
    a(f"s_mov_b32 s{d+3}, 0x20000")

P_X, P_LRE, P_LIM, P_BRE, P_BIM, P_CRE, P_CIM, P_LDT = 4, 6, 8, 10, 12, 14, 16, 18
P_DSK, P_BX, P_W1, P_W3, P_W2, P_GW, P_OUT, P_DBG, P_WS = 20, 22, 24, 26, 28, 30, 32, 34, 36

def stamp(a, o, slot):
    if not o.stamps or (8 <= slot < 32 and o.stamps != 2):
        return
    a("s_memrealtime s[92:93]")
    a("s_waitcnt lgkmcnt(0)")
    a(f"v_writelane_b32 v254, s92, {slot}")
def stamp_dyn(a, o, slot, sreg, mul):
    if not o.stamps:
        return
    a("s_memrealtime s[92:93]")
    a("s_waitcnt lgkmcnt(0)")
    a(f"s_mul_i32 s93, s{sreg}, {mul}")
    a(f"s_add_u32 s93, s93, {slot}")
    a("s_mov_b32 m0, s93")
    a("v_writelane_b32 v254, s92, m0")
def stamp_clk(a, o, slot):
    if not o.stamps:
        return
    a("s_memtime s[92:93]")
    a("s_waitcnt lgkmcnt(0)")
    a(f"v_writelane_b32 v254, s92, {slot}")
def dmark(a, o, slot, inv=False, tv=252):
    if not o.dspan:
        return
    srd(a, 96, P_DBG, 256)
    a("s_memrealtime s[92:93]")
    a("s_waitcnt lgkmcnt(0)")
    if inv:
        a("s_not_b32 s92, s92")
    a("v_mov_b32 v254, s92")
    a("v_mov_b32 v255, 0")
    a("s_mov_b64 exec, 1")
    a(f"buffer_atomic_umax v254, v255, s[96:99], 0 offen offset:{slot*4} sc1")
    a("s_mov_b64 exec, -1")

def stamp_setup(a, o):
    if not o.stamps:
        return
    a("v_mov_b32 v254, 0")
    a("s_lshl_b32 s91, s2, 3")
    a("s_add_u32 s91, s91, s38")
    a("s_lshl_b32 s91, s91, 8")
    a("v_lshlrev_b32 v255, 2, v0")
    stamp_clk(a, o, 62)
def stamp_flush(a, o):
    if not o.stamps:
        return
    a("s_waitcnt vmcnt(0)")
    stamp(a, o, 61)
    stamp_clk(a, o, 63)
    srd(a, 96, P_WS, ST_SIZE, ST_OFF)
    a("buffer_store_dword v254, v255, s[96:99], s91 offen")

LDS_BYTES = 163840
F_UP = 10368
XS = 32768
WB = 3 * XS
F_WS = 20736
S_WS = 16384
S_DUMMY = WB + 3 * S_WS
NONCE_LDS = 163832
CREG = 30720
S_TR = 122880
S_AGG = 159744
SFLAG_LDS = 160512
slot_of = lambda stage: (stage + 2) % 3

def kernel(o):
    a = Asm()
    a.raw(".p2align 8")
    a.raw(f".type {NAME}_kernel,@function")
    a.label(f"{NAME}_kernel")
    a("s_cmp_ge_u32 s2, 256")
    a("s_cbranch_scc1 L_end")
    a("s_load_dwordx16 s[4:19], s[0:1], 0")
    a("s_load_dwordx16 s[20:35], s[0:1], 64")
    a("s_load_dwordx2 s[36:37], s[0:1], 128")
    a("v_lshrrev_b32 v1, 6, v0")
    a("v_and_b32 v0, 63, v0")
    a("v_readfirstlane_b32 s38, v1")
    assert o.map1 == "2x4" and o.map2 == "4x2" and o.rot == 10 and o.rotm == 0 and not o.rot2
    a("s_bfe_u32 s44, s2, 0x20003")
    a("s_and_b32 s39, s2, 1")
    a("s_lshl2_add_u32 s39, s39, s44")
    a("s_lshr_b32 s49, s2, 5")
    a("s_and_b32 s48, s2, 6")
    a("s_lshl_b32 s48, s48, 2")
    a("s_bfe_u32 s44, s2, 0x10002")
    a("s_add_u32 s44, s44, s49")
    a("s_cmp_ge_u32 s44, 6")
    a("s_cselect_b32 s41, 1, 0")
    a("s_mov_b32 s45, 0x17120c06")
    a("s_cselect_b32 s45, 0x08050200, s45")
    rf = sum(((o.rotx * x) % 10) << (4 * x) for x in range(8)); rs = sum(((o.rotx * x + o.rotq) % 10) << (4 * x) for x in range(8))
    a(f"s_mov_b32 s3, {rf:#x}")
    a(f"s_cselect_b32 s3, {rs:#x}, s3")
    a("s_lshr_b32 s45, s45, s48")
    a("s_and_b32 s45, s45, 0xff")
    a("s_add_u32 s40, s45, s49")
    a("s_sub_u32 s40, s40, 6")
    a("s_lshl_b32 s44, s2, 2")
    a("s_lshr_b32 s3, s3, s44")
    a("s_and_b32 s3, s3, 15")
    a("s_and_b32 s90, s38, 3")
    stamp_setup(a, o)
    stamp(a, o, 0)
    def compute_part():
        p2_tile(a)
        a("s_waitcnt lgkmcnt(0)")
        a("s_cmp_eq_u32 s41, 1")
        a("s_cbranch_scc1 L_ssm")
        p1_ffn(a, o)
        a.seg("pc")
        a.label("L_p2c")
        p2(a, o, False)
        a.seg(None)
        a.label("L_ssm")
        p1_ssm(a, o)
        a.seg(None)
    def loader_part():
        a.label("L_loader")
        p1_loader(a, o)
        p2(a, o, True)
        a.seg(None)
    if o.lfirst:
        if o.eparam:
            a("s_cmp_ge_u32 s38, 4")
            a("s_cbranch_scc1 L_loader")
            a("s_cmp_eq_u32 s41, 0")
            a("s_cbranch_scc1 L_compute")
            a("s_waitcnt lgkmcnt(0)")
            ssm_params(a)
            a("s_branch L_ssm")
        else:
            a("s_cmp_lt_u32 s38, 4")
            a("s_cbranch_scc1 L_compute")
        loader_part()
        a.label("L_compute")
        compute_part()
    else:
        a("s_cmp_ge_u32 s38, 4")
        a("s_cbranch_scc1 L_loader")
        compute_part()
        loader_part()
    a.label("L_end")
    a("s_endpgm")
    a.label("L_codeend")
    return a

def warm_setup(a, o):
    if not o.warm:
        return
    a("s_cmp_ge_u32 s90, 2")
    a(f"s_cbranch_scc1 Lw_xb{a.uid()}")
    u = a._uid
    a("s_and_b32 s44, s2, 1")
    a("s_cmp_eq_u32 s44, 0")
    a(f"s_cselect_b32 s94, s{P_W1}, s{P_W3}")
    a(f"s_cselect_b32 s95, s{P_W1+1}, s{P_W3+1}")
    a("s_lshr_b32 s44, s2, 1")
    a("s_mul_i32 s44, s44, 1728")
    a(f"s_mul_i32 s45, s90, {13*64}")
    a("s_add_u32 s44, s44, s45")
    a(f"s_mov_b32 s88, {64*3456}")
    a(f"s_branch Lw_set{u}")
    a.label(f"Lw_xb{u}")
    a("s_cmp_lt_u32 s2, 128")
    a(f"s_cselect_b32 s94, s{P_BRE}, s{P_BIM}")
    a(f"s_cselect_b32 s95, s{P_BRE+1}, s{P_BIM+1}")
    a("s_and_b32 s44, s2, 127")
    a(f"s_mul_i32 s44, s44, {5*1280}")
    a(f"s_mul_i32 s45, s2, {8*1280}")
    a("s_cmp_eq_u32 s90, 2")
    a(f"s_cselect_b32 s94, s{P_X}, s94")
    a(f"s_cselect_b32 s95, s{P_X+1}, s95")
    a("s_cselect_b32 s44, s45, s44")
    a("s_movk_i32 s88, 128")
    a.label(f"Lw_set{u}")
    a("s_add_u32 s94, s94, s44")
    a("s_addc_u32 s95, s95, 0")

def warm_skip(a, o, n):
    if not o.warm:
        return
    a(f"s_mul_i32 s44, s88, {n}")
    a("s_add_u32 s94, s94, s44")
    a("s_addc_u32 s95, s95, 0")

def warm_ops(o, kind):
    if not o.warm:
        return []
    if kind == "w":
        offs = [i * 64 for i in range(14)]
    else:
        offs = [r * 1280 + h * 64 for r in range(8 if kind == "x" else 5) for h in range(2)]
    return [f"s_load_dword s89, s[94:95], {x}" for x in offs] + ["s_add_u32 s94, s94, s88", "s_addc_u32 s95, s95, 0"]

def warm_stage_any(a, o, nst):
    if not o.warm:
        return
    u = a.uid()
    a("s_cmp_ge_u32 s90, 2")
    a(f"s_cbranch_scc1 Lv_xb{u}")
    for _ in range(nst):
        for i in warm_ops(o, "w"): a(i)
    a(f"s_branch Lv_e{u}")
    a.label(f"Lv_xb{u}")
    warm_stage_xb(a, o, nst)
    a.label(f"Lv_e{u}")

def warm_stage_xb(a, o, nst):
    if not o.warm:
        return
    for _ in range(nst):
        u = a.uid()
        ops = warm_ops(o, "x")
        for i in ops[:10]: a(i)
        a("s_cmp_eq_u32 s90, 3")
        a(f"s_cbranch_scc1 Lv_b{u}")
        for i in ops[10:16]: a(i)
        a.label(f"Lv_b{u}")
        for i in ops[16:]: a(i)

def loop_stamp_flush(a, o):
    if o.stamps in (1, 2):
        a("s_add_u32 m0, s52, 8")
        a("v_writelane_b32 v254, s94, m0")
        a("s_add_u32 m0, s52, 20")
        a("v_writelane_b32 v254, s92, m0")

def p2_tile(a):
    a("s_and_b32 s42, s2, 6")
    a("s_bfe_u32 s43, s2, 0x30003")
    a("s_lshl2_add_u32 s42, s42, s43")
    a("s_and_b32 s43, s2, 1")
    a("s_lshr_b32 s101, s2, 6")
    a("s_lshl2_add_u32 s43, s43, s101")
    a("s_mov_b32 s101, 0")

def ring_advance(a, o, ws, xregs, wregs):
    a("s_add_u32 s52, s52, 1")
    a("s_add_u32 s53, s53, 1")
    a("s_cmp_eq_u32 s53, 3")
    a(f"s_cselect_b32 s54, {-2*XS & 0xffffffff:#x}, s55")
    a(f"s_cselect_b32 s56, {-2*ws & 0xffffffff:#x}, s57")
    a("s_cselect_b32 s53, 0, s53")
    for v in xregs:
        a(f"v_add_u32 v{v}, s54, v{v}")
    for v in wregs:
        a(f"v_add_u32 v{v}, s56, v{v}")
    if o.stamps:
        a("s_memrealtime s[94:95]")
    a("s_barrier")
    if o.stamps:
        a("s_memrealtime s[92:93]")

def fw_setup(a):
    srd(a, 60, P_WS, FW_SIZE, FW_OFF)
    a("s_mul_i32 s44, s43, 80")
    a("s_add_u32 s45, s44, 79")
    a("s_lshr_b32 s44, s44, 7")
    a("s_lshr_b32 s45, s45, 7")
    a("s_mul_i32 s44, s44, 47")
    a("s_mul_i32 s45, s45, 47")
    a("s_add_u32 s45, s45, 46")
    a("v_add_u32 v26, s44, v0")
    a("v_add_u32 v27, 64, v26")
    a("v_min_u32 v26, s45, v26")
    a("v_min_u32 v27, s45, v27")
    a("v_lshlrev_b32 v26, 7, v26")
    a("v_lshlrev_b32 v27, 7, v27")
def fw_load(a):
    a("buffer_load_dword v24, v26, s[60:63], 0 offen sc1")
    a("buffer_load_dword v25, v27, s[60:63], 0 offen sc1")
def fw_test(a):
    a("s_waitcnt vmcnt(0)")
    a("v_xor_b32 v24, s64, v24")
    a("v_xor_b32 v25, s64, v25")
    a("v_or_b32 v24, v24, v25")
    a("v_cmp_ne_u32 vcc, 0, v24")
    a("s_cmp_eq_u64 vcc, 0")
def fw_check(a):
    u = a.uid()
    a("s_mov_b32 s72, 0")
    a.label(f"Lfw_poll{u}")
    fw_load(a)
    fw_test(a)
    a(f"s_cbranch_scc1 Lfw_got{u}")
    a("s_sleep 12")
    a("s_add_u32 s72, s72, 1")
    a(f"s_cmp_lt_u32 s72, {SPIN_MAX:#x}")
    a(f"s_cbranch_scc1 Lfw_poll{u}")
    a.label(f"Lfw_got{u}")

C_WR = 16; C_ACC = 96; C_H = 176; C_WL = 224
C_RSTEPS = (0, 1, 8, 9)
def c_wsetup(a):
    srd(a, 52, P_WS, W2_SIZE, W2_OFF)
    a("s_mul_i32 s74, s90, 10")
    a("s_add_u32 s74, s74, 54")
    a(f"s_mul_i32 s76, s74, {WK}")
    a(f"s_mul_i32 s77, s43, {WT}")
    a("s_add_u32 s76, s76, s77")
    a(f"s_mul_i32 s77, s101, {5*WK}")
    a("s_add_u32 s76, s76, s77")
    a(f"s_mul_i32 s75, s101, {-10*WK}")
    a(f"s_add_u32 s75, s75, {7*WK}")
    a("s_add_u32 s77, s76, 4096")
    a("v_lshlrev_b32 v12, 4, v0")
def c_wload(a, k):
    for i in range(5):
        a(f"buffer_load_dwordx4 {vr(C_WR + k*20 + i*4, 4)}, v12, s[52:55], s{76 + (i >> 2)} offen offset:{(i & 3)*1024} sc1")
    if k < 3:
        d = (C_RSTEPS[k+1] - C_RSTEPS[k]) * WK if k != 1 else "s75"
        a(f"s_add_u32 s76, s76, {d}")
        a(f"s_add_u32 s77, s77, {d}")

class Lds:
    def __init__(self, a):
        self.a = a; self.q = []; self.done = 0
    def op(self, ins, tag):
        self.a(ins); self.q.append(tag)
    def pending(self):
        return len(self.q) - self.done
    def wait(self, *tags):
        last = max(i for i, t in enumerate(self.q) if t in tags)
        if last + 1 > self.done:
            n = len(self.q) - 1 - last
            assert n <= 15
            self.a(f"s_waitcnt lgkmcnt({n})")
            self.done = last + 1

def k_loop(a, o, label, reads, needs_of, mfma_of, nm, adv, nonce, cnt):
    a.label(label)
    lds = Lds(a)
    lds.q = [(0, t) for _, t in reads(0, 0)]
    for sub in range(4):
        buf = sub & 1
        nxt = list(reads(buf ^ 1, (sub + 1) & 3))
        if sub == 0 and (o.stamps in (1, 2)):
            a("s_waitcnt lgkmcnt(0)")
            loop_stamp_flush(a, o)
        extra = list(adv) if sub == 3 else []
        go = sub != 3
        for n in range(nm):
            if o.cwait:
                lds.wait(*[(sub, t) for t in needs_of(n)])
            elif n == 0:
                a("s_waitcnt lgkmcnt(0)"); lds.done = len(lds.q)
            a(mfma_of(buf, n))
            if sub == 3 and not go:
                k = -(-len(extra) // max(1, o.barpos + 1 - n))
                for _ in range(min(k, len(extra))):
                    a(extra.pop(0))
                if n == o.barpos:
                    if lds.pending():
                        a("s_waitcnt lgkmcnt(0)"); lds.done = len(lds.q)
                    if (o.stamps in (1, 2)):
                        a("s_memrealtime s[94:95]")
                    a("s_barrier")
                    if (o.stamps in (1, 2)):
                        a("s_memrealtime s[92:93]")
                    go = True
            if go:
                for _ in range(2):
                    if nxt and lds.pending() < 13:
                        ins, t = nxt.pop(0)
                        lds.op(ins, (sub + 1, t))
            if sub == 0 and n == nm - 1:
                lds.op(nonce, "n")
        assert not nxt, (label, sub, len(nxt))
    a(f"s_cmp_lt_u32 s52, {cnt}")
    a(f"s_cbranch_scc1 {label}")

def ring_ops(ws, xregs, wregs):
    return ["s_add_u32 s52, s52, 1", "s_add_u32 s53, s53, 1",
            f"s_cmp_eq_u32 s53, 3\n    s_cselect_b32 s54, {-2*XS & 0xffffffff:#x}, s55\n    s_cselect_b32 s56, {-2*ws & 0xffffffff:#x}, s57\n    s_cselect_b32 s53, 0, s53"] + \
           [f"v_add_u32 v{v}, s54, v{v}" for v in xregs] + [f"v_add_u32 v{v}, s56, v{v}" for v in wregs]

def ffn_peel(a, o, acc, fa, fb, VX, VW, VN):
    a.seg("fe")
    lds = Lds(a)
    reg = {}
    for mi in range(2):
        reg["x", 0, mi] = fb(0, mi); lds.q.append(("x", 0, mi))
    for j in range(5):
        reg["w", j, 0] = fa(0, j); lds.q += [("w", j, 0)] * 2
    if o.stamps:
        a("s_waitcnt lgkmcnt(0)")
        loop_stamp_flush(a, o)
    free = [fb(1, 0), fb(1, 1)] + [fa(1, j) for j in range(5)] + [232 + 4 * i for i in range(5)]
    mf = [(j, 0) for j in range(5)] + [(j, kk) for kk in (1, 2, 3) for j in (0, 1)]
    n1 = len(mf)
    mf += [(j, kk) for j in (0, 1) for kk in range(4, 8)] + [(j, kk) for j in (2, 3, 4) for kk in range(1, 8)]
    needs = []
    for j, kk in mf:
        for t in (("x", kk, 0), ("x", kk, 1), ("w", j, kk)):
            if t not in reg and t not in needs:
                needs.append(t)
    last_use = {}
    for n, (j, kk) in enumerate(mf):
        last_use["x", kk, 0] = last_use["x", kk, 1] = last_use["w", j, kk] = n
    passed9 = [False]
    def try_read():
        if not needs or not free or lds.pending() > 11:
            return False
        t = needs[0]
        kk = t[1] if t[0] == "x" else t[2]
        if kk >= 4 and not passed9[0]:
            return False
        needs.pop(0)
        r = reg[t] = free.pop(0)
        if t[0] == "x":
            lds.op(f"ds_read_b128 {vr(r, 4)}, v{VX + (kk & 3)} offset:{(kk >> 2)*XS + t[2]*4096}", t)
        else:
            for half in range(2):
                lds.op(f"ds_read_b64_tr_b16 {vr(r + 2*half, 2)}, v{VW} offset:{(kk >> 2)*F_WS + (kk & 3)*2560 + half*640 + t[1]*32}", t)
        return True
    pre = [f"v_readfirstlane_b32 s64, v{VN}", f"s_mov_b32 s56, {NLOG2E:#x}", f"s_mov_b32 s57, {NLOG2E:#x}", "s_mul_i32 s58, s40, 5",
           "s_lshl_b32 s59, s39, 2", "s_add_u32 s59, s59, s38", f"s_mul_i32 s59, s59, {HT}", f"s_add_u32 s59, s59, {40*HK}"]
    for j in range(5):
        pre += [f"s_add_u32 s60, s58, {j}", "s_lshr_b32 s61, s60, 1", "s_lshl_b32 s61, s61, 12", "s_and_b32 s60, s60, 1",
                "s_lshl_b32 s60, s60, 9", "s_add_u32 s61, s61, s60", f"s_add_u32 s{68+j}, s61, s59"]
    pre += ["s_cmp_eq_u32 s40, 21\n    s_cselect_b32 s71, 0x40000000, s71\n    s_cselect_b32 s72, 0x40000000, s72"]
    def epi(j, pk):
        r = []
        for mi in range(2):
            g = acc(j, mi); u = g + 8
            if pk:
                r += [f"v_pk_mul_f32 {vr(u+2*p, 2)}, {vr(g+2*p, 2)}, {vr(u+2*p, 2)}" for p in range(4)]
                r += [f"v_pk_mul_f32 {vr(g+2*p, 2)}, {vr(g+2*p, 2)}, s[56:57]" for p in range(4)]
            else:
                r += [f"v_mul_f32 v{u+p}, v{g+p}, v{u+p}" for p in range(8)]
                r += [f"v_mul_f32 v{g+p}, s56, v{g+p}" for p in range(8)]
            r += [f"v_exp_f32 v{g+p}, v{g+p}" for p in range(8)]
            if pk:
                r += ["s_nop 0"] + [f"v_pk_add_f32 {vr(g+2*p, 2)}, {vr(g+2*p, 2)}, 1.0 op_sel_hi:[1,0]" for p in range(4)]
            else:
                r += [f"v_add_f32 v{g+p}, 1.0, v{g+p}" for p in range(8)]
            r += [f"v_rcp_f32 v{g+p}, v{g+p}" for p in range(8)]
            if pk:
                r += ["s_nop 0"] + [f"v_pk_mul_f32 {vr(u+2*p, 2)}, {vr(u+2*p, 2)}, {vr(g+2*p, 2)}" for p in range(4)]
            else:
                r += [f"v_mul_f32 v{u+p}, v{u+p}, v{g+p}" for p in range(8)]
            r += [f"v_cvt_pk_bf16_f32 v{g+p}, v{u+2*p}, v{u+2*p+1}" for p in range(4)]
            r += [f"buffer_store_dwordx4 {vr(g, 4)}, v9, s[48:51], s{68+j} offen offset:{mi*2048} {o.hst}"]
        return r
    fill = list(pre)
    done_at = {j: max(n for n, (jj, kk) in enumerate(mf) if jj == j) for j in range(5)}
    pend = []
    barred10 = False
    for n, (j, kk) in enumerate(mf):
        for mi in range(2):
            while any(t not in reg for t in (("x", kk, mi), ("w", j, kk))):
                assert try_read(), (n, j, kk, free, needs[:3])
            lds.wait(("x", kk, mi), ("w", j, kk))
            a(f"v_mfma_f32_32x32x16_bf16 {vr(acc(j, mi), 16)}, {vr(reg['w', j, kk], 4)}, {vr(reg['x', kk, mi], 4)}, {vr(acc(j, mi), 16)}")
            if last_use["x", kk, mi] == n:
                free.append(reg["x", kk, mi])
            if mi == 1:
                free.append(reg["w", j, kk])
            if n == n1 - o.b9_back and mi == 0:
                lds.wait(*[("x", k2, m2) for k2 in range(4) for m2 in range(2)])
                a("s_barrier")
                passed9[0] = True
            try_read()
            if n < n1 + 4:
                try_read()
            if n == n1 + o.b9b and mi == 0:
                lds.wait(*[("x", k2, m2) for k2 in range(8) for m2 in range(2)])
                a("s_barrier")
            if not needs and not barred10 and lds.pending() == 0:
                a("s_barrier")
                barred10 = True
            while pend and len(a.l) >= pend[0][0] and not fill:
                fill = epi(pend.pop(0)[1], o.epi_pk)
            nxt = min(d for d in done_at.values() if d >= n)
            left = (nxt - n) * 2 + (1 - mi) + 1
            k = min(-(-len(fill) // left), o.fill_max)
            for _ in range(min(k, len(fill))):
                a(fill.pop(0))
        if done_at[j] == n:
            pend.append((len(a.l) + 14, j))
        if n == n1:
            a(f"s_setprio {o.cprio}")
    assert barred10 and passed9[0]
    stamp(a, o, 2); stamp_clk(a, o, 59)
    for x in fill:
        a(x)
    c_wsetup(a)
    a("s_nop 7")
    for _, j in pend:
        for x in epi(j, True):
            a(x)

def p1_ffn(a, o):
    ACC = 16; FA = 176; FB = 216; VX = 4; VW = 8; VN = 10
    acc = lambda j, mi: ACC + (j * 2 + mi) * 16
    fa = lambda b, j: FA + b * 20 + j * 4
    fb = lambda b, mi: FB + b * 8 + mi * 4
    s0 = WB + slot_of(0) * F_WS
    a.c("FFN compute wave: D[f][m] = W^T X^T")
    a("v_and_b32 v1, 31, v0")
    a("v_lshrrev_b32 v2, 5, v0")
    a("v_bfe_u32 v3, v0, 1, 3")
    a("v_xor_b32 v3, v3, v2")
    a("v_lshlrev_b32 v3, 4, v3")
    a("v_lshl_add_u32 v3, v1, 7, v3")
    a("s_lshl_b32 s44, s38, 13")
    a(f"s_add_u32 s44, s44, {slot_of(0) * XS}")
    a(f"v_add_u32 v{VX}, s44, v3")
    for sub in range(1, 4):
        a(f"v_xor_b32 v{VX+sub}, {sub*32}, v{VX}")
    a("v_bfe_u32 v1, v0, 4, 1")
    a(f"v_mul_u32_u24 v1, {F_UP}, v1")
    a("v_lshlrev_b32 v2, 3, v2")
    a("v_bfe_u32 v3, v0, 2, 2")
    a("v_add_u32 v2, v2, v3")
    a("v_mul_u32_u24 v2, 160, v2")
    a("v_add_u32 v1, v1, v2")
    a("v_and_b32 v2, 1, v0")
    a("v_lshlrev_b32 v2, 4, v2")
    a("v_add_u32 v1, v1, v2")
    a("v_bfe_u32 v2, v0, 1, 1")
    a("v_lshlrev_b32 v2, 3, v2")
    a("v_add_u32 v1, v1, v2")
    a(f"v_add_u32 v{VW}, {s0}, v1")
    a(f"v_mov_b32 v{VN+1}, {NONCE_LDS}")
    for r in range(ACC, ACC + 160):
        a(f"v_mov_b32 v{r}, 0")
    warm_stage_any(a, o, 1)
    srd(a, 48, P_WS, HP_SIZE, HP_OFF)
    a("v_bfe_u32 v1, v0, 4, 1")
    a("v_lshlrev_b32 v1, 10, v1")
    a("v_lshrrev_b32 v2, 5, v0")
    a("v_lshlrev_b32 v2, 8, v2")
    a("v_and_b32 v3, 15, v0")
    a("v_lshlrev_b32 v3, 4, v3")
    a("v_add3_u32 v9, v1, v2, v3")
    a("s_mov_b32 s52, 0")
    a(f"s_mov_b32 s53, {slot_of(0)}")
    a(f"s_mov_b32 s55, {XS}")
    a(f"s_mov_b32 s57, {F_WS}")

    def reads(buf, sub):
        r = []
        for mi in range(2):
            r.append(f"ds_read_b128 {vr(fb(buf, mi), 4)}, v{VX+sub} offset:{mi*4096}")
        for j in range(5):
            for half in range(2):
                r.append(f"ds_read_b64_tr_b16 {vr(fa(buf, j)+2*half, 2)}, v{VW} offset:{sub*2560 + half*640 + j*32}")
        return r
    stamp(a, o, 39)
    a("s_barrier")
    stamp_clk(a, o, 58); stamp(a, o, 1)
    if o.stamps:
        a("s_mov_b32 s94, s92")
    for r in reads(0, 0):
        a(r)
    tags = [("b", 0), ("b", 1)] + [("a", j) for j in range(5) for _ in range(2)]
    k_loop(a, o, "Lf_loop", lambda b, sb: list(zip(reads(b, sb), tags)), lambda n: [("a", n >> 1), ("b", n & 1)],
           lambda buf, n: f"v_mfma_f32_32x32x16_bf16 {vr(acc(n >> 1, n & 1), 16)}, {vr(fa(buf, n >> 1), 4)}, {vr(fb(buf, n & 1), 4)}, {vr(acc(n >> 1, n & 1), 16)}",
           10, ring_ops(F_WS, range(VX, VX + 4), [VW]), f"ds_read_b32 v{VN}, v{VN+1}", 8 if o.peel else 10)
    if o.peel:
        ffn_peel(a, o, acc, fa, fb, VX, VW, VN)
    else:
        a.seg("fe")
        a("s_waitcnt lgkmcnt(0)")
        loop_stamp_flush(a, o)
        stamp(a, o, 2); stamp_clk(a, o, 59)
        a(f"s_setprio {o.cprio}")
        a(f"v_readfirstlane_b32 s64, v{VN}")
        a(f"s_mov_b32 s56, {NLOG2E:#x}")
        a(f"s_mov_b32 s57, {NLOG2E:#x}")
        a("s_mul_i32 s58, s40, 5")
        a("s_lshl_b32 s59, s39, 2")
        a("s_add_u32 s59, s59, s38")
        a(f"s_mul_i32 s59, s59, {HT}")
        a(f"s_add_u32 s59, s59, {40*HK}")
        c_wsetup(a)
        T = FA
        for j in range(5):
            for k in {1: (0,), 2: (1, 2), 3: (3,)}.get(j, ()) if o.early_w else ():
                c_wload(a, k)
            if j == 3:
                a("s_cmp_eq_u32 s40, 21")
                a("s_cbranch_scc1 Lf_done")
            a(f"s_add_u32 s60, s58, {j}")
            a("s_lshr_b32 s61, s60, 1")
            a("s_lshl_b32 s61, s61, 12")
            a("s_and_b32 s60, s60, 1")
            a("s_lshl_b32 s60, s60, 9")
            a("s_add_u32 s61, s61, s60")
            a("s_add_u32 s62, s61, s59")
            for mi in range(2):
                g = acc(j, mi); u = g + 8
                t = T + ((j * 2 + mi) & 1) * 12
                for p in range(4):
                    a(f"v_pk_mul_f32 {vr(t+2*p, 2)}, {vr(g+2*p, 2)}, s[56:57]")
                for p in range(8):
                    a(f"v_exp_f32 v{t+p}, v{t+p}")
                for p in range(4):
                    a(f"v_pk_mul_f32 {vr(g+2*p, 2)}, {vr(g+2*p, 2)}, {vr(u+2*p, 2)}")
                for p in range(4):
                    a(f"v_pk_add_f32 {vr(t+2*p, 2)}, {vr(t+2*p, 2)}, 1.0 op_sel_hi:[1,0]")
                for p in range(8):
                    a(f"v_rcp_f32 v{t+p}, v{t+p}")
                a("s_nop 0")
                for p in range(4):
                    a(f"v_pk_mul_f32 {vr(g+2*p, 2)}, {vr(g+2*p, 2)}, {vr(t+2*p, 2)}")
                for p in range(4):
                    a(f"v_cvt_pk_bf16_f32 v{t+8+p}, v{g+2*p}, v{g+2*p+1}")
                a(f"buffer_store_dwordx4 {vr(t+8, 4)}, v9, s[48:51], s62 offen offset:{mi*2048} {o.hst}")
    a.label("Lf_done")
    stamp(a, o, 3)
    a("s_lshl_b32 s65, s39, 2")
    a("s_add_u32 s65, s65, s38")
    a("s_lshl_b32 s65, s65, 13")
    a("s_lshl_b32 s66, s40, 7")
    a("s_add_u32 s65, s65, s66")
    a("s_mov_b32 s66, -1" if o.fullflag else "s_mov_b32 s66, 1")
    a("s_mov_b32 s67, 0")
    a("v_lshlrev_b32 v2, 2, v0")

def cmul(a, dr, di, ar, ai, br, bi, t):
    a(f"v_mul_f32 v{t}, v{ar}, v{br}")
    a(f"v_mul_f32 v{t+1}, v{ar}, v{bi}")
    a(f"v_fma_f32 v{t}, -v{ai}, v{bi}, v{t}")
    a(f"v_fma_f32 v{di}, v{ai}, v{br}, v{t+1}")
    a(f"v_mov_b32 v{dr}, v{t}")

def cfma(a, dr, di, ar, ai, br, bi, cr, ci):
    a(f"v_fma_f32 v{dr}, v{ar}, v{br}, v{cr}")
    a(f"v_fma_f32 v{di}, v{ar}, v{bi}, v{ci}")
    a(f"v_fma_f32 v{dr}, -v{ai}, v{bi}, v{dr}")
    a(f"v_fma_f32 v{di}, v{ai}, v{br}, v{di}")

def ssm_params(a, TMP=152):
    a("s_and_b32 s45, s38, 1")
    srd(a, 48, P_LRE, 1280)
    srd(a, 52, P_LIM, 1280)
    srd(a, 56, P_LDT, 1280)
    a("s_lshl_b32 s46, s40, 6")
    a("s_lshl_b32 s47, s45, 5")
    a("s_add_u32 s46, s46, s47")
    a("v_and_b32 v1, 31, v0")
    a("v_add_u32 v2, s46, v1")
    a("v_lshlrev_b32 v2, 1, v2")
    a(f"buffer_load_ushort v{TMP}, v2, s[48:51], 0 offen")
    a(f"buffer_load_ushort v{TMP+1}, v2, s[52:55], 0 offen")
    a(f"buffer_load_ushort v{TMP+2}, v2, s[56:59], 0 offen")

def p1_ssm(a, o):
    ACC = 16; FA = 176; FB = 208; VX = 4; VB = 8
    LAM = 144; L32 = 146; L256 = 148; C2 = 150; TMP = 152; VN = 14
    PW = 224
    acc = lambda j, c: ACC + (j * 2 + c) * 16
    fa = lambda b, j: FA + b * 16 + j * 4
    fb = lambda b, c: FB + b * 8 + c * 4
    s0 = WB + slot_of(0) * S_WS
    a.c("SSM compute wave: D[t][p] = X B^T")
    a("s_lshr_b32 s44, s38, 1")
    a("s_and_b32 s45, s38, 1")
    if not o.eparam:
        ssm_params(a)
    a("v_and_b32 v1, 31, v0")
    a("v_bfe_u32 v2, v0, 2, 1")
    a("v_lshlrev_b32 v2, 6, v2")
    a("v_and_b32 v3, 1, v0")
    a("v_lshl_add_u32 v2, v3, 5, v2")
    a(f"v_bfe_u32 v{VX}, v0, 1, 1")
    a(f"v_add_u32 v2, v2, v{VX}")
    a(f"v_bfe_u32 v{VX}, v0, 3, 2")
    a(f"v_lshl_add_u32 v2, v{VX}, 1, v2")
    a(f"v_lshl_or_b32 v3, v3, 2, v{VX}")
    a(f"v_lshrrev_b32 v{VX}, 5, v0")
    a(f"v_xor_b32 v3, v3, v{VX}")
    a("v_lshlrev_b32 v3, 4, v3")
    a("v_lshl_add_u32 v3, v2, 7, v3")
    a("s_lshl_b32 s47, s44, 14")
    a(f"s_add_u32 s47, s47, {slot_of(0) * XS}")
    a(f"v_add_u32 v{VX}, s47, v3")
    for sub in range(1, 4):
        a(f"v_xor_b32 v{VX+sub}, {sub*32}, v{VX}")
    a("v_lshrrev_b32 v2, 5, v0")
    a("v_bfe_u32 v3, v0, 1, 3")
    a("v_xor_b32 v3, v3, v2")
    a("v_lshlrev_b32 v3, 4, v3")
    a("v_lshl_add_u32 v3, v1, 7, v3")
    a("s_lshl_b32 s47, s45, 12")
    a(f"s_add_u32 s47, s47, {s0}")
    a(f"v_add_u32 v{VB}, s47, v3")
    for sub in range(1, 4):
        a(f"v_xor_b32 v{VB+sub}, {sub*32}, v{VB}")
    a(f"v_mov_b32 v{VN+1}, {NONCE_LDS}")
    for r in range(ACC, ACC + 128):
        a(f"v_mov_b32 v{r}, 0")
    warm_stage_any(a, o, 1)
    a("s_waitcnt vmcnt(0)")
    t = TMP
    a(f"v_lshlrev_b32 v{t}, 16, v{t}")
    a(f"v_lshlrev_b32 v{t+1}, 16, v{t+1}")
    a(f"v_lshlrev_b32 v{t+2}, 16, v{t+2}")
    a(f"v_mul_f32 v{t+2}, {LOG2E:#x}, v{t+2}")
    a(f"v_exp_f32 v{t+2}, v{t+2}")
    a("s_nop 0")
    a(f"v_cvt_pk_bf16_f32 v{t+2}, v{t+2}, v{t+2}")
    a(f"v_lshlrev_b32 v{t+2}, 16, v{t+2}")
    a(f"v_mul_f32 v{t+3}, v{t+2}, v{t}")
    a(f"v_mul_f32 v{t+4}, v{t+2}, v{t+1}")
    a(f"v_mul_f32 v{t+3}, {LOG2E:#x}, v{t+3}")
    a(f"v_exp_f32 v{t+3}, v{t+3}")
    a(f"v_mul_f32 v{t+4}, 0.15915494, v{t+4}")
    a(f"v_rndne_f32 v{t+5}, v{t+4}")
    a(f"v_sub_f32 v{t+4}, v{t+4}, v{t+5}")
    a(f"v_cos_f32 v{t+5}, v{t+4}")
    a(f"v_sin_f32 v{t+6}, v{t+4}")
    a("s_nop 0")
    a(f"v_mul_f32 v{LAM}, v{t+3}, v{t+5}")
    a(f"v_mul_f32 v{LAM+1}, v{t+3}, v{t+6}")
    a(f"v_mul_f32 v{t+3}, v{t}, v{t}")
    a(f"v_fma_f32 v{t+3}, v{t+1}, v{t+1}, v{t+3}")
    a(f"v_rcp_f32 v{t+3}, v{t+3}")
    a(f"v_add_f32 v{t+4}, -1.0, v{LAM}")
    a(f"v_mul_f32 v{t+5}, v{t+4}, v{t}")
    a(f"v_fma_f32 v{t+5}, v{LAM+1}, v{t+1}, v{t+5}")
    a(f"v_mul_f32 v{t+6}, v{LAM+1}, v{t}")
    a(f"v_fma_f32 v{t+6}, -v{t+4}, v{t+1}, v{t+6}")
    a(f"v_add_f32 v{t+3}, v{t+3}, v{t+3}")
    a(f"v_mul_f32 v{C2}, v{t+5}, v{t+3}")
    a(f"v_mul_f32 v{C2+1}, v{t+6}, v{t+3}")
    cmul(a, L32, L32 + 1, LAM, LAM + 1, LAM, LAM + 1, t)
    for _ in range(4):
        cmul(a, L32, L32 + 1, L32, L32 + 1, L32, L32 + 1, t)
    L64 = TMP + 20; L128 = TMP + 22
    cmul(a, L64, L64 + 1, L32, L32 + 1, L32, L32 + 1, t)
    cmul(a, L128, L128 + 1, L64, L64 + 1, L64, L64 + 1, t)
    cmul(a, L256, L256 + 1, L128, L128 + 1, L128, L128 + 1, t)
    SEL = TMP + 8
    a("s_mov_b32 s70, 0")
    a("s_mov_b32 s71, -1")
    cmul(a, PW, PW + 1, C2, C2 + 1, L64, L64 + 1, t)
    a(f"v_cndmask_b32 v{SEL+4}, v{C2}, v{PW}, s[70:71]")
    a(f"v_cndmask_b32 v{SEL+6}, v{C2+1}, v{PW+1}, s[70:71]")
    cmul(a, SEL + 5, SEL + 7, SEL + 4, SEL + 6, L32, L32 + 1, t)
    AD = 224; EX = 232
    a("s_lshl_b32 s47, s39, 1")
    a("s_add_u32 s47, s47, s44")
    a("s_lshl_b32 s47, s47, 9")
    a("s_sub_u32 s47, s47, 8192")
    a("v_lshlrev_b32 v3, 4, v0")
    for k in range(8):
        a(f"v_add_u32 v{AD+k}, s47, v3")
        a("s_add_u32 s47, s47, 1024")
        a(f"v_ashrrev_i32 v{EX+k}, 31, v{AD+k}")
        a(f"v_not_b32 v{EX+k}, v{EX+k}")
    a("s_mov_b32 s52, 0")
    a(f"s_mov_b32 s53, {slot_of(0)}")
    a(f"s_mov_b32 s55, {XS}")
    a(f"s_mov_b32 s57, {S_WS}")

    def reads(buf, sub):
        r = []
        r.append(f"ds_read_b128 {vr(fb(buf, 0), 4)}, v{VB+sub}")
        r.append(f"ds_read_b128 {vr(fa(buf, 0), 4)}, v{VX+sub}")
        r.append(f"ds_read_b128 {vr(fb(buf, 1), 4)}, v{VB+sub} offset:8192")
        for j in range(1, 4):
            r.append(f"ds_read_b128 {vr(fa(buf, j), 4)}, v{VX+(sub ^ ((j & 1) << 1))} offset:{j*1024}")
        return r
    stamp(a, o, 39)
    a("s_barrier")
    stamp_clk(a, o, 58); stamp(a, o, 1)
    if o.stamps:
        a("s_mov_b32 s94, s92")
    for r in reads(0, 0):
        a(r)
    tags = [("b", 0), ("a", 0), ("b", 1), ("a", 1), ("a", 2), ("a", 3)]
    k_loop(a, o, "Ls_loop", lambda b, sb: list(zip(reads(b, sb), tags)), lambda n: [("a", n >> 1), ("b", n & 1)],
           lambda buf, n: f"v_mfma_f32_32x32x16_bf16 {vr(acc(n >> 1, n & 1), 16)}, {vr(fa(buf, n >> 1), 4)}, {vr(fb(buf, n & 1), 4)}, {vr(acc(n >> 1, n & 1), 16)}",
           8, ring_ops(S_WS, range(VX, VX + 4), range(VB, VB + 4)), f"ds_read_b32 v{VN}, v{VN+1}", 9 if o.speel else 10)
    a.seg("s1")
    LR = vr(LAM, 2)
    def pk_lr(d, x, y):
        a(f"v_pk_fma_f32 {vr(d, 2)}, {LR}, {vr(x, 2)}, {vr(y, 2)} op_sel_hi:[0,1,1]")
    def pk_li(d, x, y, neg):
        n = " neg_lo:[1,0,0] neg_hi:[1,0,0]" if neg else ""
        a(f"v_pk_fma_f32 {vr(d, 2)}, {LR}, {vr(x, 2)}, {vr(y, 2)} op_sel:[1,0,0] op_sel_hi:[1,1,1]{n}")
    ure = lambda n: acc(n >> 3, 0) + 2 * (n & 7)
    uim = lambda n: acc(n >> 3, 1) + 2 * (n & 7)
    S = [TMP, TMP + 4]
    def capture(fn):
        k = len(a.l); fn(); r = [x.strip() for x in a.l[k:]]; del a.l[k:]; return r
    def setup():
        a(f"s_setprio {o.cprio}")
        a(f"v_readfirstlane_b32 s64, v{VN}")
        a("s_lshl_b32 s46, s40, 1")
        a("s_add_u32 s46, s46, s45")
        a("s_lshl_b32 s46, s46, 13")
        a(f"s_add_u32 s46, s46, {AGG_OFF:#x}")
        a(f"s_add_u32 s48, s{P_WS}, s46")
        a(f"s_addc_u32 s49, s{P_WS+1}, 0")
        a("s_movk_i32 s50, 8192")
        a("s_mov_b32 s51, 0x20000")
        a("s_lshl_b32 s46, s39, 1")
        a("s_add_u32 s46, s46, s44")
        a("s_lshl_b32 s47, s46, 9")
        a("v_lshlrev_b32 v3, 4, v0")
        a("s_nop 3")
    def pass1(j):
        for n in range(max(1, 8 * j), 8 * j + 8):
            pr, pi = (ure(0), uim(0)) if n == 1 else (S[(n - 1) & 1], S[(n - 1) & 1] + 2)
            d = S[n & 1]
            pk_lr(d, pr, ure(n)); pk_lr(d + 2, pi, uim(n))
            pk_li(d, pi, d, True); pk_li(d + 2, pr, d + 2, False)
    if not o.speel:
        a("s_waitcnt lgkmcnt(0)")
        loop_stamp_flush(a, o)
        stamp(a, o, 2); stamp_clk(a, o, 59)
        setup()
        for j in range(4):
            pass1(j)
    else:
        lds = Lds(a); reg = {}
        for t, r in ((("b", 0, 0), fb(0, 0)), (("a", 0, 0), fa(0, 0)), (("b", 1, 0), fb(0, 1)), (("a", 1, 0), fa(0, 1)), (("a", 2, 0), fa(0, 2)), (("a", 3, 0), fa(0, 3))):
            reg[t] = r; lds.q.append(t)
        if o.stamps in (1, 2):
            a("s_waitcnt lgkmcnt(0)")
            loop_stamp_flush(a, o)
        free = [fb(1, 0), fb(1, 1)] + [fa(1, j) for j in range(4)] + [224 + 4 * i for i in range(7)]
        mf = [(j, 0) for j in range(4)] + [(j, kk) for j in range(4) for kk in (1, 2, 3)]
        needs = []
        for j, kk in mf:
            for t in (("b", 0, kk), ("a", j, kk), ("b", 1, kk)):
                if t not in reg and t not in needs:
                    needs.append(t)
        def try_read():
            if not needs or not free or lds.pending() > 12:
                return False
            t = needs.pop(0); r = reg[t] = free.pop(0)
            if t[0] == "b":
                lds.op(f"ds_read_b128 {vr(r, 4)}, v{VB + t[2]} offset:{t[1]*8192}", t)
            else:
                lds.op(f"ds_read_b128 {vr(r, 4)}, v{VX + (t[2] ^ ((t[1] & 1) << 1))} offset:{t[1]*1024}", t)
            return True
        def states(k):
            return sum(int(x.split()[1]) + 1 if x.strip().startswith("s_nop") else 1 for x in a.l[k:])
        fill = capture(setup); pend = []; barred = False
        for n, (j, kk) in enumerate(mf):
            for c in range(2):
                while any(t not in reg for t in (("a", j, kk), ("b", c, kk))):
                    assert try_read()
                lds.wait(("a", j, kk), ("b", c, kk))
                a(f"v_mfma_f32_32x32x16_bf16 {vr(acc(j, c), 16)}, {vr(reg['a', j, kk], 4)}, {vr(reg['b', c, kk], 4)}, {vr(acc(j, c), 16)}")
                mark = len(a.l)
                if c == 1:
                    free.append(reg["a", j, kk])
                try_read(); try_read()
                if not needs and not barred and n >= o.sb10:
                    if lds.pending():
                        a("s_waitcnt lgkmcnt(0)"); lds.done = len(lds.q)
                    a("s_barrier")
                    barred = True
                if pend and not fill:
                    miss = 13 - states(pend[0][0])
                    if miss > 0:
                        a(f"s_nop {min(miss, 6) - 1}")
                    if states(pend[0][0]) >= 13:
                        fill = capture(lambda: pass1(pend.pop(0)[1]))
                k = o.sfill
                while fill and (k > 0 or fill[0].startswith("s_addc")):
                    a(fill.pop(0)); k -= 1
                if kk == 3 and c == 1:
                    pend.append((mark, j))
        assert barred
        stamp(a, o, 2); stamp_clk(a, o, 59)
        for x in fill:
            a(x)
        for mk, j in pend:
            while states(mk) < 13:
                a(f"s_nop {min(13 - states(mk), 8) - 1}")
            pass1(j)
    Sf = S[31 & 1]
    PF = FA
    cfma(a, PF, PF + 1, L32, L32 + 1, Sf, Sf + 2, Sf + 1, Sf + 3)
    a(f"v_mov_b32 v{PF+2}, v{PF}"); a(f"v_mov_b32 v{PF+3}, v{PF+1}")
    a(f"v_mov_b32 v{TMP+1}, s64"); a(f"v_mov_b32 v{TMP+3}, s64")
    a(f"v_permlane32_swap_b32 v{PF}, v{PF+2}")
    a(f"v_permlane32_swap_b32 v{PF+1}, v{PF+3}")
    a("s_nop 1")
    cfma(a, TMP, TMP + 2, L64, L64 + 1, PF, PF + 1, PF + 2, PF + 3)
    a("s_mov_b32 exec_hi, 0")
    a(f"buffer_store_dwordx4 {vr(TMP, 4)}, v3, s[48:51], s47 offen sc1")
    a("s_mov_b64 exec, -1")
    stamp(a, o, 3)
    a(f"v_cndmask_b32 v{SEL}, 0, v{PF}, s[70:71]")
    a(f"v_cndmask_b32 v{SEL+2}, 0, v{PF+1}, s[70:71]")
    cfma(a, SEL + 1, SEL + 3, L32, L32 + 1, SEL, SEL + 2, Sf, Sf + 2)
    for k in range(8):
        a(f"v_and_b32 v{EX+k}, s64, v{EX+k}")
    GL = FA + 4
    def agg_loads():
        for k in range(8):
            a(f"buffer_load_dwordx4 {vr(GL+4*k, 4)}, v{AD+k}, s[48:51], 0 offen sc1")
    CC = vr(C2, 2)
    def scale(re, im):
        a(f"v_pk_mul_f32 {vr(TMP+4, 2)}, {CC}, {vr(re, 2)} op_sel:[1,0] op_sel_hi:[1,1]")
        a(f"v_pk_mul_f32 {vr(re, 2)}, {CC}, {vr(re, 2)} op_sel_hi:[0,1]")
        a(f"v_pk_fma_f32 {vr(re, 2)}, {CC}, {vr(im, 2)}, {vr(re, 2)} op_sel:[1,0,0] op_sel_hi:[1,1,1] neg_lo:[1,0,0] neg_hi:[1,0,0]")
        a(f"v_pk_fma_f32 {vr(im, 2)}, {CC}, {vr(im, 2)}, {vr(TMP+4, 2)} op_sel_hi:[0,1,1]")
    scale(SEL, SEL + 2)
    for n in range(32):
        if n == o.apos:
            agg_loads()
        scale(ure(n), uim(n))
    stamp(a, o, 4)
    CR = TMP + 16
    a("s_mov_b32 s72, 0")
    if o.apos < 32:
        a("s_branch Ls_chk")
    a.label("Ls_poll")
    agg_loads()
    a.label("Ls_chk")
    a("s_waitcnt vmcnt(0)")
    for k in range(8):
        a(f"v_xor_b32 v{GL+4*k+1}, v{GL+4*k+1}, v{EX+k}")
        a(f"v_xor_b32 v{GL+4*k+3}, v{GL+4*k+3}, v{EX+k}")
        a(f"v_or3_b32 v{GL+1}, v{GL+1}, v{GL+4*k+1}, v{GL+4*k+3}")
    a(f"v_cmp_ne_u32 vcc, 0, v{GL+1}")
    a("s_cmp_eq_u64 vcc, 0")
    a("s_cbranch_scc1 Ls_gotcarry")
    a(f"s_sleep {o.agg_sleep}")
    a("s_add_u32 s72, s72, 1")
    a(f"s_cmp_lt_u32 s72, {SPIN_MAX:#x}")
    a("s_cbranch_scc1 Ls_poll")
    a.label("Ls_gotcarry")
    er, ei = GL, GL + 2
    for k in range(1, 8):
        d = CR + 2 * (k & 1)
        cfma(a, d, d + 1, L256, L256 + 1, er, ei, GL + 4 * k, GL + 4 * k + 2)
        er, ei = d, d + 1
    a(f"v_mov_b32 v{CR}, v{CR+2}"); a(f"v_mov_b32 v{CR+1}, v{CR+3}")
    a("s_nop 1")
    a(f"v_permlane32_swap_b32 v{CR}, v{CR+2}")
    a(f"v_permlane32_swap_b32 v{CR+1}, v{CR+3}")
    a("s_nop 1")
    cfma(a, CR + 2, CR + 3, L128, L128 + 1, CR, CR + 1, CR + 2, CR + 3)
    CY = vr(CR + 2, 2)
    a(f"v_pk_fma_f32 {vr(SEL, 2)}, {CY}, {vr(SEL+4, 2)}, {vr(SEL, 2)} op_sel_hi:[0,1,1]")
    a(f"v_pk_fma_f32 {vr(SEL+2, 2)}, {CY}, {vr(SEL+6, 2)}, {vr(SEL+2, 2)} op_sel_hi:[0,1,1]")
    a(f"v_pk_fma_f32 {vr(SEL, 2)}, {CY}, {vr(SEL+6, 2)}, {vr(SEL, 2)} op_sel:[1,0,0] op_sel_hi:[1,1,1] neg_lo:[1,0,0] neg_hi:[1,0,0]")
    a(f"v_pk_fma_f32 {vr(SEL+2, 2)}, {CY}, {vr(SEL+4, 2)}, {vr(SEL+2, 2)} op_sel:[1,0,0] op_sel_hi:[1,1,1]")
    a.seg("s2")
    a.label("Ls_nocarry")
    stamp(a, o, 5)
    TS = 144
    a(f"s_mul_i32 s47, s38, {64*TS}")
    a(f"s_add_u32 s47, s47, {S_TR}")
    a("v_and_b32 v1, 31, v0")
    a(f"v_mul_u32_u24 v1, {TS}, v1")
    a("v_lshrrev_b32 v2, 5, v0")
    a("v_lshl_add_u32 v1, v2, 6, v1")
    a("v_add_u32 v1, s47, v1")
    a("v_lshrrev_b32 v2, 4, v0")
    a("v_lshlrev_b32 v2, 3, v2")
    a("v_bfe_u32 v3, v0, 2, 2")
    a("v_add_u32 v2, v2, v3")
    a(f"v_mul_u32_u24 v2, {TS}, v2")
    a("v_and_b32 v3, 3, v0")
    a("v_lshl_add_u32 v2, v3, 3, v2")
    a("v_add_u32 v2, s47, v2")
    a("v_lshlrev_b32 v3, 4, v0")
    srd(a, 48, P_WS, HP_SIZE, HP_OFF)
    a("s_lshl_b32 s46, s40, 1")
    a("s_add_u32 s73, s46, s45")
    a("s_lshl_b32 s46, s73, 13")
    a("s_lshl_b32 s47, s39, 2")
    a("s_lshl_b32 s56, s44, 1")
    a("s_add_u32 s47, s47, s56")
    a(f"s_mul_i32 s47, s47, {HT}")
    a("s_add_u32 s46, s46, s47")
    a(f"s_add_u32 s47, s46, {HT}")
    a(f"s_add_u32 s56, s46, {HK}")
    a(f"s_add_u32 s57, s47, {HK}")
    c_wsetup(a)
    pr, pi = SEL, SEL + 2
    PKD = FA; OUT = FA + 32
    def flush_round(rd):
        a("s_waitcnt lgkmcnt(0)")
        for c in range(2):
            for sg in range(4):
                d = OUT + (c * 4 + sg) * 4
                a(f"ds_read_b64_tr_b16 {vr(d, 2)}, v2 offset:{c*32*TS + sg*32}")
                a(f"ds_read_b64_tr_b16 {vr(d+2, 2)}, v2 offset:{c*32*TS + 4*TS + sg*32}")
    def store_round(rd):
        a("s_waitcnt lgkmcnt(0)")
        for c in range(2):
            for sg in range(4):
                d = OUT + (c * 4 + sg) * 4
                mi = 2 * sg + rd
                so = (46, 47, 56, 57)[c * 2 + (mi >> 2)]
                a(f"buffer_store_dwordx4 {vr(d, 4)}, v3, s[48:51], s{so} offen offset:{(mi & 3)*1024} {o.hst}")
    for n in range(32):
        r, i = ure(n), uim(n)
        pk_lr(r, pr, r); pk_lr(i, pi, i)
        pk_li(r, pi, r, True); pk_li(i, pr, i, False)
        pr, pi = r, i
        if n == 17:
            flush_round(0)
        if n == 21:
            store_round(0)
        if n in (10, 25, 28) and o.early_w:
            c_wload(a, (10, 25, 28).index(n))
        if (n & 7) == 7:
            j = n >> 3
            st = PKD + (j & 1) * 16
            for c in range(2):
                sg = "-" if c else ""
                for par in range(2):
                    for e in range(4):
                        b = acc(j, c) + par
                        a(f"v_cvt_pk_bf16_f32 v{st+c*8+par*4+e}, {sg}v{b+4*e}, {sg}v{b+4*e+2}")
                    a(f"ds_write_b128 v1, {vr(st+c*8+par*4, 4)} offset:{c*32*TS + par*32 + (j & 1)*16}")
    flush_round(1)
    if o.early_w:
        c_wload(a, 3)
    store_round(1)
    stamp(a, o, 6)
    a("s_lshl_b32 s65, s39, 2")
    a("s_lshl_b32 s66, s44, 1")
    a("s_add_u32 s65, s65, s66")
    a("s_lshl_b32 s65, s65, 13")
    a("s_lshl_b32 s66, s73, 7")
    a("s_add_u32 s65, s65, s66")
    a(f"s_add_u32 s65, s65, {22*128}")
    a("s_mov_b32 s66, -1" if o.fullflag else "s_mov_b32 s66, 1")
    a("s_mov_b32 s67, s66")
    a("v_lshrrev_b32 v2, 5, v0")
    a("v_lshlrev_b32 v2, 13, v2")
    a("v_and_b32 v1, 31, v0")
    a("v_lshl_add_u32 v2, v1, 2, v2")
    a("s_branch L_p2c")

L_ACC = 6; L_H = 86; L_W = 134
def p2_prefetch(a, o, vm, cuts, wait9, hook=None):
    if wait9:
        a(f"v_mov_b32 v2, {NONCE_LDS}")
        a("ds_read_b32 v2, v2")
    srd(a, 48, P_WS, HP_SIZE, HP_OFF)
    srd(a, 52, P_WS, W2_SIZE, W2_OFF)
    a("s_mul_i32 s74, s90, 14")
    a("s_min_u32 s74, s74, 40")
    a(f"s_mul_i32 s66, s42, {HT}")
    a(f"s_add_u32 s66, s66, {40*HK}")
    a(f"s_mul_i32 s67, s43, {WT}")
    a(f"s_add_u32 s67, s67, {40*WK}")
    a("s_cmp_lt_u32 s90, 3")
    a("s_cselect_b32 s50, s66, s50")
    a("s_cselect_b32 s54, s67, s54")
    srd(a, 56, P_WS, W2_SIZE, W2_OFF)
    if wait9:
        a("s_waitcnt lgkmcnt(0)")
        a("v_readfirstlane_b32 s64, v2")
    a("v_lshlrev_b32 v1, 4, v0")
    a(f"s_mul_i32 s76, s74, {WK}")
    a(f"s_mul_i32 s66, s43, {WT}")
    a("s_add_u32 s76, s76, s66")
    a(f"s_mul_i32 s77, s101, {7*WK}")
    a("s_add_u32 s76, s76, s77")
    a("s_add_u32 s77, s76, 4096")
    a("s_mul_i32 s75, s101, 5")
    ops = []
    for n in range(6):
        for i in range(5):
            post = [f"s_add_u32 s76, s76, {WK}", f"s_add_u32 s77, s77, {WK}"] if i == 4 else []
            ops.append(([], f"buffer_load_dwordx4 {vr(L_W + n*20 + i*4, 4)}, v1, s[52:55], s{76 + (i >> 2)} offen offset:{(i & 3)*1024} sc1", post, 0))
    for n in range(6):
        for i in range(5):
            pre = []
            if i == 0:
                pre = [f"s_add_u32 s69, s90, {4*n}", "s_mul_i32 s68, s69, 43", "s_lshr_b32 s68, s68, 8", "s_mul_i32 s70, s68, 6",
                       "s_sub_u32 s70, s69, s70", "s_add_u32 s70, s70, s75", "s_cmp_ge_u32 s70, 8", "s_cselect_b32 s71, 46, 56",
                       "s_add_u32 s70, s70, s71", "s_mul_i32 s68, s68, 10", "s_add_u32 s68, s68, s70", f"s_mul_i32 s68, s68, {WK}",
                       "s_add_u32 s68, s68, s66", "s_mul_i32 m0, s69, 5120", "s_add_u32 s70, s68, 4096"]
            if i == 4:
                pre = ["s_add_u32 m0, m0, 4096", "s_nop 0"]
            ops.append((pre, f"buffer_load_dwordx4 v1, s[56:59], s{68 + 2*(i >> 2)} offen offset:{(i & 3)*1024} sc1 lds", [], 8 if n < 1 else 9 if n < 3 else 9.5 if n < 5 else 10))
    tag = int(wait9)
    def run(lo, hi, passed, thr=0):
        for pre, ins, post, need in ops[lo:hi]:
            assert need <= passed
            for p in pre: a(p)
            if thr:
                a(f"s_waitcnt vmcnt({thr - 1})")
            vm.op(ins, "pf")
            for p in post: a(p)
    def bar(s):
        stamp(a, o, 8 + s)
        a("s_barrier")
        stamp(a, o, 20 + s)
        if hook and s < 10: hook(s)
    def fwok():
        a("s_setprio 0")
        a("s_lshl_b32 s67, s90, 2")
        a(f"s_add_u32 s67, s67, {SFLAG_LDS}")
        a("v_mov_b32 v2, s67")
        a("v_mov_b32 v3, s64")
        a("ds_write_b32 v2, v3 offset:144")
    def xbar(name):
        pass
    def look(name):
        a("s_cmp_lg_u32 s90, 2")
        a(f"s_cbranch_scc1 {name}")
        fw_load(a)
        fw_test(a)
        a("s_cselect_b32 s44, s64, 0")
        a("v_mov_b32 v29, s44")
        a("ds_write_b32 v28, v29")
        a("s_waitcnt lgkmcnt(0)")
        a.label(name)
    def verdict(extra=""):
        a("ds_read_b32 v29, v28")
        a(f"s_waitcnt {extra}lgkmcnt(0)")
        a("v_cmp_ne_u32 vcc, s64, v29")
        a("s_cmp_eq_u64 vcc, 0")
    fw_setup(a)
    a(f"v_mov_b32 v28, {NONCE_LDS - 8}")
    if not wait9:
        if o.vlook < 8:
            look("Lp_nolookv")
            bar(o.vlook)
            verdict()
            a("s_cbranch_scc0 Lp_notv")
            a("s_setprio 0")
            stamp(a, o, 3)
            lo = 0
            for k, b in enumerate(range(o.vlook + 1, 11)):
                run(lo, o.cuts_v[k], b - 1, o.thr_v if b <= 8 else 0); lo = o.cuts_v[k]
                a(f"s_setprio {o.hprio}")
                bar(b)
                a("s_setprio 0")
            xbar("Ll_noxv")
            fwok()
            run(lo, 60, 10, o.thr_e)
            a(f"s_branch Lp_done{tag}")
            a.label("Lp_notv")
            for b in range(o.vlook + 1, 8):
                bar(b)
        look("Lp_nolook")
    bar(8)
    verdict("vmcnt(0) ")
    a(f"s_cbranch_scc0 Lp_late{tag}")
    stamp(a, o, 5)
    vm.q = []
    if o.peel:
        assert o.vlook == 8
        a("s_cmp_eq_u32 s41, 1")
        a(f"s_cbranch_scc1 Lp_essm{tag}")
        c = o.cuts_f
        run(0, c[0], 8)
        bar(9)
        run(c[0], c[1], 9)
        a("s_barrier")
        a("s_setprio 0")
        run(c[1], c[2], 9.5, o.thr_f)
        bar(10)
        fwok()
        run(c[2], 60, 10, o.thr_e)
        a(f"s_branch Lp_done{tag}")
        a.label(f"Lp_essm{tag}")
        vm.q = []
    run(0, cuts[0], 8)
    bar(9)
    run(cuts[0], cuts[1], 9)
    bar(10)
    xbar("Ll_noxe")
    fwok()
    run(cuts[1], 60, 10, o.thr_e)
    a(f"s_branch Lp_done{tag}")
    a.label(f"Lp_late{tag}")
    bar(9)
    if o.peel:
        a("s_cmp_eq_u32 s41, 1")
        a(f"s_cbranch_scc1 Lp_no9b{tag}")
        a("s_barrier")
        a.label(f"Lp_no9b{tag}")
    bar(10)
    xbar("Ll_nox")
    fw_check(a)
    fwok()
    stamp(a, o, 4)
    vm.q = []
    run(0, 60, 10, o.thr_t)
    a.label(f"Lp_done{tag}")
    if hook: hook(10)
    vm.drain()
    a("s_lshl_b32 s66, s90, 2")
    a(f"s_add_u32 s66, s66, {SFLAG_LDS}")
    a("v_mov_b32 v2, s66")
    a("v_mov_b32 v3, s64")
    a("ds_write_b32 v2, v3")
    stamp(a, o, 6)

def p1_loader(a, o):
    a("s_cmp_ge_u32 s90, 2")
    a("s_cbranch_scc1 L_helper")
    VXO = 4; VWO = 12; VE = 18
    vm = VM(a)
    a("v_lshrrev_b32 v1, 3, v0")
    a("v_and_b32 v2, 7, v0")
    a("v_mul_u32_u24 v3, 1280, v1")
    a(f"v_lshrrev_b32 v{VE}, 1, v1")
    a(f"v_xor_b32 v{VE}, v{VE}, v2")
    a(f"v_lshlrev_b32 v{VE}, 4, v{VE}")
    a(f"v_add_u32 v{VXO}, v{VE}, v3")
    a(f"v_xor_b32 v{VE+1}, 64, v{VXO}")
    if o.xq:
        a("s_bfe_u32 s46, s40, 0x10001")
        a("s_and_b32 s47, s46, s41")
        a("s_lshl_b32 s47, s47, 6")
        a("s_mul_i32 s88, s46, 40960")
        a(f"v_mov_b32 v{VE}, v{VXO}")
        a(f"v_xor_b32 v{VXO}, s47, v{VE}")
        a(f"v_add_u32 v{VXO}, s88, v{VXO}")
        a(f"v_xor_b32 v1, 64, v{VXO}")
        a("s_andn2_b32 s47, s41, s46")
        a("s_lshl_b32 s47, s47, 6")
        a("s_sub_u32 s88, 40960, s88")
        a(f"v_xor_b32 v{VXO+4}, s47, v{VE}")
        a(f"v_add_u32 v{VXO+4}, s88, v{VXO+4}")
        a(f"v_xor_b32 v3, 64, v{VXO+4}")
        a("s_lshl_b32 s88, s46, 12")
        for i in (1, 2, 3, 5, 6, 7):
            src = ((VXO, 1), (VXO + 4, 3))[i >> 2][i & 1]
            a(f"v_add_u32 v{VXO+i}, {(i & 3)*(8*1280 - 1024)}, v{src}")
    else:
        a("s_lshl_b32 s47, s41, 6")
        a(f"v_xor_b32 v2, s47, v{VXO}")
        a(f"v_xor_b32 v3, s47, v{VE+1}")
        for i in range(1, 8):
            src = ((VXO, VE + 1), (2, 3))[i >> 2][i & 1]
            a(f"v_add_u32 v{VXO+i}, {i*8*1280 - (i & 3)*1024}, v{src}")
    a(f"s_and_b32 s44, s40, {o.ab}")
    a("s_lshl1_add_u32 s46, s90, s44")
    a("s_lshl_b32 s75, s46, 13")
    if o.xq:
        a("s_add_u32 s75, s75, s88")
    a("s_lshl2_add_u32 s46, s39, s46")
    a(f"s_mul_i32 s85, s46, {64*1280}")
    a("s_lshl_b32 s47, s3, 7")
    a("s_add_u32 s85, s85, s47")
    a(f"s_add_u32 m0, s75, {slot_of(0)*XS}")
    a("s_waitcnt lgkmcnt(0)")
    srd(a, 48, P_X, 2048 * 1280)
    stamp(a, o, 38)
    for i in range(8):
        if i == 4:
            a("s_xor_b32 m0, m0, 4096"); a("s_nop 0")
        vm.op(f"buffer_load_dwordx4 v{VXO+i}, s[48:51], s85 offen offset:{(i & 3)*1024} lds", ("st", 0))
    a("s_xor_b32 s46, s46, 1")
    a(f"s_mul_i32 s86, s46, {64*1280}")
    a("s_add_u32 s86, s86, s47")
    a("s_xor_b32 s76, s75, 8192")
    a(f"s_and_b32 s45, s39, {o.ab}")
    a("s_cmp_eq_u32 s41, 1")
    a("s_cbranch_scc1 Ll_ssm")
    for ssm in (0, 1):
        if ssm:
            a.label("Ll_ssm")
        slot = S_WS if ssm else F_WS
        a(f"s_mov_b32 s81, {slot}")
        a(f"s_mov_b32 s82, {2*slot}")
        a("s_xor_b32 s47, s45, 1")
        if not ssm:
            if o.fastw:
                a("s_movk_i32 s46, 3296")
                a("v_mul_u32_u24 v1, 6554, v0")
                a("v_lshlrev_b32 v2, 4, v0")
                a(f"s_mov_b32 s88, {64*6554}")
                for i in range(5):
                    a("v_lshrrev_b32 v3, 16, v1")
                    if i == 4:
                        a("v_add_u32 v2, 4096, v2")
                    a(f"v_mad_u32_u24 v{VWO+i}, v3, s46, v2")
                    if i < 4:
                        a("v_add_u32 v1, s88, v1")
            else:
                for i in range(5):
                    a(f"v_add_u32 v2, {64*i}, v0")
                    a("v_mul_u32_u24 v3, 6554, v2")
                    a("v_lshrrev_b32 v3, 16, v3")
                    a("v_mul_u32_u24 v1, 10, v3")
                    a("v_sub_u32 v2, v2, v1")
                    a("v_mul_u32_u24 v3, 3456, v3")
                    a("v_lshl_add_u32 v3, v2, 4, v3")
                    a(f"v_subrev_u32 v{VWO+i}, {(i & 3)*1024}, v3")
            a("s_mul_i32 s46, s40, 160")
            a(f"s_mul_i32 s66, s45, {32*3456}")
            a(f"s_mul_i32 s67, s47, {32*3456}")
            a("s_add_u32 s66, s66, s46")
            a("s_add_u32 s67, s67, s46")
            a(f"s_mul_i32 s46, s90, {F_UP}")
            a(f"s_add_u32 s46, s46, {WB}")
            a("s_mul_i32 s77, s45, 5120")
            a("s_mul_i32 s78, s47, 5120")
            a("s_add_u32 s77, s77, s46")
            a("s_add_u32 s78, s78, s46")
            a("s_add_u32 s79, s77, 4096")
            a("s_add_u32 s80, s78, 4096")
            a("s_mov_b32 s83, s81")
            a("s_mov_b32 s87, s82")
            a(f"s_mov_b32 s84, {64*3456}")
            a("s_cmp_eq_u32 s90, 0")
            a(f"s_cselect_b32 s52, s{P_W1}, s{P_W3}")
            a(f"s_cselect_b32 s53, s{P_W1+1}, s{P_W3+1}")
            a(f"s_mov_b32 s54, {640*3456}")
            a("s_branch Ll_go")
        else:
            for i in range(4):
                a(f"v_add_u32 v{VWO+i}, {i*(8*1280 - 1024)}, v{VE + (i & 1)}" if o.xq else f"v_mov_b32 v{VWO+i}, v{VXO+i}")
            a(f"v_mov_b32 v{VWO+4}, 0x40000000")
            a(f"s_mul_i32 s46, s40, {64*1280}")
            a(f"s_mul_i32 s66, s45, {32*1280}")
            a(f"s_mul_i32 s67, s47, {32*1280}")
            a("s_add_u32 s66, s66, s46")
            a("s_add_u32 s67, s67, s46")
            a("s_lshl_b32 s46, s90, 13")
            a("s_lshl_b32 s77, s45, 12")
            a("s_add_u32 s77, s77, s46")
            a("s_xor_b32 s78, s77, 4096")
            a(f"s_add_u32 s77, s77, {WB}")
            a(f"s_add_u32 s78, s78, {WB}")
            a("s_lshl_b32 s79, s90, 10")
            a(f"s_add_u32 s79, s79, {S_DUMMY}")
            a("s_mov_b32 s80, s79")
            a("s_mov_b32 s83, 0")
            a("s_mov_b32 s87, 0")
            a("s_movk_i32 s84, 128")
            a("s_cmp_eq_u32 s90, 0")
            a(f"s_cselect_b32 s52, s{P_BRE}, s{P_BIM}")
            a(f"s_cselect_b32 s53, s{P_BRE+1}, s{P_BIM+1}")
            a(f"s_mov_b32 s54, {640*1280}")
    a.label("Ll_go")
    a("s_mov_b32 s55, 0x20000")
    a("s_mul_i32 s44, s3, s84")
    a("s_add_u32 s66, s66, s44")
    a("s_add_u32 s67, s67, s44")
    a("s_mul_i32 s73, s84, -9")
    a("s_mov_b32 s71, s3")
    a("s_mov_b32 s72, s3")
    a("s_movk_i32 s74, 128")
    def setm0(base, sl, five=False):
        if sl == 0:
            return f"s_mov_b32 m0, s{base}"
        return f"s_add_u32 m0, s{base}, s{((83, 87) if five else (81, 82))[sl-1]}"
    def half(stage, h, extra=()):
        extra = list(extra)
        sl = slot_of(stage)
        def dma(ins):
            vm.op(ins, ("st", stage))
            for _ in range(2 if len(extra) > 14 else 1):
                if extra:
                    a(extra.pop(0))
                    if extra and extra[0].startswith("s_addc"):
                        a(extra.pop(0))
        if (stage, h) != (0, 0):
            a(f"s_add_u32 m0, s{75 + h}, {sl*XS}"); a("s_nop 0")
        for i in range(8 if (stage, h) != (0, 0) else 0):
            if i == 4:
                a("s_xor_b32 m0, m0, 4096"); a("s_nop 0")
            dma(f"buffer_load_dwordx4 v{VXO+i}, s[48:51], s{85+h} offen offset:{(i & 3)*1024} lds")
        a(setm0(77 + h, sl))
        a(f"s_add_u32 s{71+h}, s{71+h}, 1")
        for i in range(4):
            dma(f"buffer_load_dwordx4 v{VWO+i}, s[52:55], s{66+h} offen offset:{i*1024} lds")
        a(setm0(79 + h, sl, True)); a("s_nop 0")
        dma(f"buffer_load_dwordx4 v{VWO+4}, s[52:55], s{66+h} offen lds")
        a(f"s_cmp_eq_u32 s{71+h}, 10")
        a(f"s_cselect_b32 s44, {-9*128 & 0xffffffff:#x}, s74")
        a("s_cselect_b32 s45, s73, s84")
        a(f"s_add_u32 s{85+h}, s{85+h}, s44")
        a(f"s_add_u32 s{66+h}, s{66+h}, s45")
        for x in extra:
            a(x)
    def bar(s):
        vm.wait(("st", s))
        stamp(a, o, 8 + s)
        a("s_barrier")
        stamp(a, o, 20 + s)
    wo = lambda: warm_ops(o, "w")
    lw = list(o.lwarm)
    assert sum(lw) in (0, 9)
    half0 = half
    def lwarm_setup():
        a("v_lshlrev_b32 v20, 4, v0")
        a("s_cmp_eq_u32 s90, 1")
        a("s_cbranch_scc1 Ll_wx")
        a("s_and_b32 s68, s2, 1")
        a("s_cmp_eq_u32 s68, 0")
        a(f"s_cselect_b32 s56, s{P_W1}, s{P_W3}")
        a(f"s_cselect_b32 s57, s{P_W1+1}, s{P_W3+1}")
        a(f"s_mov_b32 s58, {640*3456}")
        a("s_mov_b32 s60, s56")
        a("s_mov_b32 s61, s57")
        a("s_mov_b32 s62, s58")
        a("s_lshr_b32 s68, s2, 1")
        a("s_mul_i32 s68, s68, 1728")
        a("s_add_u32 s69, s68, 1008")
        a("v_min_u32 v21, 704, v20")
        a(f"s_mov_b32 s70, {64*3456}")
        a("s_branch Ll_wd")
        a.label("Ll_wx")
        a(f"s_mov_b32 s56, s{P_X}")
        a(f"s_mov_b32 s57, s{P_X+1}")
        a(f"s_mov_b32 s58, {2048*1280}")
        a("s_cmp_lt_u32 s2, 128")
        a(f"s_cselect_b32 s60, s{P_BRE}, s{P_BIM}")
        a(f"s_cselect_b32 s61, s{P_BRE+1}, s{P_BIM+1}")
        a(f"s_mov_b32 s62, {640*1280}")
        a("v_lshrrev_b32 v20, 3, v0")
        a("v_min_u32 v21, 4, v20")
        a("v_and_b32 v22, 7, v0")
        a("v_lshlrev_b32 v22, 4, v22")
        a("v_mul_u32_u24 v20, 1280, v20")
        a("v_mul_u32_u24 v21, 1280, v21")
        a("v_add_u32 v20, v20, v22")
        a("v_add_u32 v21, v21, v22")
        a(f"s_mul_i32 s68, s2, {8*1280}")
        a("s_and_b32 s69, s2, 127")
        a(f"s_mul_i32 s69, s69, {5*1280}")
        a("s_movk_i32 s70, 128")
        a.label("Ll_wd")
        a("s_mov_b32 s59, 0x20000")
        a("s_mov_b32 s63, 0x20000")
    nh = [0]
    def half(stage, h, extra=()):
        half0(stage, h, extra)
        if nh[0] == 0 and sum(lw):
            lwarm_setup()
        k = lw[nh[0]] if nh[0] < len(lw) else 0
        nh[0] += 1
        for _ in range(k):
            a("s_add_u32 s68, s68, s70")
            a("s_add_u32 s69, s69, s70")
            vm.op("buffer_load_dwordx4 v[28:31], v20, s[56:59], s68 offen", "lw")
            vm.op("buffer_load_dwordx4 v[28:31], v21, s[60:63], s69 offen", "lw")
    half(0, 0)
    stamp(a, o, 39)
    warm_setup(a, o); warm_skip(a, o, 3)
    half(0, 1, wo())
    half(1, 0, wo())
    p2_tile(a)
    bar(0)
    nw = 2
    for s in range(0, 8):
        if s < o.lead:
            half(s + 1, 1, wo() if nw < 7 else ()); nw += 1; half(s + 2, 0)
        elif s == o.lead:
            half(s + 1, 1); half(s + 2, 0, wo() if nw < 7 else ()); nw += 1; half(s + 2, 1)
        else:
            half(s + 2, 0, wo() if nw < 7 else ()); nw += 1; half(s + 2, 1)
        if s < 7:
            bar(s + 1)
    assert o.lead <= 7 and nw >= 7
    vm.wait(("st", 8))
    p2_prefetch(a, o, vm, o.cuts_l, True)
    a("s_branch L_p2l")

    a.label("L_helper")
    a(f"s_setprio {o.hprio}")
    p2_tile(a)
    a("s_waitcnt lgkmcnt(0)")
    vm = VM(a)
    GWF, XF, GA = 40, 120, 128
    RJ, OJ, O2, VA = 134, 166, 198, 32
    if o.codepf:
        a("s_getpc_b64 s[56:57]")
        a.label("Lpc")
        a(f"s_sub_u32 s56, s56, Lpc-{NAME}_kernel")
        a("s_subb_u32 s57, s57, 0")
        a(f"s_mov_b32 s58, L_codeend-{NAME}_kernel")
        a("s_mov_b32 s59, 0x20000")
        a("s_lshr_b32 s66, s2, 3")
        a("s_lshl_b32 s66, s66, 1")
        a("s_add_u32 s66, s66, s90")
        a("s_sub_u32 s66, s66, 2")
        a("s_lshl_b32 s66, s66, 10")
        a("v_lshlrev_b32 v21, 4, v0")
        a("buffer_load_dwordx4 v[24:27], v21, s[56:59], s66 offen")
    srd(a, 60, P_DBG, 256)
    a("v_mov_b32 v19, 0")
    a("s_lshl_b32 s65, s2, 2")
    a("s_lshl_b32 s66, s90, 1")
    a("s_add_u32 s65, s65, s66")
    a("s_sub_u32 s65, s65, 4")
    a("s_cmp_lg_u32 s65, 0")
    a("s_cbranch_scc1 Lh_nononce")
    a("s_memrealtime s[66:67]")
    a("s_waitcnt lgkmcnt(0)")
    a("s_or_b32 s66, s66, 1")
    a("v_mov_b32 v20, s66")
    a("s_mov_b64 exec, 1")
    a("buffer_store_dword v20, v19, s[60:63], 0 offen sc1")
    a("s_mov_b64 exec, -1")
    a.label("Lh_nononce")
    warm_setup(a, o); warm_skip(a, o, 3)
    warm_stage_xb(a, o, 1)
    srd(a, 52, P_GW, 1280)
    a("v_lshlrev_b32 v21, 4, v0")
    a("v_lshrrev_b32 v6, 4, v0")
    a("v_and_b32 v7, 15, v0")
    a("v_lshlrev_b32 v5, 4, v6")
    a("s_lshl_b32 s66, s41, 4")
    a("s_add_u32 s66, s66, s40")
    a("s_cmp_eq_u32 s90, 3")
    a("s_cselect_b32 s73, s66, 16")
    a("s_cmp_ge_u32 s73, 16")
    a("s_cbranch_scc1 Lh_nogw")
    a("s_lshl_b32 s66, s3, 7")
    for k in range(20):
        a(f"buffer_load_dwordx4 {vr(GWF+4*k, 4)}, v5, s[52:55], s66 offen offset:{(k & 1)*64}")
        if k & 1:
            a("s_add_u32 s66, s66, 128")
            a("s_cmp_eq_u32 s66, 1280")
            a("s_cselect_b32 s66, 0, s66")
    a.label("Lh_nogw")
    a("v_lshrrev_b32 v8, 3, v0")
    a(f"v_mul_u32_u24 v8, {8*1280}, v8")
    a("v_and_b32 v10, 7, v0")
    a("v_lshl_add_u32 v8, v10, 4, v8")
    a(f"v_mul_u32_u24 v9, {8*1280}, v6")
    a("v_lshl_add_u32 v9, v7, 4, v9")
    a("v_bfe_u32 v10, v0, 1, 3")
    a("v_xor_b32 v10, v10, v6")
    a("v_lshlrev_b32 v10, 4, v10")
    a("v_lshl_add_u32 v10, v7, 7, v10")
    a("s_and_b32 s66, s40, 15")
    a("s_lshl_b32 s66, s66, 11")
    a("v_add_u32 v10, s66, v10")
    for k in range(3):
        a(f"v_add_u32 v{12+2*k}, {k*XS}, v10")
        a(f"v_xor_b32 v{13+2*k}, 64, v{12+2*k}")
    for k in range(4):
        a(f"v_mov_b32 v{GA+k}, 0")
    a("s_lshr_b32 s65, s65, 1")
    a("s_mul_i32 s70, s65, 698")
    a("s_lshr_b32 s70, s70, 16")
    a("s_mul_i32 s69, s70, 94")
    a("s_sub_u32 s69, s65, s69")
    a("s_sub_u32 s66, s69, 54")
    a("s_and_b32 s67, s66, 1")
    a("s_lshl_b32 s68, s70, 1")
    a("s_add_u32 s67, s67, s68")
    a("s_bfe_u32 s84, s66, 0x10001")
    a("s_lshr_b32 s66, s66, 2")
    a("s_lshl_b32 s85, s66, 7")
    a(f"s_mul_i32 s68, s67, {64*1280}")
    a("s_add_u32 s85, s85, s68")
    a("s_lshl_b32 s66, s66, 2")
    a("s_add_u32 s66, s66, s84")
    a("s_lshl_b32 s67, s67, 2")
    a(f"s_mul_i32 s86, s69, {32*1280}")
    a("s_lshl_b32 s68, s70, 8")
    a("s_add_u32 s86, s86, s68")
    a("s_lshl_b32 s70, s70, 3")
    a("s_cmp_lt_u32 s69, 54")
    a("s_cselect_b32 s88, 1, 0")
    a("s_add_u32 s69, s69, 40")
    a("s_cmp_eq_u32 s88, 1")
    a("s_cselect_b32 s66, s69, s66")
    a("s_cselect_b32 s67, s70, s67")
    a("s_cselect_b32 s85, s86, s85")
    a("s_cselect_b64 vcc, -1, 0")
    a(f"s_add_u32 s86, s85, {4*1280}")
    a("v_cndmask_b32 v8, v8, v9, vcc")
    a(f"s_mul_i32 s87, s66, {WK}")
    a("s_cmp_ge_u32 s65, 470")
    a("s_cselect_b32 s87, 0x40000000, s87")
    a("s_cmp_eq_u32 s88, 1")
    for t in range(8):
        a(f"s_movk_i32 s68, {(t >> 2)*2*WK + (t & 3)*256}")
        a(f"s_cselect_b32 s68, {(t & 1)*128}, s68")
        a(f"s_lshl1_add_u32 s69, 0, s68" if False else f"s_or_b32 s69, s68, 0")
        a(f"s_add_u32 s{76+t}, s69, s87")
        a("s_cmp_eq_u32 s88, 1")
    a("v_bfe_u32 v9, v0, 3, 1")
    a("v_lshlrev_b32 v9, 2, v9")
    a("v_lshlrev_b32 v18, 8, v6")
    a("v_and_b32 v20, 7, v0")
    a("v_lshl_add_u32 v18, v20, 4, v18")
    a("v_lshlrev_b32 v20, 4, v7")
    a("v_cndmask_b32 v18, v20, v18, vcc")
    for j in range(4):
        a(f"v_add_u32 v20, {j}, v9")
        a("v_cndmask_b32 v20, v6, v20, vcc")
        a("v_add_u32 v20, s67, v20")
        a("v_mul_u32_u24 v22, 52, v20")
        a("v_lshrrev_b32 v22, 8, v22")
        a(f"v_mul_u32_u24 v22, {WT - 5120}, v22")
        a("v_lshl_add_u32 v22, v20, 10, v22")
        a(f"v_add_u32 v{VA+j}, v22, v18")
    warm_stage_xb(a, o, 1)
    def gstep(s):
        sl = slot_of(s)
        a(f"ds_read_b128 {vr(XF, 4)}, v{12+2*sl}")
        a(f"ds_read_b128 {vr(XF+4, 4)}, v{13+2*sl}")
        a("s_waitcnt lgkmcnt(0)")
        a(f"v_mfma_f32_16x16x32_bf16 {vr(GA, 4)}, {vr(GWF+8*s, 4)}, {vr(XF, 4)}, {vr(GA, 4)}")
        a(f"v_mfma_f32_16x16x32_bf16 {vr(GA, 4)}, {vr(GWF+8*s+4, 4)}, {vr(XF+4, 4)}, {vr(GA, 4)}")
    def ev_load():
        a("s_cmp_eq_u32 s84, 0")
        a(f"s_cselect_b32 s56, s{P_CRE}, s{P_CIM}")
        a(f"s_cselect_b32 s57, s{P_CRE+1}, s{P_CIM+1}")
        a(f"s_mov_b32 s58, {640*1280}")
        a("s_cmp_eq_u32 s88, 1")
        a(f"s_cselect_b32 s56, s{P_W2}, s56")
        a(f"s_cselect_b32 s57, s{P_W2+1}, s57")
        a(f"s_cselect_b32 s58, {1728*1280}, s58")
        a("s_mov_b32 s59, 0x20000")
        for e in range(8):
            a(f"buffer_load_dwordx4 {vr(RJ+4*e, 4)}, v8, s[56:59], s{85 + (e >> 2)} offen offset:{(e & 3)*1280}")
    def ev_store(jb):
        if jb == 0:
            srd(a, 56, P_WS, W2_SIZE, W2_OFF)
            a("s_mov_b32 s70, 0x05040100")
            a("s_mov_b32 s71, 0x07060302")
            a("s_waitcnt vmcnt(0)")
            a("s_cmp_eq_u32 s88, 0")
            a("s_cbranch_scc1 Lh_noperm")
            for t in range(8):
                for e in range(4):
                    a(f"v_perm_b32 v{OJ+4*t+e}, v{RJ+8*e+4+(t >> 1)}, v{RJ+8*e+(t >> 1)}, s{70+(t & 1)}")
            a("s_branch Lh_tr")
            a.label("Lh_noperm")
            for k in range(0, 32, 2):
                a(f"v_pk_mov_b32 {vr(OJ+k, 2)}, {vr(RJ+k, 2)}, {vr(RJ+k, 2)} op_sel:[0,1]")
            a.label("Lh_tr")
            for (src, dst, x, dp, m) in ((OJ, O2, 1, ("quad_perm:[1,0,3,2]",)*2, 0xaaaaaaaa), (O2, OJ, 2, ("quad_perm:[2,3,0,1]",)*2, 0xcccccccc),
                                         (OJ, O2, 4, ("row_shr:4", "row_shl:4"), 0xf0f0f0f0)):
                for hi in (1, 0):
                    mm = m if hi else (~m & 0xffffffff)
                    a(f"s_mov_b32 vcc_lo, {mm:#x}")
                    a(f"s_mov_b32 vcc_hi, {mm:#x}")
                    a("s_nop 1")
                    for t in range(8):
                        if bool(t & x) != bool(hi):
                            continue
                        for e in range(4):
                            a(f"v_cndmask_b32_dpp v{dst+4*t+e}, v{src+4*(t ^ x)+e}, v{src+4*t+e}, vcc {dp[hi]} row_mask:0xf bank_mask:0xf bound_ctrl:0")
        for t in range(4*jb, 4*jb + 4):
            a(f"buffer_store_dwordx4 {vr(O2+4*t, 4)}, v{VA + (t >> 1)}, s[56:59], s{76 + t} offen sc1")
    def ev_drain():
        a("s_mov_b32 s72, 0")
        if o.snonce:
            a("v_mov_b32 v23, s64")
        a.label("Lh_npoll")
        a("s_waitcnt vmcnt(0)")
        a("v_readfirstlane_b32 s64, v23")
        a("s_add_u32 s72, s72, 1")
        a("s_cmp_lg_u32 s64, 0")
        a("s_cbranch_scc1 Lh_ngot")
        a("buffer_load_dword v23, v19, s[60:63], 0 offen sc1")
        a(f"s_cmp_lt_u32 s72, {SPIN_MAX:#x}")
        a("s_cbranch_scc1 Lh_npoll")
        a.label("Lh_ngot")
        a(f"v_mov_b32 v22, {NONCE_LDS}")
        a("ds_write_b32 v22, v23")
        a("s_waitcnt lgkmcnt(0)")
    def ev_flag():
        srd(a, 56, P_WS, FW_SIZE, FW_OFF)
        a("s_cmp_lg_u32 s90, 2")
        a("s_cbranch_scc1 Lh_noflag")
        a("s_lshl_b32 s66, s2, 7")
        a("v_lshlrev_b32 v22, 2, v0")
        a("s_mov_b32 exec_hi, 0")
        if not o.fullflag:
            a("s_mov_b32 exec_lo, 1")
        a("buffer_store_dword v23, v22, s[56:59], s66 offen sc1")
        a("s_mov_b64 exec, -1")
        a.label("Lh_noflag")
    t_ld, t_s0, t_s1, t_dr = o.hsched
    assert t_ld < t_s0 <= t_s1 < t_dr <= 6
    nyoung = 0
    if o.vwarm:
        a("s_cmp_eq_u32 s90, 3")
        a("s_cbranch_scc1 Lh_wx")
        a("s_and_b32 s68, s2, 1")
        a("s_cmp_eq_u32 s68, 0")
        a(f"s_cselect_b32 s56, s{P_W1}, s{P_W3}")
        a(f"s_cselect_b32 s57, s{P_W1+1}, s{P_W3+1}")
        a(f"s_mov_b32 s58, {640*3456}")
        a("s_mov_b32 s59, 0x20000")
        a("s_lshr_b32 s68, s2, 1")
        a("s_mul_i32 s68, s68, 1728")
        a("v_min_u32 v24, 704, v21")
        for st in range(1, 10 if o.vwarm == 1 else 1):
            a(f"s_add_u32 s68, s68, {64*3456}")
            a("buffer_load_dwordx4 v[28:31], v21, s[56:59], s68 offen")
            a("buffer_load_dwordx4 v[28:31], v24, s[56:59], s68 offen offset:1008")
        a("s_branch Lh_wd")
        a.label("Lh_wx")
        srd(a, 52, P_X, 2048 * 1280)
        a("s_cmp_lt_u32 s2, 128")
        a(f"s_cselect_b32 s56, s{P_BRE}, s{P_BIM}")
        a(f"s_cselect_b32 s57, s{P_BRE+1}, s{P_BIM+1}")
        a(f"s_mov_b32 s58, {640*1280}")
        a("s_mov_b32 s59, 0x20000")
        a("v_lshrrev_b32 v24, 3, v0")
        a("v_min_u32 v25, 4, v24")
        a("v_and_b32 v26, 7, v0")
        a("v_lshlrev_b32 v26, 4, v26")
        a("v_mad_u32_u24 v24, v24, s98, v26").__class__
        a.l.pop()
        a("v_mul_u32_u24 v24, 1280, v24")
        a("v_mul_u32_u24 v25, 1280, v25")
        a("v_add_u32 v24, v24, v26")
        a("v_add_u32 v25, v25, v26")
        a(f"s_mul_i32 s68, s2, {8*1280}")
        a("s_and_b32 s69, s2, 127")
        a(f"s_mul_i32 s69, s69, {5*1280}")
        if o.vwarm == 3 and o.map1 == "8x1":
            a("s_lshl_b32 s68, s39, 5")
            a("s_lshr_b32 s69, s2, 3")
            a("s_add_u32 s68, s68, s69")
            a(f"s_mul_i32 s68, s68, {8*1280}")
        if o.vwarm == 4:
            for k in range(7):
                a(f"buffer_load_dwordx4 v[28:31], v21, s[56:59], s69 offen")
                a(f"s_add_u32 s69, s69, {1024 if k < 5 else 256}")
        else:
            for st in range(0 if o.vwarm == 3 else 1, 10):
                a(f"buffer_load_dwordx4 v[28:31], v24, s[52:55], s68 offen offset:{st*128}")
                if o.vwarm != 3:
                    a(f"buffer_load_dwordx4 v[28:31], v25, s[56:59], s69 offen offset:{st*128}")
        a.label("Lh_wd")
        nyoung = {3: 10, 4: 7}.get(o.vwarm, 18)
    if t_ld < 0:
        ev_load()
        nyoung += 8
    assert t_dr + 1 < o.vlook
    for s in range(o.vlook):
        stamp(a, o, 8 + s)
        a("s_barrier")
        if s == 0:
            a(f"s_waitcnt vmcnt({nyoung})")
        gstep(s)
        if s == t_dr: ev_drain()
        if s == t_dr + 1: ev_flag()
        if s < 5:
            warm_stage_xb(a, o, 1)
        if s == t_ld: ev_load()
        if s == t_s0: ev_store(0)
        if s == t_s1: ev_store(1)
        if s == t_dr - 1:
            a(f"s_load_dword s64, s[{P_DBG}:{P_DBG+1}], 0" if o.snonce else "buffer_load_dword v23, v19, s[60:63], 0 offen sc1")
        if o.tlb and s == o.tlb:
            a("s_cmp_eq_u32 s90, 2")
            a(f"s_cselect_b32 s52, s{P_WS}, s{P_OUT}")
            a(f"s_cselect_b32 s53, s{P_WS+1}, s{P_OUT+1}")
            a(f"s_mov_b32 s54, {2048*2560}")
            a(f"s_cselect_b32 s54, {FW_OFF + FW_SIZE}, s54")
            a("s_mov_b32 s55, 0x20000")
            a("v_lshlrev_b32 v30, 20, v0")
            a("buffer_load_dword v31, v30, s[52:55], 0 offen sc1")
        if o.hops and s == o.hopsched[0]:
            a("s_mov_b64 exec, 0")
            a("s_cmp_eq_u32 s41, 0")
            a("s_cbranch_scc1 Lhop_fe_0")
            a("s_cmp_eq_u32 s90, 2")
            a("s_cbranch_scc1 Lhop_s1_0")
            a("s_branch Lhop_s2_0")
            a.label("Lhopret_fe"); a.label("Lhopret_s1"); a.label("Lhopret_s2")
            a("s_mov_b64 exec, -1")
        if o.hops and s == o.hopsched[1]:
            a("s_mov_b64 exec, 0")
            a("s_cmp_eq_u32 s90, 2")
            a("s_cbranch_scc1 Lhop_pc_0")
            a("s_branch Lhop_pl_0")
            a.label("Lhopret_pc"); a.label("Lhopret_pl")
            a("s_mov_b64 exec, -1")
    def hook(s):
        if s < 10:
            gstep(s)
            return
        a("s_cmp_ge_u32 s73, 16")
        a("s_cbranch_scc1 Lh_nog")
        a(f"v_cvt_pk_bf16_f32 v{GA}, v{GA}, v{GA}")
        a(f"v_lshlrev_b32 v{GA}, 16, v{GA}")
        a(f"v_mul_f32 v{GA}, {NLOG2E:#x}, v{GA}")
        a(f"v_exp_f32 v{GA}, v{GA}")
        a("s_nop 0")
        a(f"v_add_f32 v{GA}, 1.0, v{GA}")
        a(f"v_rcp_f32 v{GA}, v{GA}")
        a("s_nop 0")
        a(f"v_cvt_pk_bf16_f32 v{GA}, v{GA}, v{GA}")
        a(f"v_lshlrev_b32 v{GA}, 16, v{GA}")
        a(f"v_mov_b32 v{GA+1}, s64")
        srd(a, 60, P_WS, G_SIZE, G_OFF)
        a("v_lshlrev_b32 v2, 3, v0")
        a("s_lshl_b32 s66, s39, 4")
        a("s_add_u32 s66, s66, s40")
        a("s_lshl_b32 s66, s66, 7")
        a("s_mov_b64 exec, 0xffff")
        a(f"buffer_store_dwordx2 {vr(GA, 2)}, v2, s[60:63], s66 offen sc1")
        a("s_mov_b64 exec, -1")
        a.label("Lh_nog")
    p2_prefetch(a, o, vm, o.cuts_h, False, hook)
    a.seg("pl")
    a.label("L_p2l")
    a(f"s_setprio {o.lprio}")

def lds_wait(a, name, off):
    a("s_mov_b32 s72, 0")
    a.label(f"{name}poll")
    a(f"ds_read_b32 v7, v6 offset:{off}")
    a("s_waitcnt lgkmcnt(0)")
    a("v_cmp_ne_u32 vcc, s64, v7")
    a("s_add_u32 s72, s72, 1")
    a("s_cmp_eq_u64 vcc, 0")
    a(f"s_cbranch_scc1 {name}got")
    a("s_sleep 1")
    a(f"s_cmp_lt_u32 s72, {SPIN_MAX*4:#x}")
    a(f"s_cbranch_scc1 {name}poll")
    a.label(f"{name}got")

def p2(a, o, loader):
    X = "L" if loader else "C"
    vm = VM(a)
    NS = 14 if loader else 10
    wreg = {}; hreg = {}
    if loader:
        ACC = L_ACC
        for n in range(6):
            for dt in range(5):
                wreg[n, dt] = L_W + n * 20 + dt * 4
        free = [L_H + 4 * i for i in range(12)]
        VO = 1
        lds_steps = ()
    else:
        ACC = C_ACC
        for k, n in enumerate(C_RSTEPS):
            for dt in range(5):
                wreg[n, dt] = C_WR + k * 20 + dt * 4
        lds_steps = tuple(range(2, 8))
        for n in lds_steps:
            for dt in range(5):
                wreg[n, dt] = C_WL + (((n - 2) * 5 + dt) % 6) * 4
        free = [C_H + 4 * i for i in range(12)]
        VO = 12
    acc = lambda dt, mi: ACC + (dt * 4 + mi) * 4
    srd(a, 56, P_WS, FH_SIZE, FH_OFF)
    if not loader:
        a("v_mov_b32 v3, s64")
        a("s_lshl_b32 s68, s90, 2")
        a(f"s_add_u32 s68, s68, {SFLAG_LDS}")
        a("v_mov_b32 v6, s68")
        a("s_waitcnt vmcnt(0)")
        a("s_mov_b64 exec, s[66:67]")
        a(f"buffer_store_dword v3, v2, s[56:59], s65 offen {o.hst}")
        a("s_mov_b64 exec, -1")
        a(f"s_setprio {o.cprio2}")
        if o.gate:
            a("ds_write_b32 v6, v3 offset:288")
        stamp(a, o, 7)
        lds_wait(a, "L2C_f", 144)
        if not o.opoll:
            for k in range(4):
                c_wload(a, k)
        a(f"s_mul_i32 s68, s90, {CREG}")
        a(f"v_add_u32 v4, s68, v{VO}")
    a("s_lshl_b32 s80, s74, 12")
    a(f"s_mul_i32 s69, s42, {HT}")
    a("s_add_u32 s80, s80, s69")
    a(f"s_mul_i32 s69, s101, {NS//2*HK}")
    a("s_add_u32 s80, s80, s69")
    a(f"s_mul_i32 s83, s101, {-NS*HK}")
    a(f"s_add_u32 s83, s83, {HK}")
    if loader:
        a(f"s_mul_i32 s75, s101, {-NS*WK}")
        a(f"s_add_u32 s75, s75, {WK}")
    if loader:
        a("s_mul_i32 s68, s90, 7")
        a("s_add_u32 s68, s68, 22")
        a("s_cmp_eq_u32 s90, 2")
        a("s_cselect_b32 s69, 6, 7")
        a("s_cmp_eq_u32 s90, 3")
        a("s_cselect_b32 s68, 0, s68")
        a("s_cselect_b32 s69, 6, s69")
    else:
        a("s_lshl_b32 s68, s90, 2")
        a("s_add_u32 s68, s68, 5")
        a("s_mov_b32 s69, 5")
    a("s_bfm_b64 s[78:79], s69, s68")
    a("v_lshlrev_b32 v2, 7, v0")
    a("s_lshl_b32 s65, s42, 13")
    if loader and o.gate:
        a("s_lshl_b32 s70, s90, 2")
        a(f"s_add_u32 s70, s70, {SFLAG_LDS}")
        a("v_mov_b32 v6, s70")
        lds_wait(a, "L2L_g", 288)
        if o.xstage:
            assert not o.rot2
            a("s_mul_i32 s70, s90, 9216")
            a(f"s_add_u32 s70, s70, {S_TR}")
            a("s_mov_b32 m0, s70")
            a("v_add_u32 v2, s70, v1")
            for i in range(4):
                a(f"buffer_load_dwordx4 v1, s[52:55], s76 offen offset:{i*1024} sc1 lds")
            a("s_add_u32 m0, m0, 4096")
            a(f"s_add_u32 s76, s76, {WK}")
            a("buffer_load_dwordx4 v1, s[52:55], s77 offen sc1 lds")
            a("s_add_u32 m0, m0, 1024")
            a(f"s_add_u32 s77, s77, {WK}")
            for i in range(4):
                a(f"buffer_load_dwordx4 v1, s[52:55], s76 offen offset:{i*1024} sc1 lds")
            a(f"s_add_u32 s76, s76, {WK}")
    stamp(a, o, 40)
    if o.dspan and not loader:
        a("s_cmp_lg_u32 s38, 0")
        a("s_cbranch_scc1 Ld2")
        dmark(a, o, 6)
        a.label("Ld2")
    a("s_mov_b32 s72, 0")
    if o.spoll:
        nf = 7 if loader else 5
        a("s_lshl_b32 s68, s68, 7")
        a("s_add_u32 s68, s68, s65")
        a("s_add_u32 s78, s56, s68")
        a("s_addc_u32 s79, s57, 0")
        a("s_sub_u32 s69, s69, 1")
        a("s_lshl_b32 s69, s69, 7")
        def sl():
            for k in range(nf - 1):
                a(f"s_load_dword s{6+k}, s[78:79], {k*128} glc")
            a(f"s_load_dword s{6+nf-1}, s[78:79], s69 glc")
        if not loader and o.opoll:
            for k in range(4):
                if k == o.opoll:
                    sl()
                c_wload(a, k)
            a("s_branch L2C_chk")
        a.label(f"L2{X}_poll")
        sl()
        a.label(f"L2{X}_chk")
        a("s_waitcnt lgkmcnt(0)")
        for k in range(nf):
            a(f"s_xor_b32 s{6+k}, s{6+k}, s64")
        for k in range(1, nf):
            a(f"s_or_b32 s6, s6, s{6+k}")
        a(f"s_cbranch_scc0 L2{X}_go")
        a(f"s_sleep {o.poll_sleep}")
        a("s_add_u32 s72, s72, 1")
        a(f"s_cmp_lt_u32 s72, {SPIN_MAX:#x}")
        a(f"s_cbranch_scc1 L2{X}_poll")
        if not loader:
            vm.q = [("w", n) for n in C_RSTEPS for _ in range(5)]
    else:
        a.label(f"L2{X}_poll")
        a("s_mov_b64 exec, s[78:79]")
        a("buffer_load_dword v3, v2, s[56:59], s65 offen sc1")
        a("s_waitcnt vmcnt(0)")
        a("v_cmp_ne_u32 vcc, s64, v3")
        a("s_mov_b64 exec, -1")
        a("s_and_b64 s[78:79], vcc, s[78:79]")
        a(f"s_cbranch_scc0 L2{X}_go")
        a(f"s_sleep {o.poll_sleep}")
        a("s_add_u32 s72, s72, 1")
        a(f"s_cmp_lt_u32 s72, {SPIN_MAX:#x}")
        a(f"s_cbranch_scc1 L2{X}_poll")
    a.label(f"L2{X}_go")
    stamp(a, o, 41)
    needs = []
    for n in range(NS):
        if loader and n >= 6:
            needs += [("l" if o.xstage and (n - 6) * 5 + i < 9 else "w", n, i) for i in range(5)]
        needs += [("h", n, i) for i in range(4)]
    E = {}
    cur = [0]
    look = o.look_l if loader else o.look_c
    def try_issue(force=False):
        if not needs or not free:
            return False
        if needs[0][1] > cur[0] + look and not force:
            return False
        kind, n, i = needs.pop(0)
        r = free.pop(0)
        tog = loader and o.ltog and started[0]
        if tog:
            a("s_setprio 0")
        if kind == "l":
            assert cur[0] >= 1
            wreg[n, i] = r
            a(f"ds_read_b128 {vr(r, 4)}, v2 offset:{((n - 6)*5 + i)*1024}")
        elif kind == "h":
            hreg[n, i] = r
            vm.op(f"buffer_load_dwordx4 {vr(r, 4)}, v{VO}, s[48:51], s80 offen offset:{i*1024} {o.hld}", ("h", n))
            if i == 3 and not o.dbg_sameh:
                a(f"s_add_u32 s80, s80, {HK if n != NS//2 - 1 else 's83'}")
        else:
            wreg[n, i] = r
            vm.op(f"buffer_load_dwordx4 {vr(r, 4)}, v{VO}, s[52:55], s{76 + (i >> 2)} offen offset:{(i & 3)*1024} {o.hld}", ("w", n))
            if i >= 3:
                a(f"s_add_u32 s{76 + (i >> 2)}, s{76 + (i >> 2)}, {WK if n != NS//2 - 1 else 's75'}")
        if tog:
            a(f"s_setprio {o.ltog}")
        return True
    started = [False]
    while try_issue():
        pass
    started[0] = True
    if loader and o.ltog:
        a(f"s_setprio {o.ltog}")
    VS = 4 if loader else 8
    a(f"v_lshrrev_b32 v{VS}, 4, v0")
    a("v_bfe_u32 v3, v0, 1, 2")
    a(f"v_xor_b32 v{VS}, v{VS}, v3")
    a("v_and_b32 v3, 15, v0")
    a(f"v_lshl_or_b32 v{VS}, v3, 2, v{VS}")
    a(f"v_lshlrev_b32 v{VS}, 4, v{VS}")
    if not loader:
        a("v_bfe_u32 v9, v0, 3, 2")
        a("v_xor_b32 v9, v9, v0")
        a("v_lshlrev_b32 v9, 4, v9")
    if loader:
        a(f"s_mul_i32 s68, s90, {2*CREG}")
        a("s_add_u32 s68, s68, 20480")
        a(f"s_add_u32 s69, s68, {CREG}")
        a("s_mul_i32 s70, s90, 20480")
        a(f"s_add_u32 s70, s70, {122880 - 2*20480}")
        a("s_add_u32 s82, s70, 10240")
        a("s_cmp_ge_u32 s90, 2")
        a("s_cselect_b32 s68, s70, s68")
        a("s_cselect_b32 s69, s82, s69")
        a("v_add_u32 v3, s68, v4")
        a("v_add_u32 v5, s69, v4")
    def lds_w(k):
        n, dt = 2 + k // 5, k % 5
        return f"ds_read_b128 {vr(wreg[n, dt], 4)}, v4 offset:{k*1024}"
    def eloads():
        E["g"] = free.pop(0); E["x"] = [free.pop(0) for _ in range(5)]
        srd(a, 60, P_WS, G_SIZE, G_OFF)
        a("v_lshrrev_b32 v2, 2, v0")
        a("v_lshlrev_b32 v3, 3, v2")
        a("s_lshl_b32 s68, s42, 6")
        a("s_lshl_b32 s69, s90, 4")
        a("s_add_u32 s68, s68, s69")
        a("s_lshl_b32 s81, s68, 3")
        a(f"v_mov_b32 v{E['g']+2}, v3")
        vm.op(f"buffer_load_dwordx2 {vr(E['g'], 2)}, v3, s[60:63], s81 offen sc1", "e")
        srd(a, 84, P_X, 2048 * 1280)
        a("v_and_b32 v3, 3, v0")
        a("v_lshlrev_b32 v3, 3, v3")
        a("v_mul_u32_u24 v2, 1280, v2")
        a("v_add_u32 v2, v2, v3")
        a("s_mul_i32 s71, s68, 1280")
        a("s_mul_i32 s69, s43, 160")
        a("s_add_u32 s71, s71, s69")
        for dt in range(5):
            vm.op(f"buffer_load_dwordx2 {vr(E['x'][dt], 2)}, v2, s[84:87], s71 offen offset:{dt*32}", "e")
        srd(a, 84, P_DSK, 1280)
        for dt in range(5):
            vm.op(f"buffer_load_dwordx2 {vr(E['x'][dt]+2, 2)}, v3, s[84:87], s69 offen offset:{dt*32}", "e")
        a("v_lshlrev_b32 v2, 1, v2")
        a("s_lshl_b32 s71, s71, 1")
        srd(a, 84, P_OUT, 2048 * 2560)
        a(f"s_mul_i32 s68, s90, {CREG}")
        a("v_add_u32 v3, s68, v8")
        a("v_add_u32 v5, 10240, v3")
    def put(dt):
        for mi in range(4):
            a(f"ds_write_b128 v{3 if mi < 2 else 5}, {vr(acc(dt, mi), 4)} offset:{((mi & 1)*5 + dt)*1024}")
    def mfma(n, dt, mi):
        c = "0" if n == 0 else vr(acc(dt, mi), 4)
        if o.dbg_nomfma:
            return
        a(f"v_mfma_f32_16x16x32_bf16 {vr(acc(dt, mi), 4)}, {vr(wreg[n, dt], 4)}, {vr(hreg[n, mi], 4)}, {c}")
    SP = (6, 8, 10, 12, 14, 16, 18, 22, 24, 26, 28, 30, 94, 98)
    def wait_step(n):
        need = [("h", n)]
        if loader and n >= (7 if o.xstage else 6):
            need.append(("w", n))
        vm.wait(*need)
        if loader and o.xstage and n in (6, 7):
            a("s_waitcnt lgkmcnt(0)")
        if o.stamps == 3:
            a(f"s_memrealtime s[{SP[n]}:{SP[n]+1}]")
        elif o.stamps and n in (0, 1, 5):
            stamp(a, o, 42 + (0, 1, 5).index(n))
    for n in range(NS - 2):
        cur[0] = n
        wait_step(n)
        if not loader and n == 1:
            a("v_and_b32 v6, 3, v0")
            a("v_lshlrev_b32 v6, 2, v6")
            a(f"v_add_u32 v6, {SFLAG_LDS}, v6")
            lds_wait(a, "L2C_s", 0)
            for k in range(5):
                a(lds_w(k))
        for dt in range(5):
            if n in lds_steps:
                f = (n - 2) * 5 + dt
                a(f"s_waitcnt lgkmcnt({min(29, f + 4) - f})")
            for mi in range(4):
                mfma(n, dt, mi)
                if mi == 0 and n in lds_steps and (n - 2) * 5 + dt + 5 < 30:
                    a(lds_w((n - 2) * 5 + dt + 5))
                if dt == 4:
                    free.append(hreg[n, mi])
                if mi % 2 == 1:
                    try_issue()
            if n not in lds_steps:
                free.append(wreg[n, dt])
        while (min(n + 2, NS - 1), 3) not in hreg:
            assert try_issue(True)
        if loader and n == o.mstep:
            a("s_barrier")
        if not loader and not needs and not E and len(free) >= 6:
            eloads()
    assert not needs and (loader or E)
    wait_step(NS - 2)
    for mi in range(4):
        mfma(NS - 2, 0, mi)
    wait_step(NS - 1)
    for dt in range(5):
        if dt < 4:
            for mi in range(4):
                mfma(NS - 2, dt + 1, mi)
        for mi in range(4):
            mfma(NS - 1, dt, mi)
        if dt >= 1:
            if dt == 4:
                a("s_nop 3")
            put(dt - 1)
    stamp(a, o, 45)
    a("s_nop 3")
    put(4)
    if loader:
        a("s_waitcnt lgkmcnt(0)")
        stamp(a, o, 46)
        a("s_barrier")
    else:
        vm.wait("e")
        T = free.pop(0)
        for dt in range(5):
            b = E["x"][dt]
            a(f"v_lshlrev_b32 v{T}, 16, v{b+2}")
            a(f"v_and_b32 v{T+1}, 0xffff0000, v{b+2}")
            a(f"v_lshlrev_b32 v{T+2}, 16, v{b+3}")
            a(f"v_and_b32 v{T+3}, 0xffff0000, v{b+3}")
            a(f"v_lshlrev_b32 v{b+2}, 16, v{b+1}")
            a(f"v_and_b32 v{b+3}, 0xffff0000, v{b+1}")
            a(f"v_and_b32 v{b+1}, 0xffff0000, v{b}")
            a(f"v_lshlrev_b32 v{b}, 16, v{b}")
            for p in range(2):
                a(f"v_pk_mul_f32 {vr(b+2*p, 2)}, {vr(b+2*p, 2)}, {vr(T+2*p, 2)}")
                a(f"v_cvt_pk_bf16_f32 v{b+2*p+1}, v{b+2*p}, v{b+2*p+1}")
                a(f"v_lshlrev_b32 v{b+2*p}, 16, v{b+2*p+1}")
                a(f"v_and_b32 v{b+2*p+1}, 0xffff0000, v{b+2*p+1}")
        G = E["g"]
        a("s_mov_b32 s72, 0")
        a.label("L2C_gpoll")
        a(f"v_cmp_ne_u32 vcc, s64, v{G+1}")
        a("s_cmp_eq_u64 vcc, 0")
        a("s_cbranch_scc1 L2C_ggot")
        a(f"buffer_load_dwordx2 {vr(G, 2)}, v{G+2}, s[60:63], s81 offen sc1")
        a("s_waitcnt vmcnt(0)")
        a("s_add_u32 s72, s72, 1")
        a(f"s_cmp_lt_u32 s72, {SPIN_MAX:#x}")
        a("s_cbranch_scc1 L2C_gpoll")
        a.label("L2C_ggot")
        a(f"v_sub_f32 v{G+1}, 1.0, v{G}")
        a(f"v_cvt_pk_bf16_f32 v{G+1}, v{G+1}, v{G+1}")
        a(f"v_lshlrev_b32 v{G+1}, 16, v{G+1}")
        a("s_mul_i32 s68, s90, 5120")
        a("v_add_u32 v3, s68, v9")
        a(f"v_add_u32 v4, {2*CREG}, v3")
        a(f"v_add_u32 v6, {4*CREG}, v3")
        a("s_lshr_b32 s69, s90, 1")
        a(f"s_mul_i32 s69, s69, {CREG - 10240}")
        a("s_add_u32 s69, s69, 20480")
        a("v_add_u32 v5, s69, v3")
        a(f"v_add_u32 v7, {2*CREG}, v5")
        a("s_waitcnt lgkmcnt(0)")
        a("s_barrier")
        RD = ACC
        SUM = [free.pop(0) for _ in range(5)]
        src = {0: (3, 0), 1: (3, CREG), 2: (4, 0), 3: (4, CREG), 4: (5, 0), 5: (7, 0), 6: (6, 0), 7: (6, 20480)}
        def rd(dt, lo):
            for s in range(4):
                v, off = src[lo + s]
                a(f"ds_read_b128 {vr(RD + dt*16 + s*4, 4)}, v{v} offset:{off + dt*1024}")
        def sweep(lo, fn):
            for dt in range(3):
                rd(dt, lo)
            for dt in range(5):
                a(f"s_waitcnt lgkmcnt({4*min(2, 4-dt)})")
                fn(dt)
                if dt + 3 < 5:
                    rd(dt + 3, lo)
        def csum(dt):
            for p in range(2):
                r = lambda s: vr(RD + dt*16 + 4*s + 2*p, 2)
                a(f"v_pk_add_f32 {r(0)}, {r(0)}, {r(1)}")
                a(f"v_pk_add_f32 {r(2)}, {r(2)}, {r(3)}")
                a(f"v_pk_add_f32 {vr(SUM[dt]+2*p, 2)}, {r(0)}, {r(2)}")
        sweep(0, csum)
        stamp(a, o, 46)
        a("s_barrier")
        stamp(a, o, 47)
        def fin(dt):
            sk = E["x"][dt]
            for p in range(2):
                r = lambda s: vr(RD + dt*16 + 4*s + 2*p, 2)
                B = SUM[dt] + 2*p
                a(f"v_pk_add_f32 {vr(B, 2)}, {vr(B, 2)}, {r(3)}")
                a(f"v_pk_add_f32 {r(0)}, {r(0)}, {r(1)}")
                a(f"v_pk_add_f32 {r(2)}, {r(2)}, {vr(sk+2*p, 2)}")
                a(f"v_cvt_pk_bf16_f32 v{B+1}, v{B}, v{B+1}")
                a(f"v_pk_add_f32 {r(0)}, {r(0)}, {r(2)}")
                a(f"v_lshlrev_b32 v{B}, 16, v{B+1}")
                a(f"v_and_b32 v{B+1}, 0xffff0000, v{B+1}")
                a(f"v_pk_mul_f32 {vr(B, 2)}, {vr(G, 2)}, {vr(B, 2)} op_sel:[1,0] op_sel_hi:[1,1]")
                a(f"v_cvt_pk_bf16_f32 v{B+1}, v{B}, v{B+1}")
                a(f"v_lshlrev_b32 v{B}, 16, v{B+1}")
                a(f"v_and_b32 v{B+1}, 0xffff0000, v{B+1}")
                a(f"v_pk_fma_f32 {vr(sk+2*p, 2)}, {vr(G, 2)}, {r(0)}, {vr(B, 2)} op_sel_hi:[0,1,1]")
            a(f"buffer_store_dwordx4 {vr(sk, 4)}, v2, s[84:87], s71 offen offset:{dt*64} {o.out_store}")
        sweep(4, fin)
    stamp(a, o, 48)
    if o.stamps == 3:
        for n in range(NS):
            a(f"v_writelane_b32 v254, s{SP[n]}, {8+n}")
        for n in range(22, 32):
            a(f"v_writelane_b32 v254, 0, {n}")
    stamp_flush(a, o)
    a("s_endpgm")

import subprocess, re, os
VOP_WIDEN = re.compile(r"^\s+(v_(?:exp|rcp|mov|lshlrev|and|add|sub|mul|xor|or|cvt|sin|cos|rndne|lshrrev|min|max|subrev)_\w+?)(_e32)?\s")
def sizes_of(lines, o):
    src = wrap("\n".join(lines) + "\n", o)
    open("_al.s", "w").write(src)
    subprocess.run(["clang", "-x", "assembler", "-target", "amdgcn-amd-amdhsa", "-mcpu=gfx950", "-c", "_al.s", "-o", "_al.o"], check=True)
    d = subprocess.run(["llvm-objdump", "-d", "--mcpu=gfx950", "_al.o"], capture_output=True, text=True).stdout
    return [len(m.group(1).split()) * 4 for m in re.finditer(r"// [0-9A-F]{12}: ([0-9A-F ]+)", d)]
def is_ins(l):
    t = l.strip()
    return l.startswith("    ") and t and not t.startswith(";") and not t.startswith(".")
def finalize(a, o):
    out = []; cur = None; cnt = 0; nh = 0
    for l in a.l:
        if isinstance(l, tuple):
            if cur and o.hops:
                out.append(f"Lhop_{cur}_{nh}:")
                out.append(f"    s_cbranch_execz Lhopret_{cur}")
            cur = l[1]; cnt = 10**9; nh = 0
            continue
        for x in l.split("\n"):
            if cur and o.hops and is_ins(x):
                if cnt >= o.hops and not (out and re.match(r"\s+s_(add_u32|mov_b32) m0", out[-1])):
                    out.append(f"Lhop_{cur}_{nh}:")
                    out.append(f"    s_cbranch_execz Lhop_{cur}_{nh+1}")
                    nh += 1; cnt = 0
                cnt += 1
            out.append(x)
    if not o.align:
        return out
    sz = sizes_of(out, o)
    idx = [i for i, l in enumerate(out) if is_ins(l)]
    assert len(idx) == len(sz), (len(idx), len(sz))
    off = 0; ins_before = {}; last_widen = None
    k = 0
    while k < len(idx):
        if sz[k] % 8 == 0:
            run = 0
            while k + run < len(idx) and sz[k + run] % 8 == 0:
                run += 1
            if off % 8 and run >= o.align:
                if last_widen is not None:
                    m = VOP_WIDEN.match(out[idx[last_widen]])
                    out[idx[last_widen]] = out[idx[last_widen]].replace(m.group(1) + (m.group(2) or ""), m.group(1) + "_e64", 1)
                else:
                    ins_before[idx[k]] = "    s_nop 0"
                off += 4
            off += sum(sz[k:k + run]); k += run
            if run >= 2:
                last_widen = None
            continue
        if sz[k] == 4 and VOP_WIDEN.match(out[idx[k]]) and "dpp" not in out[idx[k]]:
            last_widen = k
        off += sz[k]; k += 1
    res = []
    for i, l in enumerate(out):
        if i in ins_before:
            res.append(ins_before[i])
        res.append(l)
    return res

def wrap(body, o):
    ref = open(f"cdna_kernels/{NAME}.s.ref").read().splitlines()
    head = [l for l in ref if l.startswith(";") and "@launch" not in l]
    out = "\n".join(head) + "\n"
    out += f"; @launch grid=(256,1,1) block=(512,1,1) lds={LDS_BYTES}\n"
    out += f'.amdgcn_target "amdgcn-amd-amdhsa--gfx950"\n.text\n.globl {NAME}_kernel\n'
    out += body
    out += f""".section .rodata,"a"
.p2align 6
.amdhsa_kernel {NAME}_kernel
  .amdhsa_next_free_vgpr 256
  .amdhsa_next_free_sgpr 102
  .amdhsa_accum_offset 256
  .amdhsa_group_segment_fixed_size 0
  .amdhsa_kernarg_size 136
  .amdhsa_user_sgpr_count 2
  .amdhsa_user_sgpr_kernarg_segment_ptr 1
  .amdhsa_system_sgpr_workgroup_id_x 1
.end_amdhsa_kernel
"""
    return out

def generate(o):
    return wrap("\n".join(finalize(kernel(o), o)) + "\n", o)

if __name__ == "__main__":
    o = Opt()
    path = f"cdna_kernels/{NAME}.s"
    for arg in sys.argv[1:]:
        k, v = arg.split("=", 1)
        if k == "out":
            path = v
        else:
            cur = getattr(o, k)
            setattr(o, k, type(cur)(int(v)) if isinstance(cur, (bool, int)) else tuple(int(x) for x in v.split(",")) if isinstance(cur, tuple) else v)
    open(path, "w").write(generate(o))
    print("wrote", path)
```
